```python
import torch

def _softmax(x, axis=-1):
    return torch.softmax(x, dim=axis)
def _gelu(x):
    return torch.nn.functional.gelu(x, approximate="tanh")
def _silu(x):
    return torch.nn.functional.silu(x)
def _sigmoid(x):
    return torch.sigmoid(x)
def _layernorm(x, axis=-1, eps=1e-5):
    m = x.mean(dim=axis, keepdim=True)
    v = x.var(dim=axis, keepdim=True, unbiased=False)
    return (x - m) / torch.sqrt(v + eps)
def _scatter_add(tgt, idx, src, axis=0):
    return tgt.clone().index_add_(axis, idx, src)
def _segment_sum(src, seg, n):
    out = torch.zeros((n,) + src.shape[1:], dtype=src.dtype)
    return out.index_add_(0, seg, src)
def _pad(x, pw):
    flat = tuple(v for pair in reversed(pw) for v in pair)
    return torch.nn.functional.pad(x, flat)

kernel_name = 'recurrent_scan__sliding_block_cached__dense_activation_relu__decode'

def setup_inputs():

    _w = (lambda a: (lambda t: t.to(torch.bfloat16) if t.is_floating_point() else t)(torch.as_tensor(a)))
    def _A_setup():
        B, Sq, D = 4, 1, 512
        Hq, Hkv, Sk, Dh = 32, 8, 8192, 128
        assert Hq % Hkv == 0, (Hq, Hkv)
        return {
            "x": _w((lambda *s: torch.randn(*s, dtype=torch.bfloat16) * 0.05)(B, Sq, D)),
            "k_cache": _w((lambda *s: torch.randn(*s, dtype=torch.bfloat16) * 1.6)(B, Hkv, Sk, Dh)),
            "v_cache": _w((lambda *s: torch.randn(*s, dtype=torch.bfloat16) * 0.2)(B, Hkv, Sk, Dh)),
            "wq": _w((lambda *s: torch.randn(*s, dtype=torch.bfloat16) * 1.6)(D, Hq * Dh) * (D ** -0.5)),
            "wo": _w((lambda *s: torch.randn(*s, dtype=torch.bfloat16) * 0.2)(Hq * Dh, D) * ((Hq * Dh) ** -0.5)),
        }
    _A_in = _A_setup()

    def _B_setup():
        B, S, D, Dff = 4, 1, 512, 1792
        return {
            "x": _w((lambda *s: torch.randn(*s, dtype=torch.bfloat16) * 0.05)(B, S, D)),
            "w1": _w((lambda *s: torch.randn(*s, dtype=torch.bfloat16) * 0.1)(D, Dff)),
            "w2": _w((lambda *s: torch.randn(*s, dtype=torch.bfloat16) * 0.1)(Dff, D)),
        }
    _B_in = _B_setup()

    return {
        "A_x": _A_in["x"],
        "A_k_cache": _A_in["k_cache"],
        "A_v_cache": _A_in["v_cache"],
        "A_wq": _A_in["wq"],
        "A_wo": _A_in["wo"],
        "B_x": _B_in["x"],
        "B_w1": _B_in["w1"],
        "B_w2": _B_in["w2"],
    }

def reference(A_x, A_k_cache, A_v_cache, A_wq, A_wo, B_x, B_w1, B_w2):
    def _A_ref(x, k_cache, v_cache, wq, wo):
        B, Sq, D = x.shape
        Hq, Dh = 32, 128
        Hkv, Sk = k_cache.shape[1], k_cache.shape[2]
        W = min(4096, max(256, Sk // 4))
        rep = Hq // Hkv
        q = (lambda x, *d: x.permute(*d))((x @ wq).reshape(B, Sq, Hq, Dh), 0, 2, 1, 3)
        k = (lambda x, n, axis: torch.repeat_interleave(x, n, dim=axis))(k_cache[:, :, Sk - W:, :], rep, axis=1)
        v = (lambda x, n, axis: torch.repeat_interleave(x, n, dim=axis))(v_cache[:, :, Sk - W:, :], rep, axis=1)
        scores = torch.einsum("bhqd,bhkd->bhqk", q, k) * (Dh ** -0.5)
        p = _softmax(scores, axis=-1)
        o = torch.einsum("bhqk,bhkd->bhqd", p, v)
        return (lambda x, *d: x.permute(*d))(o, 0, 2, 1, 3).reshape(B, Sq, Hq * Dh) @ wo

    def _B_ref(x, w1, w2):
        h = torch.einsum("bsd,df->bsf", x, w1)
        zero = torch.zeros_like(h)
        h = torch.maximum(h, zero)
        return torch.einsum("bsf,fd->bsd", h, w2)

    x = A_x
    xn = _layernorm(x, axis=-1)
    s = _A_ref(xn, A_k_cache, A_v_cache, A_wq, A_wo)
    g = _silu(_B_ref(xn, B_w1, B_w2))
    return x + s * g
```

```python
import re
TRANS = ("v_exp_f32", "v_log_f32", "v_rcp_f32", "v_rsq_f32", "v_sqrt_f32")
def regs(tok):
    tok = tok.strip().lstrip("-")
    m = re.fullmatch(r"([vs])\[(\d+):(\d+)\]", tok)
    if m: return {(m.group(1), i) for i in range(int(m.group(2)), int(m.group(3)) + 1)}
    m = re.fullmatch(r"([vs])(\d+)", tok)
    if m: return {(m.group(1), int(m.group(2)))}
    if tok == "vcc": return {("s", "vcc")}
    if tok == "m0": return {("s", "m0")}
    return set()
class I:
    def __init__(s, line):
        s.line = line
        body = line.split(";")[0].strip()
        s.label = body.endswith(":"); s.dir = body.startswith(".") or not body
        p = body.split(None, 1); s.op = p[0] if p else ""
        ops = []
        if len(p) > 1:
            for o in re.split(r",(?![^\[]*\])", p[1]): ops.append(o.strip().split()[0] if o.strip() else "")
        s.ops = ops; op = s.op
        s.mfma = op.startswith("v_mfma"); s.valu = op.startswith("v_") and not s.mfma
        s.dpp = "_dpp" in op; s.perml = op.startswith("v_permlane"); s.trans = op in TRANS
        s.dot = op.startswith("v_dot"); s.vmem = op.startswith(("global_", "buffer_")); s.ds = op.startswith("ds_")
        s.dma = s.vmem and (" lds" in body or "_lds_" in op)
        s.w, s.r = set(), set(); s.sdata = set()
        R = [regs(o) for o in ops]
        U = lambda L: set().union(*L) if L else set()
        if s.valu or s.mfma:
            s.w = R[0]; s.r = U(R[1:])
            if s.perml: s.w = U(R); s.r = U(R)
            if s.dpp or op.startswith(("v_fmac", "v_dot2c")): s.r |= R[0]
            if s.mfma: s.a = R[1] | R[2]; s.c = R[3]
        elif s.vmem:
            if "store" in op:
                s.r = U(R); d = R[1] if op.startswith("global") else R[0]
                if len(d) >= 3: s.sdata = d
            elif s.dma: s.r = U(R) | {("s", "m0")}
            else: s.w = R[0]; s.r = U(R[1:])
        elif s.ds:
            if op.startswith("ds_read") or "rtn" in op: s.w = R[0]; s.r = U(R[1:])
            else: s.r = U(R)
        elif op.startswith("s_") and R:
            if op.startswith(("s_cmp", "s_cbranch", "s_waitcnt", "s_nop", "s_bitcmp")): s.r = U(R)
            else: s.w = R[0]; s.r = U(R[1:])
        s.states = (int(ops[0]) + 1) if op == "s_nop" else (0 if (s.label or s.dir) else 1)
def need(p, c):
    n = 0; V = lambda S: {x for x in S if x[0] == "v"}; S_ = lambda S: {x for x in S if x[0] == "s"}
    if p.valu:
        vw = V(p.w); sw = S_(p.w)
        if vw & c.r:
            if c.dpp or c.perml or c.mfma: n = max(n, 2)
            if c.op.startswith(("v_readfirstlane", "v_readlane")): n = max(n, 1)
            if p.trans and (c.valu and not c.trans): n = max(n, 1)
        if p.dot and (vw & (c.r | c.w)) and c.op != p.op: n = max(n, 3)
        if sw & c.r:
            if c.valu: n = max(n, 2)
            if c.vmem: n = max(n, 5)
    if p.mfma:
        if c.mfma:
            if p.w & c.a: n = max(n, 8)
            if p.w & c.c and p.w != c.c: n = max(n, 6)
            if p.w & c.w and p.w != c.c: n = max(n, 6)
        elif p.w & (c.r | c.w): n = max(n, 8)
        if c.valu and (p.c & c.w): n = max(n, 3)
    if p.sdata and (p.sdata & c.w): n = max(n, 2)
    if ("s", "m0") in p.w and c.dma: n = max(n, 1)
    return n
def pad(lines):
    out = []
    for ln in lines:
        c = I(ln)
        if c.states and c.op != "s_nop":
            dist = 0; req = 0
            for p in reversed(out):
                if dist >= 8: break
                if p.states: req = max(req, need(p, c) - dist)
                dist += p.states
            if req > 0: out.append(I(f"s_nop {req-1}"))
        out.append(c)
    return [i.line if (i.label or i.dir) else "    " + i.line for i in out]
class Asm:
    def __init__(s): s.L = []
    def __call__(s, t):
        for l in t.split("\n"):
            l = l.strip()
            if l: s.L.append(l)
    def text(s): return "\n".join(pad(s.L)) + "\n"
```

```python
import sys
from asmlib import Asm
NAME = "recurrent_scan__sliding_block_cached__dense_activation_relu__decode"
REF = "cdna_kernels/" + NAME + ".s.ref"
QP, HP, OP, SP, YP, ML, PROF = 0x10000, 0x50000, 0x90000, 0x110000, 0x150000, 0x190000, 0x400000
L_WQ, L_W1, L_WO, L_W2, L_OR = 0, 16384, 24576, 40960, 49152
L_XS0, L_XS1, L_QS, L_HS, L_OS, L_ML = 57344, 58368, 59392, 60416, 60928, 61952
TAGM = 0x3FF
LOG2E = "0x3fb8aa3b"
DPPF = "row_mask:0xf bank_mask:0xf"
def v(a, n=1): return f"v{a}" if n == 1 else f"v[{a}:{a+n-1}]"

def gen(prof=0, nt="nt", wnt="nt", rot=9, hprio=3, cap=1 << 18, **kw):
    a = Asm()
    def stamp(i):
        if prof: a(f"s_memrealtime s[{60+2*i}:{61+2*i}]")
    def endwave():
        a("s_branch L_prof" if prof else "s_endpgm")
    def tags():
        a(f"""s_add_u32 s12, s11, 1
        s_add_u32 s13, s11, 0x156
        s_add_u32 s14, s11, 0x2ab
        s_add_u32 s15, s11, 0xc4""")
    def tagins(r):
        for k in range(4): a(f"v_bfi_b32 v{r+k}, v2, s{12+k}, v{r+k}")
    def poll(name, loads, r0, n, acc):
        a(f"s_mov_b32 s56, {cap}\n{name}:")
        for l in loads: a(l)
        a("s_waitcnt vmcnt(0)")
        a(f"v_xor_b32 v{acc}, s12, v{r0}")
        for i in range(1, n): a(f"v_bitop3_b32 v{acc}, v{r0+i}, s{12+i%4}, v{acc} bitop3:0xbe")
        a(f"""v_and_b32 v{acc}, v2, v{acc}
        v_cmp_ne_u32 vcc, 0, v{acc}
        s_sub_u32 s56, s56, 1
        s_cbranch_scc1 L_end
        s_cbranch_vccnz {name}""")
    a(f"{NAME}_kernel:")
    stamp(0)
    a("""s_cmp_ge_u32 s2, 256
    s_cbranch_scc1 L_end
    s_load_dwordx16 s[16:31], s[0:1], 0
    s_load_dwordx2 s[34:35], s[0:1], 80
    s_load_dwordx2 s[32:33], s[0:1], 64
    v_lshrrev_b32 v3, 6, v0
    v_and_b32 v1, 63, v0
    v_readfirstlane_b32 s3, v3
    s_and_b32 s4, s2, 7
    s_lshr_b32 s5, s2, 3
    s_and_b32 s6, s5, 3
    s_lshr_b32 s7, s5, 2
    s_and_b32 s8, s5, 7
    s_lshr_b32 s9, s5, 3
    s_lshl_b32 s10, s4, 2
    s_add_u32 s10, s10, s9""")
    a(f"v_mov_b32 v2, {TAGM}")
    a("""s_cmp_ge_u32 s3, 2
    s_cbranch_scc1 L_A""")
    def hwave(q):
        nk = 4 if q else 2
        lw = L_WQ if q else L_W1; xs = L_XS0 if q else L_XS1
        rs = 8192 if q else 3584
        wb = "s[22:23]" if q else "s[28:29]"
        a("""v_lshrrev_b32 v3, 4, v1
        v_and_b32 v4, 15, v1
        v_lshlrev_b32 v4, 4, v4
        v_lshl_add_u32 v3, v3, 10, v4""")
        if q: a("s_mov_b32 s48, s9")
        else: a("s_lshr_b32 s48, s8, 1")
        for i in range(4):
            a(f"s_add_u32 s49, s48, {i}\ns_and_b32 s49, s49, 3\ns_lshl_b32 s49, s49, 8\nv_add_u32 v{4+i}, s49, v3")
        if q: a("s_lshl_b32 s49, s9, 20\ns_lshl_b32 s50, s4, 10\ns_add_u32 s49, s49, s50\ns_lshl_b32 s50, s8, 7\ns_add_u32 s49, s49, s50")
        else: a(f"s_mul_i32 s49, s8, {64*3584}\ns_lshl_b32 s50, s10, 7\ns_add_u32 s49, s49, s50")
        a(f"""v_lshrrev_b32 v8, 3, v1
        v_mul_u32_u24 v8, {rs}, v8
        v_and_b32 v9, 7, v1
        v_lshl_add_u32 v8, v9, 4, v8
        v_add_u32 v8, s49, v8
        s_mov_b32 m0, {lw}
        s_waitcnt lgkmcnt(0)
        s_load_dword s11, s[34:35], 0""")
        for i in range(4): a(f"global_load_dwordx4 {v(16+4*i,4)}, v{4+i}, s[16:17]")
        for j in range(4 * nk):
            if j: a(f"v_add_u32 v8, {8*rs}, v8\ns_add_u32 m0, m0, 1024")
            a(f"global_load_lds_dwordx4 v8, {wb} {wnt}")
        a("s_barrier")
        stamp(1)
        a(f"""v_lshrrev_b32 v3, 4, v1
        v_bfe_u32 v4, v1, 2, 2
        v_and_b32 v5, 3, v1
        v_lshl_add_u32 v10, v3, 3, v4
        v_lshlrev_b32 v10, 7, v10
        v_lshl_add_u32 v10, v5, 5, v10
        v_lshlrev_b32 v11, 4, v3
        v_lshl_add_u32 v11, v4, 8, v11
        v_lshlrev_b32 v12, 6, v3
        v_lshl_add_u32 v12, v5, 4, v12
        v_lshl_add_u32 v12, v4, {13 if q else 8}, v12
        v_lshlrev_b32 v14, 4, v1
        s_mov_b32 s52, 0xaaaaaaaa
        s_mov_b32 s53, 0xaaaaaaaa
        s_mov_b32 s54, 0xcccccccc
        s_mov_b32 s55, 0xcccccccc
        s_mov_b32 s59, 0x3f803f80""")
        if q:
            a(f"""s_lshl_b32 s49, s4, 15
            s_lshl_b32 s50, s9, 11
            s_add_u32 s50, s50, s49
            s_lshl_b32 s51, s8, 8
            s_add_u32 s50, s50, s51
            s_add_u32 s50, s50, {QP}
            s_lshl_b32 s51, s6, 13
            s_add_u32 s49, s49, s51
            s_add_u32 s49, s49, {QP+4096}""")
        else:
            a(f"""s_and_b32 s49, s8, 1
            s_lshl_b32 s49, s49, 7
            v_add_u32 v11, s49, v11
            s_lshl_b32 s49, s10, 13
            s_lshl_b32 s50, s8, 10
            s_add_u32 s50, s50, s49
            s_add_u32 s50, s50, {HP}
            s_add_u32 s49, s49, {HP+4096}""")
        a("v_add_u32 v12, s50, v12\nv_add_u32 v13, s49, v14")
        a(f"s_waitcnt vmcnt({4*nk})")
        stamp(2)
        a("v_dot2_f32_bf16 v4, v16, s59, 0\nv_dot2_f32_bf16 v5, v16, v16, 0")
        for i in range(1, 16): a(f"v_dot2_f32_bf16 v4, v{16+i}, s59, v4\nv_dot2_f32_bf16 v5, v{16+i}, v{16+i}, v5")
        for s in (8, 4, 2, 1): a(f"v_add_f32_dpp v4, v4, v4 row_ror:{s} {DPPF}\nv_add_f32_dpp v5, v5, v5 row_ror:{s} {DPPF}")
        a("""v_mul_f32 v4, 0x3b000000, v4
        v_mul_f32 v5, 0x3b000000, v5
        v_fma_f32 v5, -v4, v4, v5
        v_max_f32 v5, 0, v5
        v_cvt_pk_bf16_f32 v5, 0, v5
        v_add_f32 v5, 0x3727c5ac, v5
        v_cvt_pk_bf16_f32 v5, 0, v5
        v_sqrt_f32 v5, v5
        v_cvt_pk_bf16_f32 v4, 0, v4
        v_cvt_pk_bf16_f32 v5, 0, v5
        v_rcp_f32 v5, v5""")
        for i in range(4):
            a(f"""v_lshlrev_b32 v6, 16, v{16+i}
            v_and_b32 v7, 0xffff0000, v{16+i}
            v_sub_f32 v6, v6, v4
            v_sub_f32 v7, v7, v4
            v_cvt_pk_bf16_f32 v6, 0, v6
            v_cvt_pk_bf16_f32 v7, 0, v7
            v_mul_f32 v6, v6, v5
            v_mul_f32 v7, v7, v5
            v_cvt_pk_bf16_f32 v{16+i}, v6, v7""")
        a(f"ds_write_b128 v14, v[16:19] offset:{xs}")
        for t in range(nk): a(f"ds_read_b128 {v(32+4*t,4)}, v11 offset:{xs+64*t}")
        stamp(3)
        for t in range(nk):
            a(f"s_waitcnt vmcnt({4*(nk-1-t)})")
            for tt in range(4):
                for h in range(2):
                    a(f"ds_read_b64_tr_b16 {v(48+16*t+4*tt+2*h,2)}, v10 offset:{lw+t*4096+h*512+tt*8}")
            if t == nk - 1: stamp(4)
            a("s_waitcnt lgkmcnt(0)")
            if t == 0: tags()
            for tt in range(4):
                a(f"v_mfma_f32_16x16x32_bf16 {v(112+4*tt,4)}, {v(48+16*t+4*tt,4)}, {v(32+4*t,4)}, {v(112+4*tt,4) if t else 0}")
        for r in range(4): a(f"v_cndmask_b32 v{112+r}, v{112+r}, v{116+r}, s[52:53]")
        for r in range(4): a(f"v_cndmask_b32 v{120+r}, v{120+r}, v{124+r}, s[52:53]")
        for r in range(4): a(f"v_cndmask_b32 v{112+r}, v{112+r}, v{120+r}, s[54:55]")
        tagins(112)
        a("global_store_dwordx4 v12, v[112:115], s[34:35] sc1")
        stamp(5)
        if prof: a("s_waitcnt vmcnt(0)"); stamp(6)
        poll("L_pq" if q else "L_ph", [f"global_load_dwordx4 {v(16+4*i,4)}, v13, s[34:35] offset:{i*1024-4096} sc1" for i in range(8)], 16, 32, 3)
        stamp(7)
        if prof: a(f"s_sub_u32 s76, {cap}, s56")
        a("v_lshlrev_b32 v14, 3, v1")
        if q:
            for i in range(0, 8, 2): a(f"v_pk_add_f32 {v(16+i,2)}, {v(16+i,2)}, {v(24+i,2)}\nv_pk_add_f32 {v(32+i,2)}, {v(32+i,2)}, {v(40+i,2)}")
            for i in range(0, 8, 2): a(f"v_pk_add_f32 {v(16+i,2)}, {v(16+i,2)}, {v(32+i,2)}")
            for i in range(4): a(f"v_cvt_pk_bf16_f32 v{16+i}, v{16+2*i}, v{17+2*i}")
            a(f"ds_write_b64 v14, v[16:17] offset:{L_QS}\nds_write_b64 v14, v[18:19] offset:{L_QS+512}")
        else:
            for i in range(0, 16, 2): a(f"v_pk_add_f32 {v(16+i,2)}, {v(16+i,2)}, {v(32+i,2)}")
            for i in range(0, 8, 2): a(f"v_pk_add_f32 {v(16+i,2)}, {v(16+i,2)}, {v(24+i,2)}")
            for i in range(0, 4, 2): a(f"v_pk_add_f32 {v(16+i,2)}, {v(16+i,2)}, {v(20+i,2)}")
            for i in range(4): a(f"v_max_f32 v{16+i}, 0, v{16+i}")
            a(f"v_cvt_pk_bf16_f32 v16, v16, v17\nv_cvt_pk_bf16_f32 v17, v18, v19\nds_write_b64 v14, v[16:17] offset:{L_HS}")
        a("s_waitcnt lgkmcnt(0)")
        endwave()
    if hprio: a(f"s_setprio {hprio}")
    a("s_cmp_eq_u32 s3, 1\ns_cbranch_scc1 L_H1")
    hwave(1)
    a("L_H1:\ns_cmp_ge_u32 s10, 28\ns_cbranch_scc1 L_end")
    hwave(0)
    a("L_A:")
    a(f"""s_sub_u32 s3, s3, 2
    s_lshl_b32 s48, s6, 24
    s_lshl_b32 s49, s4, 21
    s_add_u32 s48, s48, s49
    s_lshl_b32 s49, s7, 16
    s_add_u32 s48, s48, s49
    s_add_u32 s48, s48, 0x180000
    s_mul_i32 s50, s2, {rot}
    s_add_u32 s50, s50, s3
    s_lshl_b32 s50, s50, 10
    s_and_b32 s50, s50, 0xffff
    s_mov_b32 s38, 0x10000
    s_mov_b32 s39, 0x20000
    s_mov_b32 s42, 0x10000
    s_mov_b32 s43, 0x20000
    s_mov_b32 s46, {1792*1024}
    s_mov_b32 s47, 0x20000
    v_lshrrev_b32 v3, 4, v1
    v_bfe_u32 v4, v1, 2, 2
    v_and_b32 v5, 3, v1
    v_lshlrev_b32 v6, 4, v5
    v_lshl_add_u32 v6, v3, 6, v6
    v_lshl_add_u32 v6, v4, 8, v6
    v_lshlrev_b32 v7, 4, v1
    s_waitcnt lgkmcnt(0)
    s_load_dword s11, s[34:35], 0
    s_add_u32 s36, s18, s48
    s_addc_u32 s37, s19, 0
    s_add_u32 s40, s20, s48
    s_addc_u32 s41, s21, 0
    s_mov_b32 s44, s30
    s_mov_b32 s45, s31
    s_barrier""")
    stamp(1)
    for i in range(16):
        a(f"buffer_load_dwordx4 {v(16+4*i,4)}, v6, s[36:39], s50 offen {nt}\ns_add_u32 s50, s50, 4096\ns_and_b32 s50, s50, 0xffff")
    stamp(2)
    for i in range(16):
        a(f"buffer_load_dwordx4 {v(80+4*i,4)}, v7, s[40:43], s50 offen {nt}")
        if i < 15: a("s_add_u32 s50, s50, 4096\ns_and_b32 s50, s50, 0xffff")
        a(f"v_mov_b32 v{152+2*i}, 0\nv_mov_b32 v{153+2*i}, 0")
    stamp(3)
    a(f"""v_lshlrev_b32 v8, 8, v5
    v_lshl_add_u32 v8, v3, 6, v8
    v_lshl_add_u32 v8, v4, 4, v8
    v_lshlrev_b32 v9, 3, v5
    s_lshl_b32 s48, s3, 5
    v_add_u32 v10, s48, v9
    s_mov_b32 s57, 0x05040100
    s_mov_b32 s58, 0x07060302
    s_mov_b32 s59, {LOG2E}
    s_barrier
    ds_read_b128 v[192:195], v8 offset:{L_QS}""")
    stamp(4)
    a("s_waitcnt vmcnt(16) lgkmcnt(0)")
    tags()
    def red(i):
        d = 12 + 4 * i; pp, vv, e = i >> 3, (i >> 1) & 3, i & 1; S = 144 + 2 * pp + e
        if vv % 2 == 0:
            a(f"v_add_f32_dpp v{d}, v{d+1}, v{d} row_ror:12 {DPPF}\nv_add_f32_dpp v{d+2}, v{d+3}, v{d+2} row_ror:12 {DPPF}")
        else:
            a(f"v_add_f32_dpp v{d}, v{d}, v{d+1} row_ror:4 {DPPF}\nv_add_f32_dpp v{d+2}, v{d+2}, v{d+3} row_ror:4 {DPPF}")
    def red2(i):
        d = 12 + 4 * i; pp, vv, e = i >> 3, (i >> 1) & 3, i & 1; S = 144 + 2 * pp + e
        x, y = (d + 2, d) if vv < 2 else (d, d + 2)
        a(f"v_add_f32_dpp v{S}, v{x}, v{y} row_ror:8 row_mask:0xf bank_mask:{1<<vv}")
    for i in range(16 + 4):
        if i < 16: a(f"v_mfma_f32_16x16x32_bf16 {v(12+4*i,4)}, {v(16+4*i,4)}, v[192:195], 0")
        if 0 <= i - 3 < 16: red(i - 3)
        if 0 <= i - 4 < 16: red2(i - 4)
    for k in range(4): a(f"v_cvt_pk_bf16_f32 v{144+k}, 0, v{144+k}")
    for k in range(4): a(f"v_mul_f32 v{144+k}, 0x3db504f3, v{144+k}")
    for k in range(4): a(f"v_cvt_pk_bf16_f32 v{144+k}, 0, v{144+k}")
    def allred(op, r, t):
        a(f"""{op}_dpp v{r}, v{r}, v{r} row_ror:8 {DPPF}
        {op}_dpp v{r}, v{r}, v{r} row_ror:4 {DPPF}
        v_mov_b32 v{t}, v{r}
        v_permlane16_swap_b32 v{r}, v{t}
        {op} v{r}, v{r}, v{t}
        v_mov_b32 v{t}, v{r}
        v_permlane32_swap_b32 v{r}, v{t}
        {op} v{r}, v{r}, v{t}""")
    a("v_max3_f32 v148, v144, v145, v146\nv_max_f32 v148, v148, v147")
    allred("v_max_f32", 148, 150)
    for k in range(4): a(f"v_sub_f32 v{144+k}, v{144+k}, v148")
    for k in range(4): a(f"v_mul_f32 v{144+k}, s59, v{144+k}")
    for k in range(4): a(f"v_exp_f32 v{144+k}, v{144+k}")
    a("v_add_f32 v149, v144, v145\nv_add_f32 v150, v146, v147\nv_add_f32 v149, v149, v150")
    allred("v_add_f32", 149, 150)
    a(f"ds_write_b64 v10, v[148:149] offset:{L_ML}")
    a(f"""v_lshrrev_b32 v13, 3, v1
    v_and_b32 v14, 7, v1
    v_lshlrev_b32 v14, 4, v14
    v_lshl_add_u32 v12, v13, 10, v14
    v_and_b32 v15, 3, v13
    v_lshl_add_u32 v11, v15, 17, v14
    v_lshrrev_b32 v13, 2, v13
    v_lshl_add_u32 v11, v13, 13, v11
    s_lshl_b32 s48, s4, 9
    s_and_b32 s49, s3, 1
    s_lshl_b32 s49, s49, 6
    s_add_u32 s48, s48, s49
    s_lshl_b32 s49, s9, 1
    s_add_u32 s48, s48, s49
    s_lshr_b32 s49, s3, 1
    s_add_u32 s48, s48, s49
    s_lshl_b32 s48, s48, 10
    s_lshl_b32 s51, s8, 7
    s_add_u32 s48, s48, s51
    v_add_u32 v11, s48, v11
    s_lshl_b32 s48, s10, 16
    s_add_u32 s51, s51, s48
    s_lshl_b32 s48, s3, 14
    s_add_u32 s51, s51, s48
    s_lshl_b32 s48, s3, 12
    s_add_u32 m0, s48, {L_WO}
    s_waitcnt lgkmcnt(0)
    s_barrier
    ds_read2_b64 v[16:19], v9 offset0:{0} offset1:{4}
    ds_read2_b64 v[20:23], v9 offset0:{8} offset1:{12}""".replace("ds_read2_b64 v[16:19], v9", f"v_add_u32 v9, {L_ML}, v9\nds_read2_b64 v[16:19], v9"))
    stamp(5)
    for j in range(4):
        if j: a("v_add_u32 v11, 0x4000, v11\ns_add_u32 m0, m0, 1024")
        a(f"global_load_lds_dwordx4 v11, s[24:25] {wnt}")
    a(f"s_lshl_b32 s48, s3, 11\ns_add_u32 m0, s48, {L_W2}")
    a(f"buffer_load_dwordx4 v12, s[44:47], s51 offen {wnt} lds\ns_add_u32 m0, m0, 1024\ns_add_u32 s51, s51, 8192\nbuffer_load_dwordx4 v12, s[44:47], s51 offen {wnt} lds")
    a(f"""s_waitcnt lgkmcnt(0)
    v_max3_f32 v24, v16, v18, v20
    v_max_f32 v24, v24, v22
    v_sub_f32 v148, v148, v24
    v_mul_f32 v148, s59, v148
    v_exp_f32 v148, v148""")
    for k in range(4): a(f"v_sub_f32 v{16+2*k}, v{16+2*k}, v24")
    for k in range(4): a(f"v_mul_f32 v{16+2*k}, s59, v{16+2*k}")
    for k in range(4): a(f"v_exp_f32 v{16+2*k}, v{16+2*k}")
    for k in range(4): a(f"v_mul_f32 v{144+k}, v148, v{144+k}")
    a("v_mul_f32 v25, v16, v17\nv_fmac_f32 v25, v18, v19\nv_fmac_f32 v25, v20, v21\nv_fmac_f32 v25, v22, v23")
    a("v_cvt_pk_bf16_f32 v144, v144, v145\nv_cvt_pk_bf16_f32 v145, v146, v147")
    a(f"""s_bitcmp1_b32 s3, 0
    s_cselect_b64 vcc, -1, 0
    s_lshl_b32 s48, s4, 2
    s_add_u32 s48, s48, s6
    s_lshl_b32 s48, s48, 3
    s_add_u32 s48, s48, s7
    s_lshl_b32 s49, s48, 6
    s_lshl_b32 s51, s3, 4
    s_add_u32 s49, s49, s51
    s_add_u32 s49, s49, {ML}
    v_cndmask_b32 v24, v24, v25, vcc
    v_mov_b32 v13, s49""")
    for k in range(4): a(f"v_mov_b32_dpp v{28+k}, v24 quad_perm:[{k},{k},{k},{k}] {DPPF}")
    tagins(28)
    a("s_mov_b64 exec, 1\nglobal_store_dwordx4 v13, v[28:31], s[34:35] sc1\ns_mov_b64 exec, -1")
    for pp in range(2):
        for u in range(4):
            for w in range(4):
                rr = (4 * (u - w)) % 16
                a(f"v_mov_b32_dpp v{152+16*pp+4*u+w}, v{144+pp} {'row_ror:%d' % rr if rr else 'quad_perm:[0,1,2,3]'} row_mask:0xf bank_mask:{1<<u}")
    a(f"""s_lshl_b32 s49, s3, 11
    v_add_u32 v8, s49, v7
    s_lshl_b32 s49, s3, 9
    v_add_u32 v9, s49, v7
    s_lshl_b32 s48, s48, 11
    s_add_u32 s48, s48, {OP}
    v_add_u32 v10, s48, v9""")
    stamp(6)
    NL = 7
    for pp in range(2):
        B = 16 + 32 * pp
        for w in range(4):
            i = 8 * pp + 2 * w
            a(f"s_waitcnt vmcnt({NL + 16 - (i + 2)})")
            if pp == 1 and w == 3: stamp(7)
            for j in range(8):
                a(f"v_perm_b32 v{B+4*j+w}, v{80+4*(i+1)+(j>>1)}, v{80+4*i+(j>>1)}, s{57+(j&1)}")
                if w == 3 and j >= 2:
                    jm = j - 2
                    a(f"v_mfma_f32_16x16x32_bf16 {v(184+4*(jm>>2),4)}, {v(152+16*pp+4*(jm&3),4)}, {v(B+4*jm,4)}, {v(184+4*(jm>>2),4) if (pp or jm&3) else 0}")
        for jm in (6, 7):
            a(f"v_mfma_f32_16x16x32_bf16 {v(184+4*(jm>>2),4)}, {v(152+16*pp+4*(jm&3),4)}, {v(B+4*jm,4)}, {v(184+4*(jm>>2),4)}")
    a(f"""ds_write_b128 v8, v[184:187] offset:{L_OR}
    ds_write_b128 v8, v[188:191] offset:{L_OR+1024}
    s_waitcnt lgkmcnt(0)
    s_barrier
    s_mov_b32 exec_hi, 0""")
    for k in range(4): a(f"ds_read_b128 {v(80+4*k,4)}, v9 offset:{L_OR+2048*k}")
    a("""s_waitcnt lgkmcnt(2)
    v_pk_add_f32 v[80:81], v[80:81], v[84:85]
    v_pk_add_f32 v[82:83], v[82:83], v[86:87]
    s_waitcnt lgkmcnt(0)
    v_pk_add_f32 v[88:89], v[88:89], v[92:93]
    v_pk_add_f32 v[90:91], v[90:91], v[94:95]
    v_pk_add_f32 v[80:81], v[80:81], v[88:89]
    v_pk_add_f32 v[82:83], v[82:83], v[90:91]""".replace("lgkmcnt(2)", "lgkmcnt(0)" if prof else "lgkmcnt(2)"))
    tagins(80)
    a("global_store_dwordx4 v10, v[80:83], s[34:35] sc1\ns_mov_b32 exec_hi, -1")
    stamp(8)
    a(f"""v_lshl_add_u32 v8, v3, 3, v4
    v_lshlrev_b32 v8, 7, v8
    v_lshl_add_u32 v8, v5, 3, v8
    s_lshl_b32 s48, s3, 5
    v_add_u32 v8, s48, v8
    v_lshlrev_b32 v10, 4, v3
    v_lshl_add_u32 v9, v5, 8, v10
    v_lshl_add_u32 v10, v5, 7, v10
    v_lshrrev_b32 v6, 5, v1
    v_lshl_add_u32 v11, v6, 2, v1
    v_and_b32 v11, 7, v11
    v_lshlrev_b32 v11, 6, v11
    s_lshl_b32 s48, s4, 2
    s_add_u32 s48, s48, s3
    s_lshl_b32 s49, s48, 9
    s_add_u32 s49, s49, {ML}
    v_add_u32 v11, s49, v11
    v_and_b32 v13, 31, v1
    v_lshlrev_b32 v12, 4, v13
    v_lshl_add_u32 v12, v6, 13, v12
    s_lshl_b32 s48, s48, 14
    s_lshl_b32 s49, s9, 9
    s_add_u32 s48, s48, s49
    s_add_u32 s48, s48, {OP+4096}
    v_add_u32 v12, s48, v12
    v_lshlrev_b32 v13, 3, v13
    v_lshl_add_u32 v13, v6, 2, v13
    s_lshl_b32 s49, s3, 8
    v_add_u32 v13, s49, v13
    s_lshl_b32 s48, s8, 15
    s_add_u32 s48, s48, s49
    s_lshl_b32 s49, s10, 10
    s_add_u32 s48, s48, s49
    s_add_u32 s48, s48, {SP}
    v_add_u32 v14, s48, v7
    v_add_u32 v15, {YP-SP}, v14
    s_waitcnt vmcnt(2)
    s_barrier""")
    stamp(9)
    for t in range(4):
        for h in range(2): a(f"ds_read_b64_tr_b16 {v(16+4*t+2*h,2)}, v8 offset:{L_WO+t*4096+h*512}")
    a("s_cmp_ge_u32 s10, 28\ns_cbranch_scc1 L_noy")
    for t in range(2):
        for h in range(2): a(f"ds_read_b64_tr_b16 {v(32+4*t+2*h,2)}, v8 offset:{L_W2+t*4096+h*512}")
        a(f"ds_read_b128 {v(40+4*t,4)}, v10 offset:{L_HS+64*t}")
    a("""s_waitcnt lgkmcnt(0)
    v_mfma_f32_16x16x32_bf16 v[48:51], v[40:43], v[32:35], 0
    v_mfma_f32_16x16x32_bf16 v[48:51], v[44:47], v[36:39], v[48:51]""")
    tagins(48)
    a("s_mov_b64 exec, 0xffff\nglobal_store_dwordx4 v15, v[48:51], s[34:35] sc1\ns_mov_b64 exec, -1\nL_noy:")
    poll("L_pml", ["global_load_dwordx4 v[56:59], v11, s[34:35] sc1", "global_load_dwordx4 v[60:63], v11, s[34:35] offset:16 sc1"], 56, 8, 6)
    stamp(10)
    for k in range(4): a(f"v_and_b32 v{56+k}, 0xffff0000, v{56+k}")
    for k in range(4): a(f"v_max_f32_dpp v{64+k}, v{56+k}, v{56+k} row_ror:4 {DPPF}")
    for s in (2, 1):
        for k in range(4): a(f"v_max_f32_dpp v{64+k}, v{64+k}, v{64+k} row_ror:{s} {DPPF}")
    for k in range(4): a(f"v_sub_f32 v{56+k}, v{56+k}, v{64+k}")
    for k in range(4): a(f"v_mul_f32 v{56+k}, s59, v{56+k}")
    for k in range(4): a(f"v_exp_f32 v{56+k}, v{56+k}")
    for k in range(4): a(f"v_mul_f32 v{60+k}, v{56+k}, v{60+k}")
    for s in (4, 2, 1):
        for k in range(4): a(f"v_add_f32_dpp v{60+k}, v{60+k}, v{60+k} row_ror:{s} {DPPF}")
    for k in range(4): a(f"v_rcp_f32 v{60+k}, v{60+k}")
    for k in range(4): a(f"v_mul_f32 v{56+k}, v{56+k}, v{60+k}")
    poll("L_po", [f"global_load_dwordx4 {v(64+4*t,4)}, v12, s[34:35] offset:{t*2048-4096} sc1" for t in range(4)], 64, 16, 6)
    stamp(11)
    if prof: a(f"s_sub_u32 s90, {cap}, s56")
    for t in range(4):
        for k in range(4):
            a(f"{'v_fmac_f32_dpp' if t else 'v_mul_f32_dpp'} v{60+k}, v{56+k}, v{64+4*t+k} row_newbcast:{t} {DPPF}")
    a(f"""v_permlane32_swap_b32 v60, v62
    v_permlane32_swap_b32 v61, v63
    v_add_f32 v60, v60, v62
    v_add_f32 v61, v61, v63
    v_cvt_pk_bf16_f32 v60, v60, v61
    ds_write_b32 v13, v60 offset:{L_OS}
    s_waitcnt lgkmcnt(0)
    s_barrier""")
    for t in range(4): a(f"ds_read_b128 {v(64+4*t,4)}, v9 offset:{L_OS+64*t}")
    for t in range(4):
        a(f"s_waitcnt lgkmcnt({0 if prof else 3-t})")
        a(f"v_mfma_f32_16x16x32_bf16 v[48:51], {v(64+4*t,4)}, {v(16+4*t,4)}, {'v[48:51]' if t else 0}")
    tagins(48)
    a("s_mov_b64 exec, 0xffff\nglobal_store_dwordx4 v14, v[48:51], s[34:35] sc1\ns_mov_b64 exec, -1")
    stamp(12)
    a("s_cmp_lg_u32 s3, 0\ns_cbranch_scc1 " + ("L_prof" if prof else "L_end"))
    a(f"""v_lshrrev_b32 v8, 1, v1
    v_and_b32 v9, 1, v1
    v_lshlrev_b32 v8, 10, v8
    v_lshl_add_u32 v8, v9, 4, v8
    s_lshl_b32 s48, s4, 15
    s_lshl_b32 s49, s5, 5
    s_add_u32 s48, s48, s49
    s_add_u32 s48, s48, {SP}
    v_add_u32 v8, s48, v8
    v_add_u32 v10, {YP-SP}, v8
    v_lshlrev_b32 v9, 1, v9
    v_lshl_add_u32 v9, v3, 10, v9
    s_lshl_b32 s48, s4, 7
    s_lshl_b32 s49, s5, 2
    s_add_u32 s48, s48, s49
    v_add_u32 v9, s48, v9
    global_load_ushort v11, v9, s[16:17]
    v_mov_b32 v16, 0
    v_mov_b32 v17, 0
    v_mov_b32 v18, 0
    v_mov_b32 v19, 0
    s_mov_b32 exec_hi, 0xffffff""")
    poll("L_py", ["global_load_dwordx4 v[16:19], v10, s[34:35] sc1"], 16, 4, 6)
    a("s_mov_b32 exec_hi, -1")
    def fred(r):
        a(f"""v_permlane32_swap_b32 v{r}, v{r+2}
        v_permlane32_swap_b32 v{r+1}, v{r+3}
        v_add_f32 v{r}, v{r}, v{r+2}
        v_add_f32 v{r+1}, v{r+1}, v{r+3}
        v_permlane16_swap_b32 v{r}, v{r+1}
        v_add_f32 v{r}, v{r}, v{r+1}""")
        for s in (8, 4, 2): a(f"v_add_f32_dpp v{r}, v{r}, v{r} row_ror:{s} {DPPF}")
        a(f"v_cvt_pk_bf16_f32 v{r}, 0, v{r}")
    fred(16)
    a(f"""v_mul_f32 v17, 0xbfb8aa3b, v16
    v_exp_f32 v17, v17
    v_lshlrev_b32 v11, 16, v11
    v_add_f32 v17, 1.0, v17
    v_rcp_f32 v17, v17
    s_add_u32 s11, s11, 1
    v_mul_f32 v16, v16, v17
    v_cvt_pk_bf16_f32 v16, 0, v16""")
    stamp(13)
    poll("L_ps", ["global_load_dwordx4 v[20:23], v8, s[34:35] sc1"], 20, 4, 6)
    stamp(14)
    fred(20)
    a(f"""v_mul_f32 v20, v20, v16
    v_cvt_pk_bf16_f32 v20, 0, v20
    v_add_f32 v20, v20, v11
    v_cvt_pk_bf16_f32 v20, v20, v20
    s_mov_b32 exec_lo, 0x00030003
    s_mov_b32 exec_hi, 0x00030003
    global_store_short v9, v20, s[32:33]
    s_cmp_lg_u32 s2, 0
    s_cbranch_scc1 {"L_prof" if prof else "L_end"}
    s_mov_b64 exec, 1
    v_mov_b32 v8, 0
    v_mov_b32 v10, s11
    global_store_dword v8, v10, s[34:35]""")
    if prof:
        a("L_prof:\ns_mov_b64 exec, -1\ns_memrealtime s[92:93]\ns_getreg_b32 s94, hwreg(HW_REG_XCC_ID)\ns_getreg_b32 s96, hwreg(HW_REG_HW_ID)\ns_waitcnt lgkmcnt(0)")
        for i in range(19): a(f"v_writelane_b32 v3, s{60+2*i}, {i}")
        a(f"""v_lshrrev_b32 v4, 6, v0
        s_mul_i32 s48, s2, 6
        v_add_u32 v4, s48, v4
        v_lshlrev_b32 v4, 7, v4
        v_lshl_add_u32 v4, v1, 2, v4
        v_add_u32 v4, {PROF}, v4
        s_mov_b64 exec, 0x7ffff
        global_store_dword v4, v3, s[34:35]""")
    a("L_end:\ns_endpgm")
    head = [l for l in open(REF).read().split("\n") if l.startswith(";") and "@launch" not in l]
    txt = "\n".join(head) + f"\n; @launch grid=(256,1,1) block=(384,1,1) lds=65536\n"
    txt += f'.amdgcn_target "amdgcn-amd-amdhsa--gfx950"\n.text\n.globl {NAME}_kernel\n.p2align 8\n.type {NAME}_kernel,@function\n'
    txt += a.text()
    txt += f'''.section .rodata,"a"
.p2align 6
.amdhsa_kernel {NAME}_kernel
  .amdhsa_next_free_vgpr 200
  .amdhsa_next_free_sgpr 100
  .amdhsa_accum_offset 200
  .amdhsa_group_segment_fixed_size 0
  .amdhsa_kernarg_size 88
  .amdhsa_user_sgpr_count 2
  .amdhsa_user_sgpr_kernarg_segment_ptr 1
  .amdhsa_system_sgpr_workgroup_id_x 1
  .amdhsa_float_denorm_mode_32 3
.end_amdhsa_kernel
'''
    return txt
if __name__ == "__main__":
    out = sys.argv[1]; kw = {}
    for x in sys.argv[2:]:
        k, val = x.split("=")
        try: val = int(val, 0)
        except ValueError: pass
        kw[k] = val
    open(out, "w").write(gen(**kw))
```

```python
import sys
from asmlib import Asm
NAME = "recurrent_scan__sliding_block_cached__dense_activation_relu__decode"
REF = "cdna_kernels/" + NAME + ".s.ref"
QP, HP, OP, SP, YP, ML, PROF = 0x10000, 0x50000, 0x90000, 0x110000, 0x150000, 0x190000, 0x400000
L_WQ, L_W1, L_WO, L_W2, L_OR = 0, 16384, 24576, 40960, 49152
L_XS0, L_XS1, L_QS, L_HS, L_OS, L_ML = 57344, 58368, 59392, 60416, 60928, 61952
TAGM = 0x3FF
LOG2E = "0x3fb8aa3b"
DPPF = "row_mask:0xf bank_mask:0xf"
def v(a, n=1): return f"v{a}" if n == 1 else f"v[{a}:{a+n-1}]"

def gen(prof=0, diag=None, nt="nt", wnt="nt", rot=9, hprio=3, cap=1 << 18, **kw):
    a = Asm()
    if diag is not None: prof = 2; drole, didx = diag[0], int(diag[1:])
    def stamp(i):
        if prof == 1 or (prof == 2 and i in (0, didx)): a(f"s_memrealtime s[{60+2*i}:{61+2*i}]")
    def endwave():
        if prof == 2 and drole == "H":
            a(f"v_mov_b32 v3, s{60+2*didx}\nv_lshrrev_b32 v4, 4, v0\nv_and_b32 v4, 4, v4\nds_write_b32 v4, v3 offset:{L_ML+256}\ns_waitcnt lgkmcnt(0)")
        a("s_branch L_prof" if prof == 1 else "s_endpgm")
    def tags():
        a(f"""s_add_u32 s12, s11, 1
        s_add_u32 s13, s11, 0x156
        s_add_u32 s14, s11, 0x2ab
        s_add_u32 s15, s11, 0xc4""")
    def tagins(r):
        for k in range(4): a(f"v_bfi_b32 v{r+k}, v2, s{12+k}, v{r+k}")
    def poll(name, loads, r0, n, acc):
        a(f"s_mov_b32 s56, {cap}\n{name}:")
        for l in loads: a(l)
        a("s_waitcnt vmcnt(0)")
        a(f"v_xor_b32 v{acc}, s12, v{r0}")
        for i in range(1, n): a(f"v_bitop3_b32 v{acc}, v{r0+i}, s{12+i%4}, v{acc} bitop3:0xbe")
        a(f"""v_and_b32 v{acc}, v2, v{acc}
        v_cmp_ne_u32 vcc, 0, v{acc}
        s_sub_u32 s56, s56, 1
        s_cbranch_scc1 L_end
        s_cbranch_vccnz {name}""")
    a(f"{NAME}_kernel:")
    stamp(0)
    a("""s_cmp_ge_u32 s2, 256
    s_cbranch_scc1 L_end
    s_load_dwordx16 s[16:31], s[0:1], 0
    s_load_dwordx2 s[34:35], s[0:1], 80
    s_load_dwordx2 s[32:33], s[0:1], 64
    v_lshrrev_b32 v3, 6, v0
    v_and_b32 v1, 63, v0
    v_readfirstlane_b32 s3, v3
    s_and_b32 s4, s2, 7
    s_lshr_b32 s5, s2, 3
    s_and_b32 s6, s5, 3
    s_lshr_b32 s7, s5, 2
    s_and_b32 s8, s5, 7
    s_lshr_b32 s9, s5, 3
    s_lshl_b32 s10, s4, 2
    s_add_u32 s10, s10, s9""")
    a(f"v_mov_b32 v2, {TAGM}")
    a("""s_cmp_ge_u32 s3, 2
    s_cbranch_scc1 L_A""")
    def hwave(q):
        nk = 4 if q else 2
        lw = L_WQ if q else L_W1; xs = L_XS0 if q else L_XS1
        rs = 8192 if q else 3584
        wb = "s[22:23]" if q else "s[28:29]"
        a("""v_lshrrev_b32 v3, 4, v1
        v_and_b32 v4, 15, v1
        v_lshlrev_b32 v4, 4, v4
        v_lshl_add_u32 v3, v3, 10, v4""")
        if q: a("s_mov_b32 s48, s9")
        else: a("s_lshr_b32 s48, s8, 1")
        for i in range(4):
            a(f"s_add_u32 s49, s48, {i}\ns_and_b32 s49, s49, 3\ns_lshl_b32 s49, s49, 8\nv_add_u32 v{4+i}, s49, v3")
        if q: a("s_lshl_b32 s49, s9, 20\ns_lshl_b32 s50, s4, 10\ns_add_u32 s49, s49, s50\ns_lshl_b32 s50, s8, 7\ns_add_u32 s49, s49, s50")
        else: a(f"s_mul_i32 s49, s8, {64*3584}\ns_lshl_b32 s50, s10, 7\ns_add_u32 s49, s49, s50")
        a(f"""v_lshrrev_b32 v8, 3, v1
        v_mul_u32_u24 v8, {rs}, v8
        v_and_b32 v9, 7, v1
        v_lshl_add_u32 v8, v9, 4, v8
        v_add_u32 v8, s49, v8
        s_mov_b32 m0, {lw}
        s_waitcnt lgkmcnt(0)
        s_load_dword s11, s[34:35], 0""")
        for i in range(4): a(f"global_load_dwordx4 {v(16+4*i,4)}, v{4+i}, s[16:17]")
        for j in range(4 * nk):
            if j: a(f"v_add_u32 v8, {8*rs}, v8\ns_add_u32 m0, m0, 1024")
            a(f"global_load_lds_dwordx4 v8, {wb} {wnt}")
        a("s_barrier")
        stamp(1)
        a(f"""v_lshrrev_b32 v3, 4, v1
        v_bfe_u32 v4, v1, 2, 2
        v_and_b32 v5, 3, v1
        v_lshl_add_u32 v10, v3, 3, v4
        v_lshlrev_b32 v10, 7, v10
        v_lshl_add_u32 v10, v5, 5, v10
        v_lshlrev_b32 v11, 4, v3
        v_lshl_add_u32 v11, v4, 8, v11
        v_lshlrev_b32 v12, 6, v3
        v_lshl_add_u32 v12, v5, 4, v12
        v_lshl_add_u32 v12, v4, {13 if q else 8}, v12
        v_lshlrev_b32 v14, 4, v1
        s_mov_b32 s52, 0xaaaaaaaa
        s_mov_b32 s53, 0xaaaaaaaa
        s_mov_b32 s54, 0xcccccccc
        s_mov_b32 s55, 0xcccccccc
        s_mov_b32 s59, 0x3f803f80""")
        if q:
            a(f"""s_lshl_b32 s49, s4, 15
            s_lshl_b32 s50, s9, 11
            s_add_u32 s50, s50, s49
            s_lshl_b32 s51, s8, 8
            s_add_u32 s50, s50, s51
            s_add_u32 s50, s50, {QP}
            s_lshl_b32 s51, s6, 13
            s_add_u32 s49, s49, s51
            s_add_u32 s49, s49, {QP+4096}""")
        else:
            a(f"""s_and_b32 s49, s8, 1
            s_lshl_b32 s49, s49, 7
            v_add_u32 v11, s49, v11
            s_lshl_b32 s49, s10, 13
            s_lshl_b32 s50, s8, 10
            s_add_u32 s50, s50, s49
            s_add_u32 s50, s50, {HP}
            s_add_u32 s49, s49, {HP+4096}""")
        a("v_add_u32 v12, s50, v12\nv_add_u32 v13, s49, v14")
        a(f"s_waitcnt vmcnt({4*nk})")
        stamp(2)
        a("v_dot2_f32_bf16 v4, v16, s59, 0\nv_dot2_f32_bf16 v5, v16, v16, 0")
        for i in range(1, 16): a(f"v_dot2_f32_bf16 v4, v{16+i}, s59, v4\nv_dot2_f32_bf16 v5, v{16+i}, v{16+i}, v5")
        for s in (8, 4, 2, 1): a(f"v_add_f32_dpp v4, v4, v4 row_ror:{s} {DPPF}\nv_add_f32_dpp v5, v5, v5 row_ror:{s} {DPPF}")
        a("""v_mul_f32 v4, 0x3b000000, v4
        v_mul_f32 v5, 0x3b000000, v5
        v_fma_f32 v5, -v4, v4, v5
        v_max_f32 v5, 0, v5
        v_cvt_pk_bf16_f32 v5, 0, v5
        v_add_f32 v5, 0x3727c5ac, v5
        v_cvt_pk_bf16_f32 v5, 0, v5
        v_sqrt_f32 v5, v5
        v_cvt_pk_bf16_f32 v4, 0, v4
        v_cvt_pk_bf16_f32 v5, 0, v5
        v_rcp_f32 v5, v5""")
        for i in range(4):
            a(f"""v_lshlrev_b32 v6, 16, v{16+i}
            v_and_b32 v7, 0xffff0000, v{16+i}
            v_sub_f32 v6, v6, v4
            v_sub_f32 v7, v7, v4
            v_cvt_pk_bf16_f32 v6, 0, v6
            v_cvt_pk_bf16_f32 v7, 0, v7
            v_mul_f32 v6, v6, v5
            v_mul_f32 v7, v7, v5
            v_cvt_pk_bf16_f32 v{16+i}, v6, v7""")
        a(f"ds_write_b128 v14, v[16:19] offset:{xs}")
        for t in range(nk): a(f"ds_read_b128 {v(32+4*t,4)}, v11 offset:{xs+64*t}")
        stamp(3)
        for t in range(nk):
            a(f"s_waitcnt vmcnt({4*(nk-1-t)})")
            for tt in range(4):
                for h in range(2):
                    a(f"ds_read_b64_tr_b16 {v(48+16*t+4*tt+2*h,2)}, v10 offset:{lw+t*4096+h*512+tt*8}")
            if t == nk - 1: stamp(4)
            a("s_waitcnt lgkmcnt(0)")
            if t == 0: tags()
            for tt in range(4):
                a(f"v_mfma_f32_16x16x32_bf16 {v(112+4*tt,4)}, {v(48+16*t+4*tt,4)}, {v(32+4*t,4)}, {v(112+4*tt,4) if t else 0}")
        for r in range(4): a(f"v_cndmask_b32 v{112+r}, v{112+r}, v{116+r}, s[52:53]")
        for r in range(4): a(f"v_cndmask_b32 v{120+r}, v{120+r}, v{124+r}, s[52:53]")
        for r in range(4): a(f"v_cndmask_b32 v{112+r}, v{112+r}, v{120+r}, s[54:55]")
        tagins(112)
        a("global_store_dwordx4 v12, v[112:115], s[34:35] sc1")
        stamp(5)
        if prof == 1 and kw.get("pubwait"): a("s_waitcnt vmcnt(0)")
        stamp(6)
        poll("L_pq" if q else "L_ph", [f"global_load_dwordx4 {v(16+4*i,4)}, v13, s[34:35] offset:{i*1024-4096} sc1" for i in range(8)], 16, 32, 3)
        stamp(7)
        if prof: a(f"s_sub_u32 s76, {cap}, s56")
        a("v_lshlrev_b32 v14, 3, v1")
        if q:
            for i in range(0, 8, 2): a(f"v_pk_add_f32 {v(16+i,2)}, {v(16+i,2)}, {v(24+i,2)}\nv_pk_add_f32 {v(32+i,2)}, {v(32+i,2)}, {v(40+i,2)}")
            for i in range(0, 8, 2): a(f"v_pk_add_f32 {v(16+i,2)}, {v(16+i,2)}, {v(32+i,2)}")
            for i in range(4): a(f"v_cvt_pk_bf16_f32 v{16+i}, v{16+2*i}, v{17+2*i}")
            a(f"ds_write_b64 v14, v[16:17] offset:{L_QS}\nds_write_b64 v14, v[18:19] offset:{L_QS+512}")
        else:
            for i in range(0, 16, 2): a(f"v_pk_add_f32 {v(16+i,2)}, {v(16+i,2)}, {v(32+i,2)}")
            for i in range(0, 8, 2): a(f"v_pk_add_f32 {v(16+i,2)}, {v(16+i,2)}, {v(24+i,2)}")
            for i in range(0, 4, 2): a(f"v_pk_add_f32 {v(16+i,2)}, {v(16+i,2)}, {v(20+i,2)}")
            for i in range(4): a(f"v_max_f32 v{16+i}, 0, v{16+i}")
            a(f"v_cvt_pk_bf16_f32 v16, v16, v17\nv_cvt_pk_bf16_f32 v17, v18, v19\nds_write_b64 v14, v[16:17] offset:{L_HS}")
        a("s_waitcnt lgkmcnt(0)")
        endwave()
    if hprio: a(f"s_setprio {hprio}")
    a("s_cmp_eq_u32 s3, 1\ns_cbranch_scc1 L_H1")
    hwave(1)
    a("L_H1:\ns_cmp_ge_u32 s10, 28\ns_cbranch_scc1 L_end")
    hwave(0)
    a("L_A:")
    a(f"""s_sub_u32 s3, s3, 2
    s_lshl_b32 s48, s6, 24
    s_lshl_b32 s49, s4, 21
    s_add_u32 s48, s48, s49
    s_lshl_b32 s49, s7, 16
    s_add_u32 s48, s48, s49
    s_add_u32 s48, s48, 0x180000
    s_mul_i32 s50, s2, {rot}
    s_add_u32 s50, s50, s3
    s_lshl_b32 s50, s50, 10
    s_and_b32 s50, s50, 0xffff
    s_mov_b32 s38, 0x10000
    s_mov_b32 s39, 0x20000
    s_mov_b32 s42, 0x10000
    s_mov_b32 s43, 0x20000
    s_mov_b32 s46, {1792*1024}
    s_mov_b32 s47, 0x20000
    v_lshrrev_b32 v3, 4, v1
    v_bfe_u32 v4, v1, 2, 2
    v_and_b32 v5, 3, v1
    v_lshlrev_b32 v6, 4, v5
    v_lshl_add_u32 v6, v3, 6, v6
    v_lshl_add_u32 v6, v4, 8, v6
    v_lshlrev_b32 v7, 4, v1
    s_waitcnt lgkmcnt(0)
    s_load_dword s11, s[34:35], 0
    s_add_u32 s36, s18, s48
    s_addc_u32 s37, s19, 0
    s_add_u32 s40, s20, s48
    s_addc_u32 s41, s21, 0
    s_mov_b32 s44, s30
    s_mov_b32 s45, s31
    s_barrier""")
    stamp(1)
    for i in range(16):
        a(f"buffer_load_dwordx4 {v(16+4*i,4)}, v6, s[36:39], s50 offen {nt}\ns_add_u32 s50, s50, 4096\ns_and_b32 s50, s50, 0xffff")
    stamp(2)
    for i in range(16):
        a(f"buffer_load_dwordx4 {v(80+4*i,4)}, v7, s[40:43], s50 offen {nt}")
        if i < 15: a("s_add_u32 s50, s50, 4096\ns_and_b32 s50, s50, 0xffff")
        a(f"v_mov_b32 v{152+2*i}, 0\nv_mov_b32 v{153+2*i}, 0")
    stamp(3)
    a(f"""v_lshlrev_b32 v8, 8, v5
    v_lshl_add_u32 v8, v3, 6, v8
    v_lshl_add_u32 v8, v4, 4, v8
    v_lshlrev_b32 v9, 3, v5
    s_lshl_b32 s48, s3, 5
    v_add_u32 v10, s48, v9
    s_mov_b32 s57, 0x05040100
    s_mov_b32 s58, 0x07060302
    s_mov_b32 s59, {LOG2E}
    s_barrier
    ds_read_b128 v[192:195], v8 offset:{L_QS}""")
    stamp(4)
    a("s_waitcnt vmcnt(16) lgkmcnt(0)")
    tags()
    def red(i):
        d = 12 + 4 * i; pp, vv, e = i >> 3, (i >> 1) & 3, i & 1; S = 144 + 2 * pp + e
        if vv % 2 == 0:
            a(f"v_add_f32_dpp v{d}, v{d+1}, v{d} row_ror:12 {DPPF}\nv_add_f32_dpp v{d+2}, v{d+3}, v{d+2} row_ror:12 {DPPF}")
        else:
            a(f"v_add_f32_dpp v{d}, v{d}, v{d+1} row_ror:4 {DPPF}\nv_add_f32_dpp v{d+2}, v{d+2}, v{d+3} row_ror:4 {DPPF}")
    def red2(i):
        d = 12 + 4 * i; pp, vv, e = i >> 3, (i >> 1) & 3, i & 1; S = 144 + 2 * pp + e
        x, y = (d + 2, d) if vv < 2 else (d, d + 2)
        a(f"v_add_f32_dpp v{S}, v{x}, v{y} row_ror:8 row_mask:0xf bank_mask:{1<<vv}")
    for i in range(16 + 4):
        if i < 16: a(f"v_mfma_f32_16x16x32_bf16 {v(12+4*i,4)}, {v(16+4*i,4)}, v[192:195], 0")
        if 0 <= i - 3 < 16: red(i - 3)
        if 0 <= i - 4 < 16: red2(i - 4)
    for k in range(4): a(f"v_cvt_pk_bf16_f32 v{144+k}, 0, v{144+k}")
    for k in range(4): a(f"v_mul_f32 v{144+k}, 0x3db504f3, v{144+k}")
    for k in range(4): a(f"v_cvt_pk_bf16_f32 v{144+k}, 0, v{144+k}")
    def allred(op, r, t):
        a(f"""{op}_dpp v{r}, v{r}, v{r} row_ror:8 {DPPF}
        {op}_dpp v{r}, v{r}, v{r} row_ror:4 {DPPF}
        v_mov_b32 v{t}, v{r}
        v_permlane16_swap_b32 v{r}, v{t}
        {op} v{r}, v{r}, v{t}
        v_mov_b32 v{t}, v{r}
        v_permlane32_swap_b32 v{r}, v{t}
        {op} v{r}, v{r}, v{t}""")
    a("v_max3_f32 v148, v144, v145, v146\nv_max_f32 v148, v148, v147")
    allred("v_max_f32", 148, 150)
    for k in range(4): a(f"v_sub_f32 v{144+k}, v{144+k}, v148")
    for k in range(4): a(f"v_mul_f32 v{144+k}, s59, v{144+k}")
    for k in range(4): a(f"v_exp_f32 v{144+k}, v{144+k}")
    a("v_add_f32 v149, v144, v145\nv_add_f32 v150, v146, v147\nv_add_f32 v149, v149, v150")
    allred("v_add_f32", 149, 150)
    a(f"ds_write_b64 v10, v[148:149] offset:{L_ML}")
    a(f"""v_lshrrev_b32 v13, 3, v1
    v_and_b32 v14, 7, v1
    v_lshlrev_b32 v14, 4, v14
    v_lshl_add_u32 v12, v13, 10, v14
    v_and_b32 v15, 3, v13
    v_lshl_add_u32 v11, v15, 17, v14
    v_lshrrev_b32 v13, 2, v13
    v_lshl_add_u32 v11, v13, 13, v11
    s_lshl_b32 s48, s4, 9
    s_and_b32 s49, s3, 1
    s_lshl_b32 s49, s49, 6
    s_add_u32 s48, s48, s49
    s_lshl_b32 s49, s9, 1
    s_add_u32 s48, s48, s49
    s_lshr_b32 s49, s3, 1
    s_add_u32 s48, s48, s49
    s_lshl_b32 s48, s48, 10
    s_lshl_b32 s51, s8, 7
    s_add_u32 s48, s48, s51
    v_add_u32 v11, s48, v11
    s_lshl_b32 s48, s10, 16
    s_add_u32 s51, s51, s48
    s_lshl_b32 s48, s3, 14
    s_add_u32 s51, s51, s48
    s_lshl_b32 s48, s3, 12
    s_add_u32 m0, s48, {L_WO}
    s_waitcnt lgkmcnt(0)
    s_barrier
    ds_read2_b64 v[16:19], v9 offset0:{0} offset1:{4}
    ds_read2_b64 v[20:23], v9 offset0:{8} offset1:{12}""".replace("ds_read2_b64 v[16:19], v9", f"v_add_u32 v9, {L_ML}, v9\nds_read2_b64 v[16:19], v9"))
    stamp(5)
    for j in range(4):
        if j: a("v_add_u32 v11, 0x4000, v11\ns_add_u32 m0, m0, 1024")
        a(f"global_load_lds_dwordx4 v11, s[24:25] {wnt}")
    a(f"s_lshl_b32 s48, s3, 11\ns_add_u32 m0, s48, {L_W2}")
    a(f"buffer_load_dwordx4 v12, s[44:47], s51 offen {wnt} lds\ns_add_u32 m0, m0, 1024\ns_add_u32 s51, s51, 8192\nbuffer_load_dwordx4 v12, s[44:47], s51 offen {wnt} lds")
    a(f"""s_waitcnt lgkmcnt(0)
    v_max3_f32 v24, v16, v18, v20
    v_max_f32 v24, v24, v22
    v_sub_f32 v148, v148, v24
    v_mul_f32 v148, s59, v148
    v_exp_f32 v148, v148""")
    for k in range(4): a(f"v_sub_f32 v{16+2*k}, v{16+2*k}, v24")
    for k in range(4): a(f"v_mul_f32 v{16+2*k}, s59, v{16+2*k}")
    for k in range(4): a(f"v_exp_f32 v{16+2*k}, v{16+2*k}")
    for k in range(4): a(f"v_mul_f32 v{144+k}, v148, v{144+k}")
    a("v_mul_f32 v25, v16, v17\nv_fmac_f32 v25, v18, v19\nv_fmac_f32 v25, v20, v21\nv_fmac_f32 v25, v22, v23")
    a("v_cvt_pk_bf16_f32 v144, v144, v145\nv_cvt_pk_bf16_f32 v145, v146, v147")
    a(f"""s_bitcmp1_b32 s3, 0
    s_cselect_b64 vcc, -1, 0
    s_lshl_b32 s48, s4, 2
    s_add_u32 s48, s48, s6
    s_lshl_b32 s48, s48, 3
    s_add_u32 s48, s48, s7
    s_lshl_b32 s49, s48, 6
    s_lshl_b32 s51, s3, 4
    s_add_u32 s49, s49, s51
    s_add_u32 s49, s49, {ML}
    v_cndmask_b32 v24, v24, v25, vcc
    v_mov_b32 v13, s49""")
    for k in range(4): a(f"v_mov_b32_dpp v{28+k}, v24 quad_perm:[{k},{k},{k},{k}] {DPPF}")
    tagins(28)
    a("s_mov_b64 exec, 1\nglobal_store_dwordx4 v13, v[28:31], s[34:35] sc1\ns_mov_b64 exec, -1")
    for pp in range(2):
        for u in range(4):
            for w in range(4):
                rr = (4 * (u - w)) % 16
                a(f"v_mov_b32_dpp v{152+16*pp+4*u+w}, v{144+pp} {'row_ror:%d' % rr if rr else 'quad_perm:[0,1,2,3]'} row_mask:0xf bank_mask:{1<<u}")
    a(f"""s_lshl_b32 s49, s3, 11
    v_add_u32 v8, s49, v7
    s_lshl_b32 s49, s3, 9
    v_add_u32 v9, s49, v7
    s_lshl_b32 s48, s48, 11
    s_add_u32 s48, s48, {OP}
    v_add_u32 v10, s48, v9""")
    stamp(6)
    NL = 7
    for pp in range(2):
        B = 16 + 32 * pp
        for w in range(4):
            i = 8 * pp + 2 * w
            a(f"s_waitcnt vmcnt({NL + 16 - (i + 2)})")
            if pp == 1 and w == 3: stamp(7)
            for j in range(8):
                a(f"v_perm_b32 v{B+4*j+w}, v{80+4*(i+1)+(j>>1)}, v{80+4*i+(j>>1)}, s{57+(j&1)}")
                if w == 3 and j >= 2:
                    jm = j - 2
                    a(f"v_mfma_f32_16x16x32_bf16 {v(184+4*(jm>>2),4)}, {v(152+16*pp+4*(jm&3),4)}, {v(B+4*jm,4)}, {v(184+4*(jm>>2),4) if (pp or jm&3) else 0}")
        for jm in (6, 7):
            a(f"v_mfma_f32_16x16x32_bf16 {v(184+4*(jm>>2),4)}, {v(152+16*pp+4*(jm&3),4)}, {v(B+4*jm,4)}, {v(184+4*(jm>>2),4)}")
    a(f"""ds_write_b128 v8, v[184:187] offset:{L_OR}
    ds_write_b128 v8, v[188:191] offset:{L_OR+1024}
    s_waitcnt lgkmcnt(0)
    s_barrier
    s_mov_b32 exec_hi, 0""")
    for k in range(4): a(f"ds_read_b128 {v(80+4*k,4)}, v9 offset:{L_OR+2048*k}")
    a("""s_waitcnt lgkmcnt(2)
    v_pk_add_f32 v[80:81], v[80:81], v[84:85]
    v_pk_add_f32 v[82:83], v[82:83], v[86:87]
    s_waitcnt lgkmcnt(0)
    v_pk_add_f32 v[88:89], v[88:89], v[92:93]
    v_pk_add_f32 v[90:91], v[90:91], v[94:95]
    v_pk_add_f32 v[80:81], v[80:81], v[88:89]
    v_pk_add_f32 v[82:83], v[82:83], v[90:91]""".replace("lgkmcnt(2)", "lgkmcnt(0)" if prof else "lgkmcnt(2)"))
    tagins(80)
    a("global_store_dwordx4 v10, v[80:83], s[34:35] sc1\ns_mov_b32 exec_hi, -1")
    stamp(8)
    a(f"""v_lshl_add_u32 v8, v3, 3, v4
    v_lshlrev_b32 v8, 7, v8
    v_lshl_add_u32 v8, v5, 3, v8
    s_lshl_b32 s48, s3, 5
    v_add_u32 v8, s48, v8
    v_lshlrev_b32 v10, 4, v3
    v_lshl_add_u32 v9, v5, 8, v10
    v_lshl_add_u32 v10, v5, 7, v10
    v_lshrrev_b32 v6, 5, v1
    v_lshl_add_u32 v11, v6, 2, v1
    v_and_b32 v11, 7, v11
    v_lshlrev_b32 v11, 6, v11
    s_lshl_b32 s48, s4, 2
    s_add_u32 s48, s48, s3
    s_lshl_b32 s49, s48, 9
    s_add_u32 s49, s49, {ML}
    v_add_u32 v11, s49, v11
    v_and_b32 v13, 31, v1
    v_lshlrev_b32 v12, 4, v13
    v_lshl_add_u32 v12, v6, 13, v12
    s_lshl_b32 s48, s48, 14
    s_lshl_b32 s49, s9, 9
    s_add_u32 s48, s48, s49
    s_add_u32 s48, s48, {OP+4096}
    v_add_u32 v12, s48, v12
    v_lshlrev_b32 v13, 3, v13
    v_lshl_add_u32 v13, v6, 2, v13
    s_lshl_b32 s49, s3, 8
    v_add_u32 v13, s49, v13
    s_lshl_b32 s48, s8, 15
    s_add_u32 s48, s48, s49
    s_lshl_b32 s49, s10, 10
    s_add_u32 s48, s48, s49
    s_add_u32 s48, s48, {SP}
    v_add_u32 v14, s48, v7
    v_add_u32 v15, {YP-SP}, v14
    s_waitcnt vmcnt(2)
    s_barrier""")
    stamp(9)
    for t in range(4):
        for h in range(2): a(f"ds_read_b64_tr_b16 {v(16+4*t+2*h,2)}, v8 offset:{L_WO+t*4096+h*512}")
    a("s_cmp_ge_u32 s10, 28\ns_cbranch_scc1 L_noy")
    for t in range(2):
        for h in range(2): a(f"ds_read_b64_tr_b16 {v(32+4*t+2*h,2)}, v8 offset:{L_W2+t*4096+h*512}")
        a(f"ds_read_b128 {v(40+4*t,4)}, v10 offset:{L_HS+64*t}")
    a("""s_waitcnt lgkmcnt(0)
    v_mfma_f32_16x16x32_bf16 v[48:51], v[40:43], v[32:35], 0
    v_mfma_f32_16x16x32_bf16 v[48:51], v[44:47], v[36:39], v[48:51]""")
    tagins(48)
    a("s_mov_b64 exec, 0xffff\nglobal_store_dwordx4 v15, v[48:51], s[34:35] sc1\ns_mov_b64 exec, -1\nL_noy:")
    poll("L_pml", ["global_load_dwordx4 v[56:59], v11, s[34:35] sc1", "global_load_dwordx4 v[60:63], v11, s[34:35] offset:16 sc1"], 56, 8, 6)
    stamp(10)
    for k in range(4): a(f"v_and_b32 v{56+k}, 0xffff0000, v{56+k}")
    for k in range(4): a(f"v_max_f32_dpp v{64+k}, v{56+k}, v{56+k} row_ror:4 {DPPF}")
    for s in (2, 1):
        for k in range(4): a(f"v_max_f32_dpp v{64+k}, v{64+k}, v{64+k} row_ror:{s} {DPPF}")
    for k in range(4): a(f"v_sub_f32 v{56+k}, v{56+k}, v{64+k}")
    for k in range(4): a(f"v_mul_f32 v{56+k}, s59, v{56+k}")
    for k in range(4): a(f"v_exp_f32 v{56+k}, v{56+k}")
    for k in range(4): a(f"v_mul_f32 v{60+k}, v{56+k}, v{60+k}")
    for s in (4, 2, 1):
        for k in range(4): a(f"v_add_f32_dpp v{60+k}, v{60+k}, v{60+k} row_ror:{s} {DPPF}")
    for k in range(4): a(f"v_rcp_f32 v{60+k}, v{60+k}")
    for k in range(4): a(f"v_mul_f32 v{56+k}, v{56+k}, v{60+k}")
    poll("L_po", [f"global_load_dwordx4 {v(64+4*t,4)}, v12, s[34:35] offset:{t*2048-4096} sc1" for t in range(4)], 64, 16, 6)
    stamp(11)
    if prof: a(f"s_sub_u32 s90, {cap}, s56")
    for t in range(4):
        for k in range(4):
            a(f"{'v_fmac_f32_dpp' if t else 'v_mul_f32_dpp'} v{60+k}, v{56+k}, v{64+4*t+k} row_newbcast:{t} {DPPF}")
    a(f"""v_permlane32_swap_b32 v60, v62
    v_permlane32_swap_b32 v61, v63
    v_add_f32 v60, v60, v62
    v_add_f32 v61, v61, v63
    v_cvt_pk_bf16_f32 v60, v60, v61
    ds_write_b32 v13, v60 offset:{L_OS}
    s_waitcnt lgkmcnt(0)
    s_barrier""")
    for t in range(4): a(f"ds_read_b128 {v(64+4*t,4)}, v9 offset:{L_OS+64*t}")
    for t in range(4):
        a(f"s_waitcnt lgkmcnt({0 if prof else 3-t})")
        a(f"v_mfma_f32_16x16x32_bf16 v[48:51], {v(64+4*t,4)}, {v(16+4*t,4)}, {'v[48:51]' if t else 0}")
    tagins(48)
    a("s_mov_b64 exec, 0xffff\nglobal_store_dwordx4 v14, v[48:51], s[34:35] sc1\ns_mov_b64 exec, -1")
    stamp(12)
    a("s_cmp_lg_u32 s3, 0\ns_cbranch_scc1 " + ("L_prof" if prof else "L_end"))
    a(f"""v_lshrrev_b32 v8, 1, v1
    v_and_b32 v9, 1, v1
    v_lshlrev_b32 v8, 10, v8
    v_lshl_add_u32 v8, v9, 4, v8
    s_lshl_b32 s48, s4, 15
    s_lshl_b32 s49, s5, 5
    s_add_u32 s48, s48, s49
    s_add_u32 s48, s48, {SP}
    v_add_u32 v8, s48, v8
    v_add_u32 v10, {YP-SP}, v8
    v_lshlrev_b32 v9, 1, v9
    v_lshl_add_u32 v9, v3, 10, v9
    s_lshl_b32 s48, s4, 7
    s_lshl_b32 s49, s5, 2
    s_add_u32 s48, s48, s49
    v_add_u32 v9, s48, v9
    global_load_ushort v11, v9, s[16:17]
    v_mov_b32 v16, 0
    v_mov_b32 v17, 0
    v_mov_b32 v18, 0
    v_mov_b32 v19, 0
    s_mov_b32 exec_hi, 0xffffff""")
    poll("L_py", ["global_load_dwordx4 v[16:19], v10, s[34:35] sc1"], 16, 4, 6)
    a("s_mov_b32 exec_hi, -1")
    def fred(r):
        a(f"""v_permlane32_swap_b32 v{r}, v{r+2}
        v_permlane32_swap_b32 v{r+1}, v{r+3}
        v_add_f32 v{r}, v{r}, v{r+2}
        v_add_f32 v{r+1}, v{r+1}, v{r+3}
        v_permlane16_swap_b32 v{r}, v{r+1}
        v_add_f32 v{r}, v{r}, v{r+1}""")
        for s in (8, 4, 2): a(f"v_add_f32_dpp v{r}, v{r}, v{r} row_ror:{s} {DPPF}")
        a(f"v_cvt_pk_bf16_f32 v{r}, 0, v{r}")
    fred(16)
    a(f"""v_mul_f32 v17, 0xbfb8aa3b, v16
    v_exp_f32 v17, v17
    v_lshlrev_b32 v11, 16, v11
    v_add_f32 v17, 1.0, v17
    v_rcp_f32 v17, v17
    s_add_u32 s11, s11, 1
    v_mul_f32 v16, v16, v17
    v_cvt_pk_bf16_f32 v16, 0, v16""")
    stamp(13)
    poll("L_ps", ["global_load_dwordx4 v[20:23], v8, s[34:35] sc1"], 20, 4, 6)
    stamp(14)
    fred(20)
    a(f"""v_mul_f32 v20, v20, v16
    v_cvt_pk_bf16_f32 v20, 0, v20
    v_add_f32 v20, v20, v11
    v_cvt_pk_bf16_f32 v20, v20, v20
    s_mov_b32 exec_lo, 0x00030003
    s_mov_b32 exec_hi, 0x00030003
    global_store_short v9, v20, s[32:33]
    s_cmp_lg_u32 s2, 0
    s_cbranch_scc1 {"L_prof" if prof else "L_end"}
    s_mov_b64 exec, 1
    v_mov_b32 v8, 0
    v_mov_b32 v10, s11
    global_store_dword v8, v10, s[34:35]""")
    if prof == 2:
        a("L_prof:\ns_mov_b64 exec, -1")
        if didx == 16: a("s_memrealtime s[92:93]")
        if drole == "H": a(f"v_mov_b32 v4, 0\nds_read_b32 v3, v4 offset:{L_ML+256}\ns_waitcnt lgkmcnt(0)\nv_readfirstlane_b32 s{60+2*didx}, v3")
        if didx in (13, 14): a("s_cmp_lg_u32 s3, 0\ns_cbranch_scc1 L_end")
        a(f"""s_waitcnt lgkmcnt(0)
        s_add_u32 s48, s{60+2*didx}, 3000
        L_spin:
        s_sleep 1
        s_memrealtime s[50:51]
        s_waitcnt lgkmcnt(0)
        s_sub_u32 s50, s50, s48
        s_cmp_lt_i32 s50, 0
        s_cbranch_scc1 L_spin""")
    if prof == 1:
        a("L_prof:\ns_mov_b64 exec, -1\ns_memrealtime s[92:93]\ns_getreg_b32 s94, hwreg(HW_REG_XCC_ID)\ns_getreg_b32 s96, hwreg(HW_REG_HW_ID)\ns_waitcnt lgkmcnt(0)")
        for i in range(19): a(f"v_writelane_b32 v3, s{60+2*i}, {i}")
        a(f"""v_lshrrev_b32 v4, 6, v0
        s_mul_i32 s48, s2, 6
        v_add_u32 v4, s48, v4
        v_lshlrev_b32 v4, 7, v4
        v_lshl_add_u32 v4, v1, 2, v4
        v_add_u32 v4, {PROF}, v4
        s_mov_b64 exec, 0x7ffff
        global_store_dword v4, v3, s[34:35]""")
    a("L_end:\ns_endpgm")
    head = [l for l in open(REF).read().split("\n") if l.startswith(";") and "@launch" not in l]
    txt = "\n".join(head) + f"\n; @launch grid=(256,1,1) block=(384,1,1) lds=65536\n"
    txt += f'.amdgcn_target "amdgcn-amd-amdhsa--gfx950"\n.text\n.globl {NAME}_kernel\n.p2align 8\n.type {NAME}_kernel,@function\n'
    txt += a.text()
    txt += f'''.section .rodata,"a"
.p2align 6
.amdhsa_kernel {NAME}_kernel
  .amdhsa_next_free_vgpr 200
  .amdhsa_next_free_sgpr 100
  .amdhsa_accum_offset 200
  .amdhsa_group_segment_fixed_size 0
  .amdhsa_kernarg_size 88
  .amdhsa_user_sgpr_count 2
  .amdhsa_user_sgpr_kernarg_segment_ptr 1
  .amdhsa_system_sgpr_workgroup_id_x 1
  .amdhsa_float_denorm_mode_32 3
.end_amdhsa_kernel
'''
    return txt
if __name__ == "__main__":
    out = sys.argv[1]; kw = {}
    for x in sys.argv[2:]:
        k, val = x.split("=")
        try: val = int(val, 0)
        except ValueError: pass
        kw[k] = val
    open(out, "w").write(gen(**kw))
```

```python
import sys
from asmlib import Asm
NAME = "recurrent_scan__sliding_block_cached__dense_activation_relu__decode"
REF = "cdna_kernels/" + NAME + ".s.ref"
QP, HP, OP, SP, YP, ML, PROF = 0x10000, 0x50000, 0x90000, 0x110000, 0x150000, 0x190000, 0x400000
L_WQ, L_W1, L_WO, L_W2, L_OR = 0, 16384, 24576, 40960, 49152
L_XS0, L_XS1, L_QS, L_HS, L_OS, L_ML = 57344, 58368, 59392, 60416, 60928, 61952
TAGM = 0x3FF
LOG2E = "0x3fb8aa3b"
DPPF = "row_mask:0xf bank_mask:0xf"
def v(a, n=1): return f"v{a}" if n == 1 else f"v[{a}:{a+n-1}]"

def gen(prof=0, diag=None, nt="nt", wnt="nt", rot=9, hprio=3, cap=1 << 18, **kw):
    a = Asm()
    if diag is not None: prof = 2; drole, didx = diag[0], int(diag[1:])
    def stamp(i):
        if prof == 1 or (prof == 2 and i in (0, didx)): a(f"s_memrealtime s[{60+2*i}:{61+2*i}]")
    def endwave():
        if prof == 2 and drole == "H":
            a(f"v_mov_b32 v3, s{60+2*didx}\nv_lshrrev_b32 v4, 4, v0\nv_and_b32 v4, 4, v4\nds_write_b32 v4, v3 offset:{L_ML+256}\ns_waitcnt lgkmcnt(0)")
        a("s_branch L_prof" if prof == 1 else "s_endpgm")
    def tags():
        a(f"""s_add_u32 s12, s11, 1
        s_add_u32 s13, s11, 0x156
        s_add_u32 s14, s11, 0x2ab
        s_add_u32 s15, s11, 0xc4""")
    def tagins(r):
        for k in range(4): a(f"v_bfi_b32 v{r+k}, v2, s{12+k}, v{r+k}")
    def poll(name, loads, r0, n, acc):
        a(f"s_mov_b32 s56, {cap}\n{name}:")
        for l in loads: a(l)
        a("s_waitcnt vmcnt(0)")
        a(f"v_xor_b32 v{acc}, s12, v{r0}")
        for i in range(1, n): a(f"v_bitop3_b32 v{acc}, v{r0+i}, s{12+i%4}, v{acc} bitop3:0xbe")
        a(f"""v_and_b32 v{acc}, v2, v{acc}
        v_cmp_ne_u32 vcc, 0, v{acc}
        s_sub_u32 s56, s56, 1
        s_cbranch_scc1 L_end
        s_cbranch_vccnz {name}""")
    a(f"{NAME}_kernel:")
    stamp(0)
    a("""s_cmp_ge_u32 s2, 256
    s_cbranch_scc1 L_end
    s_load_dwordx16 s[16:31], s[0:1], 0
    s_load_dwordx2 s[34:35], s[0:1], 80
    s_load_dwordx2 s[32:33], s[0:1], 64
    v_lshrrev_b32 v3, 6, v0
    v_and_b32 v1, 63, v0
    v_readfirstlane_b32 s3, v3
    s_and_b32 s4, s2, 7
    s_lshr_b32 s5, s2, 3
    s_and_b32 s6, s5, 3
    s_lshr_b32 s7, s5, 2
    s_and_b32 s8, s5, 7
    s_lshr_b32 s9, s5, 3
    s_lshl_b32 s10, s4, 2
    s_add_u32 s10, s10, s9""")
    a(f"v_mov_b32 v2, {TAGM}")
    a("""s_cmp_ge_u32 s3, 2
    s_cbranch_scc1 L_A""")
    def hwave(q):
        nk = 4 if q else 2
        lw = L_WQ if q else L_W1; xs = L_XS0 if q else L_XS1
        rs = 8192 if q else 3584
        wb = "s[22:23]" if q else "s[28:29]"
        a("""v_lshrrev_b32 v3, 4, v1
        v_and_b32 v4, 15, v1
        v_lshlrev_b32 v4, 4, v4
        v_lshl_add_u32 v3, v3, 10, v4""")
        if q: a("s_mov_b32 s48, s9")
        else: a("s_lshr_b32 s48, s8, 1")
        for i in range(4):
            a(f"s_add_u32 s49, s48, {i}\ns_and_b32 s49, s49, 3\ns_lshl_b32 s49, s49, 8\nv_add_u32 v{4+i}, s49, v3")
        if q: a("s_lshl_b32 s49, s9, 20\ns_lshl_b32 s50, s4, 10\ns_add_u32 s49, s49, s50\ns_lshl_b32 s50, s8, 7\ns_add_u32 s49, s49, s50")
        else: a(f"s_mul_i32 s49, s8, {64*3584}\ns_lshl_b32 s50, s10, 7\ns_add_u32 s49, s49, s50")
        a(f"""v_lshrrev_b32 v8, 3, v1
        v_mul_u32_u24 v8, {rs}, v8
        v_and_b32 v9, 7, v1
        v_lshl_add_u32 v8, v9, 4, v8
        v_add_u32 v8, s49, v8
        s_mov_b32 m0, {lw}
        s_waitcnt lgkmcnt(0)
        s_load_dword s11, s[34:35], 0""")
        for i in range(4): a(f"global_load_dwordx4 {v(16+4*i,4)}, v{4+i}, s[16:17]")
        for j in range(4 * nk):
            if j: a(f"v_add_u32 v8, {8*rs}, v8\ns_add_u32 m0, m0, 1024")
            a(f"global_load_lds_dwordx4 v8, {wb} {wnt}")
        a("s_barrier")
        stamp(1)
        a(f"""v_lshrrev_b32 v3, 4, v1
        v_bfe_u32 v4, v1, 2, 2
        v_and_b32 v5, 3, v1
        v_lshl_add_u32 v10, v3, 3, v4
        v_lshlrev_b32 v10, 7, v10
        v_lshl_add_u32 v10, v5, 5, v10
        v_lshlrev_b32 v11, 4, v3
        v_lshl_add_u32 v11, v4, 8, v11
        v_lshlrev_b32 v12, 6, v3
        v_lshl_add_u32 v12, v5, 4, v12
        v_lshl_add_u32 v12, v4, {13 if q else 8}, v12
        v_lshlrev_b32 v14, 4, v1
        s_mov_b32 s52, 0xaaaaaaaa
        s_mov_b32 s53, 0xaaaaaaaa
        s_mov_b32 s54, 0xcccccccc
        s_mov_b32 s55, 0xcccccccc
        s_mov_b32 s59, 0x3f803f80""")
        if q:
            a(f"""s_lshl_b32 s49, s4, 15
            s_lshl_b32 s50, s9, 11
            s_add_u32 s50, s50, s49
            s_lshl_b32 s51, s8, 8
            s_add_u32 s50, s50, s51
            s_add_u32 s50, s50, {QP}
            s_lshl_b32 s51, s6, 13
            s_add_u32 s49, s49, s51
            s_add_u32 s49, s49, {QP+4096}""")
        else:
            a(f"""s_and_b32 s49, s8, 1
            s_lshl_b32 s49, s49, 7
            v_add_u32 v11, s49, v11
            s_lshl_b32 s49, s10, 13
            s_lshl_b32 s50, s8, 10
            s_add_u32 s50, s50, s49
            s_add_u32 s50, s50, {HP}
            s_add_u32 s49, s49, {HP+4096}""")
        a("v_add_u32 v12, s50, v12\nv_add_u32 v13, s49, v14")
        a(f"s_waitcnt vmcnt({4*nk})")
        stamp(2)
        a("v_dot2_f32_bf16 v4, v16, s59, 0\nv_dot2_f32_bf16 v5, v16, v16, 0")
        for i in range(1, 16): a(f"v_dot2_f32_bf16 v4, v{16+i}, s59, v4\nv_dot2_f32_bf16 v5, v{16+i}, v{16+i}, v5")
        for s in (8, 4, 2, 1): a(f"v_add_f32_dpp v4, v4, v4 row_ror:{s} {DPPF}\nv_add_f32_dpp v5, v5, v5 row_ror:{s} {DPPF}")
        a("""v_mul_f32 v4, 0x3b000000, v4
        v_mul_f32 v5, 0x3b000000, v5
        v_fma_f32 v5, -v4, v4, v5
        v_max_f32 v5, 0, v5
        v_cvt_pk_bf16_f32 v5, 0, v5
        v_add_f32 v5, 0x3727c5ac, v5
        v_cvt_pk_bf16_f32 v5, 0, v5
        v_sqrt_f32 v5, v5
        v_cvt_pk_bf16_f32 v4, 0, v4
        v_cvt_pk_bf16_f32 v5, 0, v5
        v_rcp_f32 v5, v5""")
        for i in range(4):
            a(f"""v_lshlrev_b32 v6, 16, v{16+i}
            v_and_b32 v7, 0xffff0000, v{16+i}
            v_sub_f32 v6, v6, v4
            v_sub_f32 v7, v7, v4
            v_cvt_pk_bf16_f32 v6, 0, v6
            v_cvt_pk_bf16_f32 v7, 0, v7
            v_mul_f32 v6, v6, v5
            v_mul_f32 v7, v7, v5
            v_cvt_pk_bf16_f32 v{16+i}, v6, v7""")
        a(f"ds_write_b128 v14, v[16:19] offset:{xs}")
        for t in range(nk): a(f"ds_read_b128 {v(32+4*t,4)}, v11 offset:{xs+64*t}")
        stamp(3)
        for t in range(nk):
            a(f"s_waitcnt vmcnt({4*(nk-1-t)})")
            for tt in range(4):
                for h in range(2):
                    a(f"ds_read_b64_tr_b16 {v(48+16*t+4*tt+2*h,2)}, v10 offset:{lw+t*4096+h*512+tt*8}")
            if t == nk - 1: stamp(4)
            a("s_waitcnt lgkmcnt(0)")
            if t == 0: tags()
            for tt in range(4):
                a(f"v_mfma_f32_16x16x32_bf16 {v(112+4*tt,4)}, {v(48+16*t+4*tt,4)}, {v(32+4*t,4)}, {v(112+4*tt,4) if t else 0}")
        for r in range(4): a(f"v_cndmask_b32 v{112+r}, v{112+r}, v{116+r}, s[52:53]")
        for r in range(4): a(f"v_cndmask_b32 v{120+r}, v{120+r}, v{124+r}, s[52:53]")
        for r in range(4): a(f"v_cndmask_b32 v{112+r}, v{112+r}, v{120+r}, s[54:55]")
        tagins(112)
        a("global_store_dwordx4 v12, v[112:115], s[34:35] sc1")
        stamp(5)
        if prof == 1 and kw.get("pubwait"): a("s_waitcnt vmcnt(0)")
        stamp(6)
        poll("L_pq" if q else "L_ph", [f"global_load_dwordx4 {v(16+4*i,4)}, v13, s[34:35] offset:{i*1024-4096} sc1" for i in range(8)], 16, 32, 3)
        stamp(7)
        if prof: a(f"s_sub_u32 s76, {cap}, s56")
        a("v_lshlrev_b32 v14, 3, v1")
        if q:
            for i in range(0, 8, 2): a(f"v_pk_add_f32 {v(16+i,2)}, {v(16+i,2)}, {v(24+i,2)}\nv_pk_add_f32 {v(32+i,2)}, {v(32+i,2)}, {v(40+i,2)}")
            for i in range(0, 8, 2): a(f"v_pk_add_f32 {v(16+i,2)}, {v(16+i,2)}, {v(32+i,2)}")
            for i in range(4): a(f"v_cvt_pk_bf16_f32 v{16+i}, v{16+2*i}, v{17+2*i}")
            a(f"ds_write_b64 v14, v[16:17] offset:{L_QS}\nds_write_b64 v14, v[18:19] offset:{L_QS+512}")
        else:
            for i in range(0, 16, 2): a(f"v_pk_add_f32 {v(16+i,2)}, {v(16+i,2)}, {v(32+i,2)}")
            for i in range(0, 8, 2): a(f"v_pk_add_f32 {v(16+i,2)}, {v(16+i,2)}, {v(24+i,2)}")
            for i in range(0, 4, 2): a(f"v_pk_add_f32 {v(16+i,2)}, {v(16+i,2)}, {v(20+i,2)}")
            for i in range(4): a(f"v_max_f32 v{16+i}, 0, v{16+i}")
            a(f"v_cvt_pk_bf16_f32 v16, v16, v17\nv_cvt_pk_bf16_f32 v17, v18, v19\nds_write_b64 v14, v[16:17] offset:{L_HS}")
        a("s_waitcnt lgkmcnt(0)")
        endwave()
    if hprio: a(f"s_setprio {hprio}")
    a("s_cmp_eq_u32 s3, 1\ns_cbranch_scc1 L_H1")
    hwave(1)
    a("L_H1:\ns_cmp_ge_u32 s10, 28\ns_cbranch_scc1 L_end")
    hwave(0)
    a("L_A:")
    a(f"""s_sub_u32 s3, s3, 2
    s_lshl_b32 s48, s6, 24
    s_lshl_b32 s49, s4, 21
    s_add_u32 s48, s48, s49
    s_lshl_b32 s49, s7, 16
    s_add_u32 s48, s48, s49
    s_add_u32 s48, s48, 0x180000
    s_mul_i32 s50, s2, {rot}
    s_add_u32 s50, s50, s3
    s_lshl_b32 s50, s50, 10
    s_and_b32 s50, s50, 0xffff
    s_mov_b32 s38, 0x10000
    s_mov_b32 s39, 0x20000
    s_mov_b32 s42, 0x10000
    s_mov_b32 s43, 0x20000
    s_mov_b32 s46, {1792*1024}
    s_mov_b32 s47, 0x20000
    v_lshrrev_b32 v3, 4, v1
    v_bfe_u32 v4, v1, 2, 2
    v_and_b32 v5, 3, v1
    v_lshlrev_b32 v6, 4, v5
    v_lshl_add_u32 v6, v3, 6, v6
    v_lshl_add_u32 v6, v4, 8, v6
    v_lshlrev_b32 v7, 4, v1
    s_waitcnt lgkmcnt(0)
    s_load_dword s11, s[34:35], 0
    s_add_u32 s36, s18, s48
    s_addc_u32 s37, s19, 0
    s_add_u32 s40, s20, s48
    s_addc_u32 s41, s21, 0
    s_mov_b32 s44, s30
    s_mov_b32 s45, s31
    s_barrier""")
    stamp(1)
    for i in range(16):
        a(f"buffer_load_dwordx4 {v(16+4*i,4)}, v6, s[36:39], s50 offen {nt}\ns_add_u32 s50, s50, 4096\ns_and_b32 s50, s50, 0xffff")
    stamp(2)
    for i in range(16):
        a(f"buffer_load_dwordx4 {v(80+4*i,4)}, v7, s[40:43], s50 offen {nt}")
        if i < 15: a("s_add_u32 s50, s50, 4096\ns_and_b32 s50, s50, 0xffff")
        a(f"v_mov_b32 v{152+2*i}, 0\nv_mov_b32 v{153+2*i}, 0")
    stamp(3)
    a(f"""v_lshlrev_b32 v8, 8, v5
    v_lshl_add_u32 v8, v3, 6, v8
    v_lshl_add_u32 v8, v4, 4, v8
    v_lshlrev_b32 v9, 3, v5
    s_lshl_b32 s48, s3, 5
    v_add_u32 v10, s48, v9
    s_mov_b32 s57, 0x05040100
    s_mov_b32 s58, 0x07060302
    s_mov_b32 s59, {LOG2E}
    s_barrier
    ds_read_b128 v[192:195], v8 offset:{L_QS}""")
    stamp(4)
    a("s_waitcnt vmcnt(16) lgkmcnt(0)")
    tags()
    def red(i):
        d = 12 + 4 * i; pp, vv, e = i >> 3, (i >> 1) & 3, i & 1; S = 144 + 2 * pp + e
        if vv % 2 == 0:
            a(f"v_add_f32_dpp v{d}, v{d+1}, v{d} row_ror:12 {DPPF}\nv_add_f32_dpp v{d+2}, v{d+3}, v{d+2} row_ror:12 {DPPF}")
        else:
            a(f"v_add_f32_dpp v{d}, v{d}, v{d+1} row_ror:4 {DPPF}\nv_add_f32_dpp v{d+2}, v{d+2}, v{d+3} row_ror:4 {DPPF}")
    def red2(i):
        d = 12 + 4 * i; pp, vv, e = i >> 3, (i >> 1) & 3, i & 1; S = 144 + 2 * pp + e
        x, y = (d + 2, d) if vv < 2 else (d, d + 2)
        a(f"v_add_f32_dpp v{S}, v{x}, v{y} row_ror:8 row_mask:0xf bank_mask:{1<<vv}")
    for i in range(16 + 4):
        if i < 16: a(f"v_mfma_f32_16x16x32_bf16 {v(12+4*i,4)}, {v(16+4*i,4)}, v[192:195], 0")
        if 0 <= i - 3 < 16: red(i - 3)
        if 0 <= i - 4 < 16: red2(i - 4)
    for k in range(4): a(f"v_cvt_pk_bf16_f32 v{144+k}, 0, v{144+k}")
    for k in range(4): a(f"v_mul_f32 v{144+k}, 0x3db504f3, v{144+k}")
    for k in range(4): a(f"v_cvt_pk_bf16_f32 v{144+k}, 0, v{144+k}")
    def allred(op, r, t):
        a(f"""{op}_dpp v{r}, v{r}, v{r} row_ror:8 {DPPF}
        {op}_dpp v{r}, v{r}, v{r} row_ror:4 {DPPF}
        v_mov_b32 v{t}, v{r}
        v_permlane16_swap_b32 v{r}, v{t}
        {op} v{r}, v{r}, v{t}
        v_mov_b32 v{t}, v{r}
        v_permlane32_swap_b32 v{r}, v{t}
        {op} v{r}, v{r}, v{t}""")
    a("v_max3_f32 v148, v144, v145, v146\nv_max_f32 v148, v148, v147")
    allred("v_max_f32", 148, 150)
    for k in range(4): a(f"v_sub_f32 v{144+k}, v{144+k}, v148")
    for k in range(4): a(f"v_mul_f32 v{144+k}, s59, v{144+k}")
    for k in range(4): a(f"v_exp_f32 v{144+k}, v{144+k}")
    a("v_add_f32 v149, v144, v145\nv_add_f32 v150, v146, v147\nv_add_f32 v149, v149, v150")
    allred("v_add_f32", 149, 150)
    a(f"ds_write_b64 v10, v[148:149] offset:{L_ML}")
    a(f"""v_lshrrev_b32 v13, 3, v1
    v_and_b32 v14, 7, v1
    v_lshlrev_b32 v14, 4, v14
    v_lshl_add_u32 v12, v13, 10, v14
    v_and_b32 v15, 3, v13
    v_lshl_add_u32 v11, v15, 17, v14
    v_lshrrev_b32 v13, 2, v13
    v_lshl_add_u32 v11, v13, 13, v11
    s_lshl_b32 s48, s4, 9
    s_and_b32 s49, s3, 1
    s_lshl_b32 s49, s49, 6
    s_add_u32 s48, s48, s49
    s_lshl_b32 s49, s9, 1
    s_add_u32 s48, s48, s49
    s_lshr_b32 s49, s3, 1
    s_add_u32 s48, s48, s49
    s_lshl_b32 s48, s48, 10
    s_lshl_b32 s51, s8, 7
    s_add_u32 s48, s48, s51
    v_add_u32 v11, s48, v11
    s_lshl_b32 s48, s10, 16
    s_add_u32 s51, s51, s48
    s_lshl_b32 s48, s3, 14
    s_add_u32 s51, s51, s48
    s_lshl_b32 s48, s3, 12
    s_add_u32 m0, s48, {L_WO}
    s_waitcnt lgkmcnt(0)
    s_barrier
    ds_read2_b64 v[16:19], v9 offset0:{0} offset1:{4}
    ds_read2_b64 v[20:23], v9 offset0:{8} offset1:{12}""".replace("ds_read2_b64 v[16:19], v9", f"v_add_u32 v9, {L_ML}, v9\nds_read2_b64 v[16:19], v9"))
    stamp(5)
    for j in range(4):
        if j: a("v_add_u32 v11, 0x4000, v11\ns_add_u32 m0, m0, 1024")
        a(f"global_load_lds_dwordx4 v11, s[24:25] {wnt}")
    a(f"s_lshl_b32 s48, s3, 11\ns_add_u32 m0, s48, {L_W2}")
    a(f"buffer_load_dwordx4 v12, s[44:47], s51 offen {wnt} lds\ns_add_u32 m0, m0, 1024\ns_add_u32 s51, s51, 8192\nbuffer_load_dwordx4 v12, s[44:47], s51 offen {wnt} lds")
    a(f"""s_waitcnt lgkmcnt(0)
    v_max3_f32 v24, v16, v18, v20
    v_max_f32 v24, v24, v22
    v_sub_f32 v148, v148, v24
    v_mul_f32 v148, s59, v148
    v_exp_f32 v148, v148""")
    for k in range(4): a(f"v_sub_f32 v{16+2*k}, v{16+2*k}, v24")
    for k in range(4): a(f"v_mul_f32 v{16+2*k}, s59, v{16+2*k}")
    for k in range(4): a(f"v_exp_f32 v{16+2*k}, v{16+2*k}")
    for k in range(4): a(f"v_mul_f32 v{144+k}, v148, v{144+k}")
    a("v_mul_f32 v25, v16, v17\nv_fmac_f32 v25, v18, v19\nv_fmac_f32 v25, v20, v21\nv_fmac_f32 v25, v22, v23")
    a("v_cvt_pk_bf16_f32 v144, v144, v145\nv_cvt_pk_bf16_f32 v145, v146, v147")
    a(f"""s_bitcmp1_b32 s3, 0
    s_cselect_b64 vcc, -1, 0
    s_lshl_b32 s48, s4, 2
    s_add_u32 s48, s48, s6
    s_lshl_b32 s48, s48, 3
    s_add_u32 s48, s48, s7
    s_lshl_b32 s49, s48, 6
    s_lshl_b32 s51, s3, 4
    s_add_u32 s49, s49, s51
    s_add_u32 s49, s49, {ML}
    v_cndmask_b32 v24, v24, v25, vcc
    v_mov_b32 v13, s49""")
    for k in range(4): a(f"v_mov_b32_dpp v{28+k}, v24 quad_perm:[{k},{k},{k},{k}] {DPPF}")
    tagins(28)
    a("s_mov_b64 exec, 1\nglobal_store_dwordx4 v13, v[28:31], s[34:35] sc1\ns_mov_b64 exec, -1")
    for pp in range(2):
        for u in range(4):
            for w in range(4):
                rr = (4 * (u - w)) % 16
                a(f"v_mov_b32_dpp v{152+16*pp+4*u+w}, v{144+pp} {'row_ror:%d' % rr if rr else 'quad_perm:[0,1,2,3]'} row_mask:0xf bank_mask:{1<<u}")
    a(f"""s_lshl_b32 s49, s3, 11
    v_add_u32 v8, s49, v7
    s_lshl_b32 s49, s3, 9
    v_add_u32 v9, s49, v7
    s_lshl_b32 s48, s48, 11
    s_add_u32 s48, s48, {OP}
    v_add_u32 v10, s48, v9""")
    stamp(6)
    NL = 7
    for pp in range(2):
        B = 16 + 32 * pp
        for w in range(4):
            i = 8 * pp + 2 * w
            a(f"s_waitcnt vmcnt({NL + 16 - (i + 2)})")
            if pp == 1 and w == 3: stamp(7)
            for j in range(8):
                a(f"v_perm_b32 v{B+4*j+w}, v{80+4*(i+1)+(j>>1)}, v{80+4*i+(j>>1)}, s{57+(j&1)}")
                if w == 3 and j >= 2:
                    jm = j - 2
                    a(f"v_mfma_f32_16x16x32_bf16 {v(184+4*(jm>>2),4)}, {v(152+16*pp+4*(jm&3),4)}, {v(B+4*jm,4)}, {v(184+4*(jm>>2),4) if (pp or jm&3) else 0}")
        for jm in (6, 7):
            a(f"v_mfma_f32_16x16x32_bf16 {v(184+4*(jm>>2),4)}, {v(152+16*pp+4*(jm&3),4)}, {v(B+4*jm,4)}, {v(184+4*(jm>>2),4)}")
    a(f"""ds_write_b128 v8, v[184:187] offset:{L_OR}
    ds_write_b128 v8, v[188:191] offset:{L_OR+1024}
    s_waitcnt lgkmcnt(0)
    s_barrier
    s_mov_b32 exec_hi, 0""")
    for k in range(4): a(f"ds_read_b128 {v(80+4*k,4)}, v9 offset:{L_OR+2048*k}")
    a("""s_waitcnt lgkmcnt(2)
    v_pk_add_f32 v[80:81], v[80:81], v[84:85]
    v_pk_add_f32 v[82:83], v[82:83], v[86:87]
    s_waitcnt lgkmcnt(0)
    v_pk_add_f32 v[88:89], v[88:89], v[92:93]
    v_pk_add_f32 v[90:91], v[90:91], v[94:95]
    v_pk_add_f32 v[80:81], v[80:81], v[88:89]
    v_pk_add_f32 v[82:83], v[82:83], v[90:91]""".replace("lgkmcnt(2)", "lgkmcnt(0)" if prof else "lgkmcnt(2)"))
    tagins(80)
    a("global_store_dwordx4 v10, v[80:83], s[34:35] sc1\ns_mov_b32 exec_hi, -1")
    stamp(8)
    a(f"""v_lshl_add_u32 v8, v3, 3, v4
    v_lshlrev_b32 v8, 7, v8
    v_lshl_add_u32 v8, v5, 3, v8
    s_lshl_b32 s48, s3, 5
    v_add_u32 v8, s48, v8
    v_lshlrev_b32 v10, 4, v3
    v_lshl_add_u32 v9, v5, 8, v10
    v_lshl_add_u32 v10, v5, 7, v10
    v_lshrrev_b32 v6, 5, v1
    v_lshl_add_u32 v11, v6, 2, v1
    v_and_b32 v11, 7, v11
    v_lshlrev_b32 v11, 6, v11
    s_lshl_b32 s48, s4, 2
    s_add_u32 s48, s48, s3
    s_lshl_b32 s49, s48, 9
    s_add_u32 s49, s49, {ML}
    v_add_u32 v11, s49, v11
    v_and_b32 v13, 31, v1
    v_lshlrev_b32 v12, 4, v13
    v_lshl_add_u32 v12, v6, 13, v12
    s_lshl_b32 s48, s48, 14
    s_lshl_b32 s49, s9, 9
    s_add_u32 s48, s48, s49
    s_add_u32 s48, s48, {OP+4096}
    v_add_u32 v12, s48, v12
    v_lshlrev_b32 v13, 3, v13
    v_lshl_add_u32 v13, v6, 2, v13
    s_lshl_b32 s49, s3, 8
    v_add_u32 v13, s49, v13
    s_lshl_b32 s48, s8, 15
    s_add_u32 s48, s48, s49
    s_lshl_b32 s49, s10, 10
    s_add_u32 s48, s48, s49
    s_add_u32 s48, s48, {SP}
    v_add_u32 v14, s48, v7
    v_add_u32 v15, {YP-SP}, v14
    s_waitcnt vmcnt(2)
    s_barrier""")
    stamp(9)
    for t in range(4):
        for h in range(2): a(f"ds_read_b64_tr_b16 {v(16+4*t+2*h,2)}, v8 offset:{L_WO+t*4096+h*512}")
    a("s_cmp_ge_u32 s10, 28\ns_cbranch_scc1 L_noy")
    for t in range(2):
        for h in range(2): a(f"ds_read_b64_tr_b16 {v(32+4*t+2*h,2)}, v8 offset:{L_W2+t*4096+h*512}")
        a(f"ds_read_b128 {v(40+4*t,4)}, v10 offset:{L_HS+64*t}")
    a("""s_waitcnt lgkmcnt(0)
    v_mfma_f32_16x16x32_bf16 v[48:51], v[40:43], v[32:35], 0
    v_mfma_f32_16x16x32_bf16 v[48:51], v[44:47], v[36:39], v[48:51]""")
    tagins(48)
    a("s_mov_b64 exec, 0xffff\nglobal_store_dwordx4 v15, v[48:51], s[34:35] sc1\ns_mov_b64 exec, -1\nL_noy:")
    poll("L_pml", ["global_load_dwordx4 v[56:59], v11, s[34:35] sc1", "global_load_dwordx4 v[60:63], v11, s[34:35] offset:16 sc1"], 56, 8, 6)
    stamp(10)
    for k in range(4): a(f"v_and_b32 v{56+k}, 0xffff0000, v{56+k}")
    for k in range(4): a(f"v_max_f32_dpp v{64+k}, v{56+k}, v{56+k} row_ror:4 {DPPF}")
    for s in (2, 1):
        for k in range(4): a(f"v_max_f32_dpp v{64+k}, v{64+k}, v{64+k} row_ror:{s} {DPPF}")
    for k in range(4): a(f"v_sub_f32 v{56+k}, v{56+k}, v{64+k}")
    for k in range(4): a(f"v_mul_f32 v{56+k}, s59, v{56+k}")
    for k in range(4): a(f"v_exp_f32 v{56+k}, v{56+k}")
    for k in range(4): a(f"v_mul_f32 v{60+k}, v{56+k}, v{60+k}")
    for s in (4, 2, 1):
        for k in range(4): a(f"v_add_f32_dpp v{60+k}, v{60+k}, v{60+k} row_ror:{s} {DPPF}")
    for k in range(4): a(f"v_rcp_f32 v{60+k}, v{60+k}")
    for k in range(4): a(f"v_mul_f32 v{56+k}, v{56+k}, v{60+k}")
    poll("L_po", [f"global_load_dwordx4 {v(64+4*t,4)}, v12, s[34:35] offset:{t*2048-4096} sc1" for t in range(4)], 64, 16, 6)
    stamp(11)
    if prof: a(f"s_sub_u32 s90, {cap}, s56")
    for t in range(4):
        for k in range(4):
            a(f"{'v_fmac_f32_dpp' if t else 'v_mul_f32_dpp'} v{60+k}, v{56+k}, v{64+4*t+k} row_newbcast:{t} {DPPF}")
    a(f"""v_permlane32_swap_b32 v60, v62
    v_permlane32_swap_b32 v61, v63
    v_add_f32 v60, v60, v62
    v_add_f32 v61, v61, v63
    v_cvt_pk_bf16_f32 v60, v60, v61
    ds_write_b32 v13, v60 offset:{L_OS}
    s_waitcnt lgkmcnt(0)
    s_barrier""")
    for t in range(4): a(f"ds_read_b128 {v(64+4*t,4)}, v9 offset:{L_OS+64*t}")
    for t in range(4):
        a(f"s_waitcnt lgkmcnt({0 if prof else 3-t})")
        a(f"v_mfma_f32_16x16x32_bf16 v[48:51], {v(64+4*t,4)}, {v(16+4*t,4)}, {'v[48:51]' if t else 0}")
    tagins(48)
    a("s_mov_b64 exec, 0xffff\nglobal_store_dwordx4 v14, v[48:51], s[34:35] sc1\ns_mov_b64 exec, -1")
    stamp(12)
    a("s_cmp_lg_u32 s3, 0\ns_cbranch_scc1 " + ("L_prof" if prof else "L_end"))
    a(f"""v_lshrrev_b32 v8, 1, v1
    v_and_b32 v9, 1, v1
    v_lshlrev_b32 v8, 10, v8
    v_lshl_add_u32 v8, v9, 4, v8
    s_lshl_b32 s48, s4, 15
    s_lshl_b32 s49, s5, 5
    s_add_u32 s48, s48, s49
    s_add_u32 s48, s48, {SP}
    v_add_u32 v8, s48, v8
    v_add_u32 v10, {YP-SP}, v8
    v_lshlrev_b32 v9, 1, v9
    v_lshl_add_u32 v9, v3, 10, v9
    s_lshl_b32 s48, s4, 7
    s_lshl_b32 s49, s5, 2
    s_add_u32 s48, s48, s49
    v_add_u32 v9, s48, v9
    global_load_ushort v11, v9, s[16:17]
    v_mov_b32 v16, 0
    v_mov_b32 v17, 0
    v_mov_b32 v18, 0
    v_mov_b32 v19, 0
    s_mov_b32 exec_hi, 0xffffff""")
    poll("L_py", ["global_load_dwordx4 v[16:19], v10, s[34:35] sc1"], 16, 4, 6)
    a("s_mov_b32 exec_hi, -1")
    def fred(r):
        a(f"""v_permlane32_swap_b32 v{r}, v{r+2}
        v_permlane32_swap_b32 v{r+1}, v{r+3}
        v_add_f32 v{r}, v{r}, v{r+2}
        v_add_f32 v{r+1}, v{r+1}, v{r+3}
        v_permlane16_swap_b32 v{r}, v{r+1}
        v_add_f32 v{r}, v{r}, v{r+1}""")
        for s in (8, 4, 2): a(f"v_add_f32_dpp v{r}, v{r}, v{r} row_ror:{s} {DPPF}")
        a(f"v_cvt_pk_bf16_f32 v{r}, 0, v{r}")
    fred(16)
    a(f"""v_mul_f32 v17, 0xbfb8aa3b, v16
    v_exp_f32 v17, v17
    v_lshlrev_b32 v11, 16, v11
    v_add_f32 v17, 1.0, v17
    v_rcp_f32 v17, v17
    s_add_u32 s11, s11, 1
    v_mul_f32 v16, v16, v17
    v_cvt_pk_bf16_f32 v16, 0, v16""")
    stamp(13)
    poll("L_ps", ["global_load_dwordx4 v[20:23], v8, s[34:35] sc1"], 20, 4, 6)
    stamp(14)
    fred(20)
    a(f"""v_mul_f32 v20, v20, v16
    v_cvt_pk_bf16_f32 v20, 0, v20
    v_add_f32 v20, v20, v11
    v_cvt_pk_bf16_f32 v20, v20, v20
    s_mov_b32 exec_lo, 0x00030003
    s_mov_b32 exec_hi, 0x00030003
    global_store_short v9, v20, s[32:33]
    s_cmp_lg_u32 s2, 0
    s_cbranch_scc1 {"L_prof" if prof else "L_end"}
    s_mov_b64 exec, 1
    v_mov_b32 v8, 0
    v_mov_b32 v10, s11
    global_store_dword v8, v10, s[34:35]""")
    if prof == 2:
        a("L_prof:\ns_mov_b64 exec, -1")
        if didx == 16: a("s_memrealtime s[92:93]")
        if drole == "H": a(f"v_mov_b32 v4, 0\nds_read_b32 v3, v4 offset:{L_ML+256}\ns_waitcnt lgkmcnt(0)\nv_readfirstlane_b32 s{60+2*didx}, v3")
        if didx in (13, 14): a("s_cmp_lg_u32 s3, 0\ns_cbranch_scc1 L_end")
        a(f"""s_waitcnt lgkmcnt(0)
        s_sub_u32 s48, s{60+2*didx}, s60
        s_lshl_b32 s48, s48, 2
        s_add_u32 s48, s48, s60
        s_add_u32 s48, s48, 2000
        L_spin:
        s_sleep 1
        s_memrealtime s[50:51]
        s_waitcnt lgkmcnt(0)
        s_sub_u32 s50, s50, s48
        s_cmp_lt_i32 s50, 0
        s_cbranch_scc1 L_spin""")
    if prof == 1:
        a("L_prof:\ns_mov_b64 exec, -1\ns_memrealtime s[92:93]\ns_getreg_b32 s94, hwreg(HW_REG_XCC_ID)\ns_getreg_b32 s96, hwreg(HW_REG_HW_ID)\ns_waitcnt lgkmcnt(0)")
        for i in range(19): a(f"v_writelane_b32 v3, s{60+2*i}, {i}")
        a(f"""v_lshrrev_b32 v4, 6, v0
        s_mul_i32 s48, s2, 6
        v_add_u32 v4, s48, v4
        v_lshlrev_b32 v4, 7, v4
        v_lshl_add_u32 v4, v1, 2, v4
        v_add_u32 v4, {PROF}, v4
        s_mov_b64 exec, 0x7ffff
        global_store_dword v4, v3, s[34:35]""")
    a("L_end:\ns_endpgm")
    head = [l for l in open(REF).read().split("\n") if l.startswith(";") and "@launch" not in l]
    txt = "\n".join(head) + f"\n; @launch grid=(256,1,1) block=(384,1,1) lds=65536\n"
    txt += f'.amdgcn_target "amdgcn-amd-amdhsa--gfx950"\n.text\n.globl {NAME}_kernel\n.p2align 8\n.type {NAME}_kernel,@function\n'
    txt += a.text()
    txt += f'''.section .rodata,"a"
.p2align 6
.amdhsa_kernel {NAME}_kernel
  .amdhsa_next_free_vgpr 200
  .amdhsa_next_free_sgpr 100
  .amdhsa_accum_offset 200
  .amdhsa_group_segment_fixed_size 0
  .amdhsa_kernarg_size 88
  .amdhsa_user_sgpr_count 2
  .amdhsa_user_sgpr_kernarg_segment_ptr 1
  .amdhsa_system_sgpr_workgroup_id_x 1
  .amdhsa_float_denorm_mode_32 3
.end_amdhsa_kernel
'''
    return txt
if __name__ == "__main__":
    out = sys.argv[1]; kw = {}
    for x in sys.argv[2:]:
        k, val = x.split("=")
        try: val = int(val, 0)
        except ValueError: pass
        kw[k] = val
    open(out, "w").write(gen(**kw))
```

```python
import sys
from asmlib import Asm
NAME = "recurrent_scan__sliding_block_cached__dense_activation_relu__decode"
REF = "cdna_kernels/" + NAME + ".s.ref"
QP, HP, OP, SP, YP, ML, PROF = 0x10000, 0x50000, 0x90000, 0x110000, 0x150000, 0x190000, 0x400000
L_WQ, L_W1, L_WO, L_W2, L_OR = 0, 16384, 24576, 40960, 49152
L_XS0, L_XS1, L_QS, L_HS, L_OS, L_ML = 57344, 58368, 59392, 60416, 60928, 61952
L_CNT = L_ML + 128
TAGM = 0x3FF
LOG2E = "0x3fb8aa3b"
DPPF = "row_mask:0xf bank_mask:0xf"
def v(a, n=1): return f"v{a}" if n == 1 else f"v[{a}:{a+n-1}]"

def gen(prof=0, diag=None, nt="nt", wnt="nt", rot=9, hprio=3, cap=1 << 18, th=6, qpos=8, b0w=99, nchunk=5, cw=1, **kw):
    a = Asm()
    if diag is not None: prof = 2; drole, didx = diag[0], int(diag[1:])
    def stamp(i):
        if prof == 1 or (prof == 2 and i in (0, didx)): a(f"s_memrealtime s[{60+2*i}:{61+2*i}]")
    def endwave():
        a("s_branch L_prof" if prof else "s_endpgm")
    def tags():
        a(f"""s_add_u32 s12, s11, 1
        s_add_u32 s13, s11, 0x156
        s_add_u32 s14, s11, 0x2ab
        s_add_u32 s15, s11, 0xc4""")
    def tagins(r):
        for k in range(4): a(f"v_bfi_b32 v{r+k}, v2, s{12+k}, v{r+k}")
    def poll(name, loads, r0, n, acc, first=None):
        a(f"s_mov_b32 s56, {cap}")
        if first is not None: a(f"s_waitcnt vmcnt({first})\ns_branch {name}_c")
        a(f"{name}:")
        for l in loads: a(l)
        a("s_waitcnt vmcnt(0)")
        if first is not None: a(f"{name}_c:")
        a(f"v_xor_b32 v{acc}, s12, v{r0}")
        for i in range(1, n): a(f"v_bitop3_b32 v{acc}, v{r0+i}, s{12+i%4}, v{acc} bitop3:0xbe")
        a(f"""v_and_b32 v{acc}, v2, v{acc}
        v_cmp_ne_u32 vcc, 0, v{acc}
        s_sub_u32 s56, s56, 1
        s_cbranch_scc1 L_end
        s_cbranch_vccnz {name}""")
    a(f"{NAME}_kernel:")
    stamp(0)
    a("""s_cmp_ge_u32 s2, 256
    s_cbranch_scc1 L_end
    s_load_dwordx16 s[16:31], s[0:1], 0
    s_load_dwordx2 s[34:35], s[0:1], 80
    s_load_dwordx2 s[32:33], s[0:1], 64
    CWARM
    v_lshrrev_b32 v3, 6, v0
    v_and_b32 v1, 63, v0
    v_readfirstlane_b32 s3, v3
    s_and_b32 s4, s2, 7
    s_lshr_b32 s5, s2, 3
    s_and_b32 s6, s5, 3
    s_lshr_b32 s7, s5, 2
    s_and_b32 s8, s5, 7
    s_lshr_b32 s9, s5, 3
    s_lshl_b32 s10, s4, 2
    s_add_u32 s10, s10, s9""".replace("CWARM", """s_getpc_b64 s[48:49]
    L_pc:
    v_lshlrev_b32 v3, 7, v0
    v_cmp_gt_u32 vcc, L_end-L_pc, v3
    s_and_saveexec_b64 s[50:51], vcc
    s_cbranch_execz L_nocw
    global_load_dword v199, v3, s[48:49]
    L_nocw:
    s_mov_b64 exec, s[50:51]""" if cw else ""))
    a(f"v_mov_b32 v2, {TAGM}")
    a("""s_cmp_ge_u32 s3, 4
    s_cbranch_scc1 L_A""")
    def hwave(q):
        nk = 4 if q else 2
        lw = L_WQ if q else L_W1; xs = L_XS0 if q else L_XS1
        rs = 8192 if q else 3584
        wb = "s[22:23]" if q else "s[28:29]"
        a("""v_lshrrev_b32 v3, 4, v1
        v_and_b32 v4, 15, v1
        v_lshlrev_b32 v4, 4, v4
        v_lshl_add_u32 v3, v3, 10, v4""")
        if q: a("s_mov_b32 s48, s9")
        else: a("s_lshr_b32 s48, s8, 1")
        for i in range(4):
            a(f"s_add_u32 s49, s48, {i}\ns_and_b32 s49, s49, 3\ns_lshl_b32 s49, s49, 8\nv_add_u32 v{4+i}, s49, v3")
        if q: a("s_lshl_b32 s49, s9, 20\ns_lshl_b32 s50, s4, 10\ns_add_u32 s49, s49, s50\ns_lshl_b32 s50, s8, 7\ns_add_u32 s49, s49, s50")
        else: a(f"s_mul_i32 s49, s8, {64*3584}\ns_lshl_b32 s50, s10, 7\ns_add_u32 s49, s49, s50")
        a(f"""v_lshrrev_b32 v8, 3, v1
        v_mul_u32_u24 v8, {rs}, v8
        v_and_b32 v9, 7, v1
        v_lshl_add_u32 v8, v9, 4, v8
        v_add_u32 v8, s49, v8
        s_mov_b32 m0, {lw}
        s_waitcnt lgkmcnt(0)
        s_load_dword s11, s[34:35], 0""")
        for i in range(4): a(f"global_load_dwordx4 {v(16+4*i,4)}, v{4+i}, s[16:17]")
        for j in range(4 * nk):
            if j: a(f"v_add_u32 v8, {8*rs}, v8\ns_add_u32 m0, m0, 1024")
            a(f"global_load_lds_dwordx4 v8, {wb} {wnt}")
        if q and b0w < 20: a(f"s_waitcnt vmcnt({b0w})")
        a("s_barrier")
        stamp(1)
        a(f"""v_lshrrev_b32 v3, 4, v1
        v_bfe_u32 v4, v1, 2, 2
        v_and_b32 v5, 3, v1
        v_lshl_add_u32 v10, v3, 3, v4
        v_lshlrev_b32 v10, 7, v10
        v_lshl_add_u32 v10, v5, 5, v10
        v_lshlrev_b32 v11, 4, v3
        v_lshl_add_u32 v11, v4, 8, v11
        v_lshlrev_b32 v12, 6, v3
        v_lshl_add_u32 v12, v5, 4, v12
        v_lshl_add_u32 v12, v4, {13 if q else 8}, v12
        v_lshlrev_b32 v14, 4, v1
        s_mov_b32 s52, 0xaaaaaaaa
        s_mov_b32 s53, 0xaaaaaaaa
        s_mov_b32 s54, 0xcccccccc
        s_mov_b32 s55, 0xcccccccc
        s_mov_b32 s59, 0x3f803f80""")
        if q:
            a(f"""s_lshl_b32 s49, s4, 15
            s_lshl_b32 s50, s9, 11
            s_add_u32 s50, s50, s49
            s_lshl_b32 s51, s8, 8
            s_add_u32 s50, s50, s51
            s_add_u32 s50, s50, {QP}
            s_lshl_b32 s51, s6, 13
            s_add_u32 s49, s49, s51
            s_add_u32 s49, s49, {QP+4096}""")
        else:
            a(f"""s_and_b32 s49, s8, 1
            s_lshl_b32 s49, s49, 7
            v_add_u32 v11, s49, v11
            s_lshl_b32 s49, s10, 13
            s_lshl_b32 s50, s8, 10
            s_add_u32 s50, s50, s49
            s_add_u32 s50, s50, {HP}
            s_add_u32 s49, s49, {HP+4096}""")
        a("v_add_u32 v12, s50, v12\nv_add_u32 v13, s49, v14")
        a(f"s_waitcnt vmcnt({4*nk})")
        stamp(2)
        a("v_dot2_f32_bf16 v4, v16, s59, 0\nv_dot2_f32_bf16 v5, v16, v16, 0")
        for i in range(1, 16): a(f"v_dot2_f32_bf16 v4, v{16+i}, s59, v4\nv_dot2_f32_bf16 v5, v{16+i}, v{16+i}, v5")
        for s in (8, 4, 2, 1): a(f"v_add_f32_dpp v4, v4, v4 row_ror:{s} {DPPF}\nv_add_f32_dpp v5, v5, v5 row_ror:{s} {DPPF}")
        a("""v_mul_f32 v4, 0x3b000000, v4
        v_mul_f32 v5, 0x3b000000, v5
        v_fma_f32 v5, -v4, v4, v5
        v_max_f32 v5, 0, v5
        v_cvt_pk_bf16_f32 v5, 0, v5
        v_add_f32 v5, 0x3727c5ac, v5
        v_cvt_pk_bf16_f32 v5, 0, v5
        v_sqrt_f32 v5, v5
        v_cvt_pk_bf16_f32 v4, 0, v4
        v_cvt_pk_bf16_f32 v5, 0, v5
        v_rcp_f32 v5, v5""")
        for i in range(4):
            a(f"""v_lshlrev_b32 v6, 16, v{16+i}
            v_and_b32 v7, 0xffff0000, v{16+i}
            v_sub_f32 v6, v6, v4
            v_sub_f32 v7, v7, v4
            v_cvt_pk_bf16_f32 v6, 0, v6
            v_cvt_pk_bf16_f32 v7, 0, v7
            v_mul_f32 v6, v6, v5
            v_mul_f32 v7, v7, v5
            v_cvt_pk_bf16_f32 v{16+i}, v6, v7""")
        a(f"ds_write_b128 v14, v[16:19] offset:{xs}")
        for t in range(nk): a(f"ds_read_b128 {v(32+4*t,4)}, v11 offset:{xs+64*t}")
        stamp(3)
        for t in range(nk):
            a(f"s_waitcnt vmcnt({4*(nk-1-t)})")
            for tt in range(4):
                for h in range(2):
                    a(f"ds_read_b64_tr_b16 {v(48+16*t+4*tt+2*h,2)}, v10 offset:{lw+t*4096+h*512+tt*8}")
            if t == nk - 1: stamp(4)
            a("s_waitcnt lgkmcnt(0)")
            if t == 0: tags()
            for tt in range(4):
                a(f"v_mfma_f32_16x16x32_bf16 {v(112+4*tt,4)}, {v(48+16*t+4*tt,4)}, {v(32+4*t,4)}, {v(112+4*tt,4) if t else 0}")
        for r in range(4): a(f"v_cndmask_b32 v{112+r}, v{112+r}, v{116+r}, s[52:53]")
        for r in range(4): a(f"v_cndmask_b32 v{120+r}, v{120+r}, v{124+r}, s[52:53]")
        for r in range(4): a(f"v_cndmask_b32 v{112+r}, v{112+r}, v{120+r}, s[54:55]")
        tagins(112)
        a("global_store_dwordx4 v12, v[112:115], s[34:35] sc1")
        stamp(5)
        a("s_waitcnt vmcnt(0)")
        stamp(6)
        poll("L_pq" if q else "L_ph", [f"global_load_dwordx4 {v(16+4*i,4)}, v13, s[34:35] offset:{i*1024-4096} sc1" for i in range(8)], 16, 32, 3)
        stamp(7)
        if prof: a(f"s_sub_u32 s76, {cap}, s56")
        a("v_lshlrev_b32 v14, 3, v1")
        if q:
            for i in range(0, 8, 2): a(f"v_pk_add_f32 {v(16+i,2)}, {v(16+i,2)}, {v(24+i,2)}\nv_pk_add_f32 {v(32+i,2)}, {v(32+i,2)}, {v(40+i,2)}")
            for i in range(0, 8, 2): a(f"v_pk_add_f32 {v(16+i,2)}, {v(16+i,2)}, {v(32+i,2)}")
            for i in range(4): a(f"v_cvt_pk_bf16_f32 v{16+i}, v{16+2*i}, v{17+2*i}")
            a(f"ds_write_b64 v14, v[16:17] offset:{L_QS}\nds_write_b64 v14, v[18:19] offset:{L_QS+512}")
        else:
            for i in range(0, 16, 2): a(f"v_pk_add_f32 {v(16+i,2)}, {v(16+i,2)}, {v(32+i,2)}")
            for i in range(0, 8, 2): a(f"v_pk_add_f32 {v(16+i,2)}, {v(16+i,2)}, {v(24+i,2)}")
            for i in range(0, 4, 2): a(f"v_pk_add_f32 {v(16+i,2)}, {v(16+i,2)}, {v(20+i,2)}")
            for i in range(4): a(f"v_max_f32 v{16+i}, 0, v{16+i}")
            a(f"v_cvt_pk_bf16_f32 v16, v16, v17\nv_cvt_pk_bf16_f32 v17, v18, v19\nds_write_b64 v14, v[16:17] offset:{L_HS}")
        if q: a("s_branch L_B")
    if hprio: a(f"s_setprio {hprio}")
    a("s_cmp_lg_u32 s3, 0\ns_cbranch_scc1 L_H1")
    hwave(1)
    a("L_H23:")
    a(f"""v_mov_b32 v3, 0
    ds_write_b32 v3, v3 offset:{L_CNT}
    s_waitcnt lgkmcnt(0)
    s_load_dword s11, s[34:35], 0
    s_barrier
    s_waitcnt lgkmcnt(0)""")
    tags()
    a("""s_branch L_B
    L_H1:
    s_cmp_lg_u32 s3, 1
    s_cbranch_scc1 L_H23
    s_cmp_ge_u32 s10, 28
    s_cbranch_scc1 L_H23""")
    hwave(0)
    a("L_B:\ns_waitcnt lgkmcnt(0)\ns_barrier\ns_setprio 0")
    a(f"""v_lshrrev_b32 v3, 4, v1
    v_bfe_u32 v4, v1, 2, 2
    v_and_b32 v5, 3, v1
    v_lshlrev_b32 v7, 4, v1
    s_mov_b32 s59, {LOG2E}
    s_mov_b32 s44, s30
    s_mov_b32 s45, s31
    s_mov_b32 s46, {1792*1024}
    s_mov_b32 s47, 0x20000
    v_lshrrev_b32 v13, 3, v1
    v_and_b32 v14, 7, v1
    v_lshlrev_b32 v14, 4, v14
    v_lshl_add_u32 v12, v13, 10, v14
    v_and_b32 v15, 3, v13
    v_lshl_add_u32 v11, v15, 17, v14
    v_lshrrev_b32 v13, 2, v13
    v_lshl_add_u32 v11, v13, 13, v11
    s_lshl_b32 s48, s4, 9
    s_and_b32 s49, s3, 1
    s_lshl_b32 s49, s49, 6
    s_add_u32 s48, s48, s49
    s_lshl_b32 s49, s9, 1
    s_add_u32 s48, s48, s49
    s_lshr_b32 s49, s3, 1
    s_add_u32 s48, s48, s49
    s_lshl_b32 s48, s48, 10
    s_lshl_b32 s51, s8, 7
    s_add_u32 s48, s48, s51
    v_add_u32 v11, s48, v11
    s_lshl_b32 s48, s10, 16
    s_add_u32 s51, s51, s48
    s_lshl_b32 s48, s3, 14
    s_add_u32 s51, s51, s48
    s_lshl_b32 s48, s3, 12
    s_add_u32 m0, s48, {L_WO}
    v_lshl_add_u32 v8, v3, 3, v4
    v_lshlrev_b32 v8, 7, v8
    v_lshl_add_u32 v8, v5, 3, v8
    s_lshl_b32 s48, s3, 5
    v_add_u32 v8, s48, v8
    v_lshlrev_b32 v9, 4, v3
    v_lshl_add_u32 v9, v5, 8, v9
    v_lshlrev_b32 v10, 3, v5
    v_add_u32 v10, {L_ML}, v10
    v_lshrrev_b32 v16, 5, v1
    v_lshl_add_u32 v15, v16, 2, v1
    v_and_b32 v15, 7, v15
    v_lshlrev_b32 v15, 5, v15
    s_lshl_b32 s48, s4, 2
    s_add_u32 s48, s48, s3
    s_lshl_b32 s49, s48, 8
    s_add_u32 s49, s49, {ML}
    v_add_u32 v15, s49, v15
    v_and_b32 v13, 31, v1
    v_lshlrev_b32 v6, 4, v13
    v_lshl_add_u32 v6, v16, 13, v6
    s_lshl_b32 s48, s48, 14
    s_lshl_b32 s49, s9, 9
    s_add_u32 s48, s48, s49
    s_add_u32 s48, s48, {OP+4096}
    v_add_u32 v6, s48, v6
    v_lshlrev_b32 v13, 3, v13
    v_lshl_add_u32 v13, v16, 2, v13
    s_lshl_b32 s49, s3, 8
    v_add_u32 v13, s49, v13
    s_lshl_b32 s48, s8, 15
    s_add_u32 s48, s48, s49
    s_lshl_b32 s49, s10, 10
    s_add_u32 s48, s48, s49
    s_add_u32 s48, s48, {SP}
    v_add_u32 v14, s48, v7
    s_lshl_b32 s48, s4, 2
    s_add_u32 s48, s48, s6
    s_lshl_b32 s48, s48, 3
    s_add_u32 s48, s48, s7
    s_lshl_b32 s48, s48, 5
    s_add_u32 s48, s48, {ML}
    v_lshlrev_b32 v26, 4, v4
    v_add_u32 v26, s48, v26
    s_mov_b32 vcc_lo, 0xf0
    s_mov_b32 vcc_hi, 0
    s_barrier
    s_cmp_lg_u32 s3, 2
    s_cbranch_scc1 L_noml
    ds_read2_b64 v[16:19], v10 offset0:0 offset1:4
    ds_read2_b64 v[20:23], v10 offset0:8 offset1:12
    s_waitcnt lgkmcnt(0)
    v_max3_f32 v24, v16, v18, v20
    v_max_f32 v24, v24, v22""")
    for k in range(4): a(f"v_sub_f32 v{16+2*k}, v{16+2*k}, v24")
    for k in range(4): a(f"v_mul_f32 v{16+2*k}, s59, v{16+2*k}")
    for k in range(4): a(f"v_exp_f32 v{16+2*k}, v{16+2*k}")
    a("v_mul_f32 v25, v16, v17\nv_fmac_f32 v25, v18, v19\nv_fmac_f32 v25, v20, v21\nv_fmac_f32 v25, v22, v23\nv_cndmask_b32 v24, v24, v25, vcc")
    for k in range(4): a(f"v_mov_b32_dpp v{28+k}, v24 quad_perm:[{k},{k},{k},{k}] {DPPF}")
    tagins(28)
    a("s_mov_b64 exec, 0x11\nglobal_store_dwordx4 v26, v[28:31], s[34:35] sc1\ns_mov_b64 exec, -1\nL_noml:")
    stamp(9)
    a("s_barrier")
    mll = ["global_load_dwordx4 v[56:59], v15, s[34:35] sc1", "global_load_dwordx4 v[60:63], v15, s[34:35] offset:16 sc1"]
    for l in mll: a(l)
    for j in range(4):
        if j: a("v_add_u32 v11, 0x4000, v11\ns_add_u32 m0, m0, 1024")
        a(f"global_load_lds_dwordx4 v11, s[24:25] {wnt}")
    a(f"s_lshl_b32 s48, s3, 11\ns_add_u32 m0, s48, {L_W2}")
    a(f"buffer_load_dwordx4 v12, s[44:47], s51 offen {wnt} lds\ns_add_u32 m0, m0, 1024\ns_add_u32 s51, s51, 8192\nbuffer_load_dwordx4 v12, s[44:47], s51 offen {wnt} lds")
    poll("L_pml", mll, 56, 8, 32, first=6)
    stamp(10)
    for k in range(4): a(f"v_and_b32 v{56+k}, 0xffff0000, v{56+k}")
    for k in range(4): a(f"v_max_f32_dpp v{64+k}, v{56+k}, v{56+k} row_ror:4 {DPPF}")
    for s in (2, 1):
        for k in range(4): a(f"v_max_f32_dpp v{64+k}, v{64+k}, v{64+k} row_ror:{s} {DPPF}")
    for k in range(4): a(f"v_sub_f32 v{56+k}, v{56+k}, v{64+k}")
    for k in range(4): a(f"v_mul_f32 v{56+k}, s59, v{56+k}")
    for k in range(4): a(f"v_exp_f32 v{56+k}, v{56+k}")
    for k in range(4): a(f"v_mul_f32 v{60+k}, v{56+k}, v{60+k}")
    for s in (4, 2, 1):
        for k in range(4): a(f"v_add_f32_dpp v{60+k}, v{60+k}, v{60+k} row_ror:{s} {DPPF}")
    for k in range(4): a(f"v_rcp_f32 v{60+k}, v{60+k}")
    for k in range(4): a(f"v_mul_f32 v{56+k}, v{56+k}, v{60+k}")
    a("s_waitcnt vmcnt(0)")
    stamp(11)
    a("s_setprio 3\ns_barrier")
    stamp(12)
    ol = [f"global_load_dwordx4 {v(64+4*t,4)}, v6, s[34:35] offset:{t*2048-4096} sc1" for t in range(4)]
    for l in ol: a(l)
    for t in range(4):
        for h in range(2): a(f"ds_read_b64_tr_b16 {v(16+4*t+2*h,2)}, v8 offset:{L_WO+t*4096+h*512}")
    poll("L_po", ol, 64, 16, 32, first=0)
    stamp(13)
    if prof: a(f"s_sub_u32 s90, {cap}, s56")
    for t in range(4):
        for k in range(4):
            a(f"{'v_fmac_f32_dpp' if t else 'v_mul_f32_dpp'} v{60+k}, v{56+k}, v{64+4*t+k} row_newbcast:{t} {DPPF}")
    a(f"""v_permlane32_swap_b32 v60, v62
    v_permlane32_swap_b32 v61, v63
    v_add_f32 v60, v60, v62
    v_add_f32 v61, v61, v63
    v_cvt_pk_bf16_f32 v60, v60, v61
    ds_write_b32 v13, v60 offset:{L_OS}
    s_waitcnt lgkmcnt(0)
    s_barrier""")
    for t in range(4): a(f"ds_read_b128 {v(64+4*t,4)}, v9 offset:{L_OS+64*t}")
    for t in range(4):
        a(f"s_waitcnt lgkmcnt({3-t})")
        a(f"v_mfma_f32_16x16x32_bf16 v[48:51], {v(64+4*t,4)}, {v(16+4*t,4)}, {'v[48:51]' if t else 0}")
    a("s_mov_b64 exec, 0xffff")
    tagins(48)
    a("global_store_dwordx4 v14, v[48:51], s[34:35] sc1")
    stamp(14)
    endwave()
    a("L_A:\ns_setprio 1")
    a(f"""s_sub_u32 s3, s3, 4
    s_lshl_b32 s48, s6, 24
    s_lshl_b32 s49, s4, 21
    s_add_u32 s48, s48, s49
    s_lshl_b32 s49, s7, 16
    s_add_u32 s48, s48, s49
    s_add_u32 s48, s48, 0x180000
    s_mul_i32 s50, s2, {rot}
    s_add_u32 s50, s50, s3
    s_lshl_b32 s50, s50, 10
    s_and_b32 s50, s50, 0xffff
    s_mov_b32 s38, 0x10000
    s_mov_b32 s39, 0x20000
    s_mov_b32 s42, 0x10000
    s_mov_b32 s43, 0x20000
    v_lshrrev_b32 v3, 4, v1
    v_bfe_u32 v4, v1, 2, 2
    v_and_b32 v5, 3, v1
    v_lshlrev_b32 v6, 4, v5
    v_lshl_add_u32 v6, v3, 6, v6
    v_lshl_add_u32 v6, v4, 8, v6
    v_lshlrev_b32 v7, 4, v1
    s_waitcnt lgkmcnt(0)
    s_load_dword s11, s[34:35], 0
    s_add_u32 s36, s18, s48
    s_addc_u32 s37, s19, 0
    s_add_u32 s40, s20, s48
    s_addc_u32 s41, s21, 0
    s_barrier""")
    stamp(1)
    def ld(n):
        if n >= th: a(f"s_waitcnt vmcnt({th-1})")
        if n < 16: a(f"buffer_load_dwordx4 {v(16+4*n,4)}, v6, s[36:39], s50 offen {nt}")
        else: a(f"buffer_load_dwordx4 {v(16+4*n,4)}, v7, s[40:43], s50 offen {nt}")
        if n < 31: a("s_add_u32 s50, s50, 4096\ns_and_b32 s50, s50, 0xffff")
        if n == 15: stamp(2)
        if n == 31: stamp(3)
    for n in range(th): ld(n)
    for i in range(32): a(f"v_mov_b32 v{152+i}, 0")
    a(f"""v_lshlrev_b32 v8, 8, v5
    v_lshl_add_u32 v8, v3, 6, v8
    v_lshl_add_u32 v8, v4, 4, v8
    v_lshlrev_b32 v9, 3, v5
    v_add_u32 v9, {L_ML}, v9
    s_lshl_b32 s48, s3, 5
    v_add_u32 v10, s48, v9
    s_mov_b32 s57, 0x05040100
    s_mov_b32 s58, 0x07060302
    s_mov_b32 s59, {LOG2E}
    s_lshl_b32 s49, s3, 11
    v_add_u32 v196, s49, v7
    s_lshl_b32 s48, s4, 2
    s_add_u32 s48, s48, s6
    s_lshl_b32 s48, s48, 3
    s_add_u32 s48, s48, s7
    s_lshl_b32 s48, s48, 11
    s_add_u32 s48, s48, {OP}
    v_add_u32 v197, s48, v7
    v_mov_b32 v11, 1
    v_mov_b32 v198, 0""")
    for n in range(th, 16 + qpos): ld(n)
    main = a; a.L0 = a.L; a.L = []
    a(f"s_barrier\nds_read_b128 v[192:195], v8 offset:{L_QS}")
    stamp(4)
    a(f"s_waitcnt vmcnt({qpos}) lgkmcnt(0)")
    tags()
    def red(i):
        d = 12 + 4 * i; vv = (i >> 1) & 3
        if vv % 2 == 0:
            a(f"v_add_f32_dpp v{d}, v{d+1}, v{d} row_ror:12 {DPPF}\nv_add_f32_dpp v{d+2}, v{d+3}, v{d+2} row_ror:12 {DPPF}")
        else:
            a(f"v_add_f32_dpp v{d}, v{d}, v{d+1} row_ror:4 {DPPF}\nv_add_f32_dpp v{d+2}, v{d+2}, v{d+3} row_ror:4 {DPPF}")
    def red2(i):
        d = 12 + 4 * i; pp, vv, e = i >> 3, (i >> 1) & 3, i & 1; S = 144 + 2 * pp + e
        x, y = (d + 2, d) if vv < 2 else (d, d + 2)
        a(f"v_add_f32_dpp v{S}, v{x}, v{y} row_ror:8 row_mask:0xf bank_mask:{1<<vv}")
    for i in range(16 + 4):
        if i < 16: a(f"v_mfma_f32_16x16x32_bf16 {v(12+4*i,4)}, {v(16+4*i,4)}, v[192:195], 0")
        if 0 <= i - 3 < 16: red(i - 3)
        if 0 <= i - 4 < 16: red2(i - 4)
    for k in range(4): a(f"v_cvt_pk_bf16_f32 v{144+k}, 0, v{144+k}")
    for k in range(4): a(f"v_mul_f32 v{144+k}, 0x3db504f3, v{144+k}")
    for k in range(4): a(f"v_cvt_pk_bf16_f32 v{144+k}, 0, v{144+k}")
    def allred(op, r, t):
        a(f"""{op}_dpp v{r}, v{r}, v{r} row_ror:8 {DPPF}
        {op}_dpp v{r}, v{r}, v{r} row_ror:4 {DPPF}
        v_mov_b32 v{t}, v{r}
        v_permlane16_swap_b32 v{r}, v{t}
        {op} v{r}, v{r}, v{t}
        v_mov_b32 v{t}, v{r}
        v_permlane32_swap_b32 v{r}, v{t}
        {op} v{r}, v{r}, v{t}""")
    a("v_max3_f32 v148, v144, v145, v146\nv_max_f32 v148, v148, v147")
    allred("v_max_f32", 148, 150)
    for k in range(4): a(f"v_sub_f32 v{144+k}, v{144+k}, v148")
    for k in range(4): a(f"v_mul_f32 v{144+k}, s59, v{144+k}")
    for k in range(4): a(f"v_exp_f32 v{144+k}, v{144+k}")
    a("v_add_f32 v149, v144, v145\nv_add_f32 v150, v146, v147\nv_add_f32 v149, v149, v150")
    allred("v_add_f32", 149, 150)
    a(f"""ds_write_b64 v10, v[148:149]
    s_waitcnt lgkmcnt(0)
    s_barrier
    ds_read2_b32 v[16:17], v9 offset0:0 offset1:8
    ds_read2_b32 v[18:19], v9 offset0:16 offset1:24""")
    stamp(5)
    a(f"""s_waitcnt lgkmcnt(0)
    v_max3_f32 v24, v16, v17, v18
    v_max_f32 v24, v24, v19
    v_sub_f32 v148, v148, v24
    v_mul_f32 v148, s59, v148
    v_exp_f32 v148, v148""")
    for k in range(4): a(f"v_mul_f32 v{144+k}, v148, v{144+k}")
    a("v_cvt_pk_bf16_f32 v144, v144, v145\nv_cvt_pk_bf16_f32 v145, v146, v147")
    for pp in range(2):
        for u in range(4):
            for w in range(4):
                rr = (4 * (u - w)) % 16
                a(f"v_mov_b32_dpp v{152+16*pp+4*u+w}, v{144+pp} {'row_ror:%d' % rr if rr else 'quad_perm:[0,1,2,3]'} row_mask:0xf bank_mask:{1<<u}")
    stamp(6)
    piece = a.L; a.L = a.L0
    rem = list(range(16 + qpos, 32)); nc = min(nchunk, len(rem) + 1); step = -(-len(piece) // nc)
    for c in range(nc):
        a.L += piece[c * step:(c + 1) * step]
        if rem: ld(rem.pop(0))
    def pvgroup(pp, issued):
        B = 16 + 32 * pp
        mf = lambda jm: a(f"v_mfma_f32_16x16x32_bf16 {v(184+4*(jm>>2),4)}, {v(152+16*pp+4*(jm&3),4)}, {v(B+4*jm,4)}, {v(184+4*(jm>>2),4) if (pp or jm&3) else 0}")
        for w in range(4):
            i = 8 * pp + 2 * w
            a(f"s_waitcnt vmcnt({issued - (i + 2)})")
            if pp == 1 and w == 3: stamp(7)
            for j in range(8):
                a(f"v_perm_b32 v{B+4*j+w}, v{80+4*(i+1)+(j>>1)}, v{80+4*i+(j>>1)}, s{57+(j&1)}")
                if w == 3 and j >= 2: mf(j - 2)
        mf(6); mf(7)
    for n in rem: ld(n)
    a("s_barrier")
    pvgroup(0, 16)
    a(f"""v_lshl_add_u32 v8, v3, 3, v4
    v_lshlrev_b32 v8, 7, v8
    v_lshl_add_u32 v8, v5, 3, v8
    s_lshl_b32 s48, s3, 5
    v_add_u32 v8, s48, v8
    v_lshlrev_b32 v10, 4, v3
    v_lshl_add_u32 v10, v5, 7, v10
    s_lshl_b32 s49, s3, 8
    s_lshl_b32 s48, s8, 15
    s_add_u32 s48, s48, s49
    s_lshl_b32 s49, s10, 10
    s_add_u32 s48, s48, s49
    s_add_u32 s48, s48, {YP}
    v_add_u32 v9, s48, v7""")
    pvgroup(1, 16)
    a(f"""ds_write_b128 v196, v[184:187] offset:{L_OR}
    ds_write_b128 v196, v[188:191] offset:{L_OR+1024}
    s_mov_b64 exec, 1
    ds_add_rtn_u32 v12, v198, v11 offset:{L_CNT}
    s_mov_b64 exec, -1
    s_waitcnt lgkmcnt(0)
    v_readfirstlane_b32 s48, v12
    s_cmp_lg_u32 s48, 3
    s_cbranch_scc1 L_noto""")
    for jj in range(2):
        for k in range(4): a(f"ds_read_b128 {v(80+16*jj+4*k,4)}, v7 offset:{L_OR+2048*k+1024*jj}")
    for jj in range(2):
        r = 80 + 16 * jj
        a(f"""s_waitcnt lgkmcnt({6-4*jj})
        v_pk_add_f32 {v(r,2)}, {v(r,2)}, {v(r+4,2)}
        v_pk_add_f32 {v(r+2,2)}, {v(r+2,2)}, {v(r+6,2)}
        s_waitcnt lgkmcnt({4-4*jj})
        v_pk_add_f32 {v(r+8,2)}, {v(r+8,2)}, {v(r+12,2)}
        v_pk_add_f32 {v(r+10,2)}, {v(r+10,2)}, {v(r+14,2)}
        v_pk_add_f32 {v(r,2)}, {v(r,2)}, {v(r+8,2)}
        v_pk_add_f32 {v(r+2,2)}, {v(r+2,2)}, {v(r+10,2)}""")
        tagins(r)
        a(f"global_store_dwordx4 v197, {v(r,4)}, s[34:35] offset:{1024*jj} sc1")
    a("L_noto:")
    stamp(8)
    a("s_barrier")
    stamp(9)
    a("s_cmp_ge_u32 s10, 28\ns_cbranch_scc1 L_noy")
    for t in range(2):
        for h in range(2): a(f"ds_read_b64_tr_b16 {v(32+4*t+2*h,2)}, v8 offset:{L_W2+t*4096+h*512}")
        a(f"ds_read_b128 {v(40+4*t,4)}, v10 offset:{L_HS+64*t}")
    a("""s_waitcnt lgkmcnt(0)
    v_mfma_f32_16x16x32_bf16 v[48:51], v[40:43], v[32:35], 0
    v_mfma_f32_16x16x32_bf16 v[48:51], v[44:47], v[36:39], v[48:51]""")
    tagins(48)
    a("s_mov_b64 exec, 0xffff\nglobal_store_dwordx4 v9, v[48:51], s[34:35] sc1\ns_mov_b64 exec, -1\nL_noy:")
    stamp(10)
    if prof:
        a("s_cmp_eq_u32 s3, 0\ns_cbranch_scc1 L_F\ns_barrier\ns_branch L_prof\nL_F:")
    else:
        a("s_cmp_eq_u32 s3, 0\ns_cbranch_scc1 L_F\ns_barrier\ns_endpgm\nL_F:")
    a(f"""v_lshrrev_b32 v8, 1, v1
    v_and_b32 v9, 1, v1
    v_lshlrev_b32 v8, 10, v8
    v_lshl_add_u32 v8, v9, 4, v8
    s_lshl_b32 s48, s4, 15
    s_lshl_b32 s49, s5, 5
    s_add_u32 s48, s48, s49
    s_add_u32 s48, s48, {SP}
    v_add_u32 v8, s48, v8
    v_add_u32 v10, {YP-SP}, v8
    v_lshlrev_b32 v9, 1, v9
    v_lshl_add_u32 v9, v3, 10, v9
    s_lshl_b32 s48, s4, 7
    s_lshl_b32 s49, s5, 2
    s_add_u32 s48, s48, s49
    v_add_u32 v9, s48, v9
    global_load_ushort v11, v9, s[16:17]
    v_mov_b32 v16, 0
    v_mov_b32 v17, 0
    v_mov_b32 v18, 0
    v_mov_b32 v19, 0
    s_mov_b32 exec_hi, 0xffffff
    s_barrier""")
    stamp(11)
    poll("L_py", ["global_load_dwordx4 v[16:19], v10, s[34:35] sc1"], 16, 4, 6)
    a("s_mov_b32 exec_hi, -1")
    def fred(r):
        a(f"""v_permlane32_swap_b32 v{r}, v{r+2}
        v_permlane32_swap_b32 v{r+1}, v{r+3}
        v_add_f32 v{r}, v{r}, v{r+2}
        v_add_f32 v{r+1}, v{r+1}, v{r+3}
        v_permlane16_swap_b32 v{r}, v{r+1}
        v_add_f32 v{r}, v{r}, v{r+1}""")
        for s in (8, 4, 2): a(f"v_add_f32_dpp v{r}, v{r}, v{r} row_ror:{s} {DPPF}")
        a(f"v_cvt_pk_bf16_f32 v{r}, 0, v{r}")
    fred(16)
    a(f"""v_mul_f32 v17, 0xbfb8aa3b, v16
    v_exp_f32 v17, v17
    v_lshlrev_b32 v11, 16, v11
    v_add_f32 v17, 1.0, v17
    v_rcp_f32 v17, v17
    s_add_u32 s11, s11, 1
    v_mul_f32 v16, v16, v17
    v_cvt_pk_bf16_f32 v16, 0, v16""")
    stamp(13)
    poll("L_ps", ["global_load_dwordx4 v[20:23], v8, s[34:35] sc1"], 20, 4, 6)
    stamp(14)
    if prof: a(f"s_sub_u32 s90, {cap}, s56")
    fred(20)
    a(f"""v_mul_f32 v20, v20, v16
    v_cvt_pk_bf16_f32 v20, 0, v20
    v_add_f32 v20, v20, v11
    v_cvt_pk_bf16_f32 v20, v20, v20
    s_mov_b32 exec_lo, 0x00030003
    s_mov_b32 exec_hi, 0x00030003
    global_store_short v9, v20, s[32:33]
    s_cmp_lg_u32 s2, 0
    s_cbranch_scc1 {"L_prof" if prof else "L_end"}
    s_mov_b64 exec, 1
    v_mov_b32 v8, 0
    v_mov_b32 v10, s11
    global_store_dword v8, v10, s[34:35]""")
    if prof == 2:
        a("L_prof:\ns_mov_b64 exec, -1")
        if didx == 16: a("s_memrealtime s[92:93]")
        a("v_lshrrev_b32 v4, 6, v0\nv_readfirstlane_b32 s48, v4")
        lo, hi = dict(H=(0, 0), B=(0, 3), A=(4, 7), F=(4, 4))[drole]
        a(f"s_cmp_lt_u32 s48, {lo}\ns_cbranch_scc1 L_end\ns_cmp_gt_u32 s48, {hi}\ns_cbranch_scc1 L_end")
        a(f"""s_waitcnt lgkmcnt(0)
        s_sub_u32 s48, s{60+2*didx}, s60
        s_lshl_b32 s48, s48, 2
        s_add_u32 s48, s48, s60
        s_add_u32 s48, s48, 2000
        L_spin:
        s_sleep 1
        s_memrealtime s[50:51]
        s_waitcnt lgkmcnt(0)
        s_sub_u32 s50, s50, s48
        s_cmp_lt_i32 s50, 0
        s_cbranch_scc1 L_spin""")
    if prof == 1:
        a("L_prof:\ns_mov_b64 exec, -1\ns_memrealtime s[92:93]\ns_getreg_b32 s94, hwreg(HW_REG_XCC_ID)\ns_getreg_b32 s96, hwreg(HW_REG_HW_ID)\ns_waitcnt lgkmcnt(0)")
        for i in range(19): a(f"v_writelane_b32 v3, s{60+2*i}, {i}")
        a(f"""v_lshrrev_b32 v4, 6, v0
        s_mul_i32 s48, s2, 8
        v_add_u32 v4, s48, v4
        v_lshlrev_b32 v4, 7, v4
        v_lshl_add_u32 v4, v1, 2, v4
        v_add_u32 v4, {PROF}, v4
        s_mov_b64 exec, 0x7ffff
        global_store_dword v4, v3, s[34:35]""")
    a("L_end:\ns_endpgm")
    head = [l for l in open(REF).read().split("\n") if l.startswith(";") and "@launch" not in l]
    txt = "\n".join(head) + f"\n; @launch grid=(256,1,1) block=(512,1,1) lds=65536\n"
    txt += f'.amdgcn_target "amdgcn-amd-amdhsa--gfx950"\n.text\n.globl {NAME}_kernel\n.p2align 8\n.type {NAME}_kernel,@function\n'
    txt += a.text()
    txt += f'''.section .rodata,"a"
.p2align 6
.amdhsa_kernel {NAME}_kernel
  .amdhsa_next_free_vgpr 200
  .amdhsa_next_free_sgpr 100
  .amdhsa_accum_offset 200
  .amdhsa_group_segment_fixed_size 0
  .amdhsa_kernarg_size 88
  .amdhsa_user_sgpr_count 2
  .amdhsa_user_sgpr_kernarg_segment_ptr 1
  .amdhsa_system_sgpr_workgroup_id_x 1
  .amdhsa_float_denorm_mode_32 3
.end_amdhsa_kernel
'''
    return txt
if __name__ == "__main__":
    out = sys.argv[1]; kw = {}
    for x in sys.argv[2:]:
        k, val = x.split("=")
        try: val = int(val, 0)
        except ValueError: pass
        kw[k] = val
    open(out, "w").write(gen(**kw))
```

```python
import sys
from asmlib import Asm
NAME = "recurrent_scan__sliding_block_cached__dense_activation_relu__decode"
REF = "cdna_kernels/" + NAME + ".s.ref"
QP, HP, OP, SP, YP, ML, PROF = 0x4000, 0x44000, 0xf4000, 0x174000, 0x1b4000, 0x1000, 0x400000
BOFF = 0x78000
L_WQ, L_W1, L_WO, L_W2, L_OR = 0, 16384, 24576, 40960, 49152
L_XS0, L_XS1, L_QS, L_HS, L_OS, L_ML, L_FL, L_P, L_K = 57344, 58368, 59392, 60416, 60928, 61952, 62080, 62464, 65536
F_W, F_K, F_M, F_P, F_Q = L_FL, L_FL + 16, L_FL + 32, L_FL + 48, L_FL + 64
TAGM = 0x3FF
LOG2E = "0x3fb8aa3b"
DPPF = "row_mask:0xf bank_mask:0xf"
NW = 10
def v(a, n=1): return f"v{a}" if n == 1 else f"v[{a}:{a+n-1}]"
MF = "v_mfma_f32_16x16x32_bf16"

def gen(prof=0, diag=None, nt="nt", wnt="nt", rot=9, rsh=0, cap=1 << 18, th=6, cw=1, fast=1, ntry=5, w2pos=0, **kw):
    a = Asm()
    if diag is not None: prof = 2; drole, didx = diag[0], int(diag[1:])
    stubs = []
    def stamp(i):
        if prof == 1 or (prof == 2 and i in (0, didx)): a(f"s_memrealtime s[{60+2*i}:{61+2*i}]")
    def endwave(): a("s_branch L_prof" if prof else "s_endpgm")
    def tags():
        a("s_add_u32 s12, s11, 1\ns_add_u32 s13, s11, 0x156\ns_add_u32 s14, s11, 0x2ab\ns_add_u32 s15, s11, 0xc4")
        for k in range(4): a(f"s_and_b32 s{12+k}, s{12+k}, {TAGM}")
    def tagins(r):
        for k in range(4): a(f"v_bfi_b32 v{r+k}, v2, s{12+k}, v{r+k}")
    def check(r0, n, acc):
        for i in range(n): a(f"v_xor_b32 v{r0+i}, s{12+i%4}, v{r0+i}")
        a(f"v_or3_b32 v{acc}, v{r0}, v{r0+1}, v{r0+2}")
        for i in range(3, n - 1, 2): a(f"v_or3_b32 v{acc}, v{r0+i}, v{r0+i+1}, v{acc}")
        a(f"v_bitop3_b32 v{acc}, v{r0+n-1}, v{acc}, v2 bitop3:0xa8")
    def cstore(name, ins, inv=False):
        a(f"s_cbranch_scc{0 if inv else 1} {name}_s\n{ins}{' sc1' if inv else ''}\n{name}_e:")
        stubs.append(f"{name}_s:\n{ins}{'' if inv else ' sc1'}\ns_branch {name}_e")
    def gpoll(name, loads, r0, n, acc):
        a(f"{name}_c:\ns_waitcnt vmcnt(0)")
        check(r0, n, acc)
        a(f"v_cmp_ne_u32 vcc, 0, v{acc}\ns_cbranch_vccnz {name}")
        stubs.append(f"{name}:\n" + "\n".join(loads) + f"\ns_sub_u32 s56, s56, 1\ns_cbranch_scc0 {name}_c\ns_endpgm")
    def fwait(name, addr, off, n, vt):
        a(f"{name}_c:\nds_read_b{32*n} {v(vt,n)}, {addr} offset:{off}\ns_waitcnt lgkmcnt(0)")
        if n == 4: a(f"v_bitop3_b32 v{vt}, v{vt}, v{vt+1}, v{vt+2} bitop3:0x80\nv_and_b32 v{vt}, v{vt}, v{vt+3}")
        a(f"v_cmp_eq_u32 vcc, 0, v{vt}\ns_cbranch_vccnz {name}")
        stubs.append(f"{name}:\ns_sleep 1\ns_sub_u32 s56, s56, 1\ns_cbranch_scc0 {name}_c\ns_endpgm")
    def getU(vt): a(f"v_readfirstlane_b32 s52, v{vt}\ns_lshr_b32 s52, s52, 1\ns_cmp_eq_u32 s8, s4\ns_cselect_b32 s53, s52, 0")
    def lanes(): a("v_lshrrev_b32 v3, 4, v1\nv_bfe_u32 v4, v1, 2, 2\nv_and_b32 v5, 3, v1\nv_lshlrev_b32 v7, 4, v1")
    def sidx(d): a(f"s_lshl_b32 {d}, s4, 2\ns_add_u32 {d}, {d}, s6\ns_lshl_b32 {d}, {d}, 3\ns_add_u32 {d}, {d}, s7")
    a(f"{NAME}_kernel:")
    stamp(0)
    a("""s_cmp_ge_u32 s2, 256
    s_cbranch_scc1 L_end
    s_load_dwordx16 s[16:31], s[0:1], 0
    s_load_dwordx2 s[34:35], s[0:1], 80
    s_load_dwordx2 s[32:33], s[0:1], 64""")
    if cw: a("""s_getpc_b64 s[48:49]
    L_pc:
    v_lshlrev_b32 v3, 7, v0
    v_cmp_gt_u32 vcc, L_end-L_pc, v3
    s_and_saveexec_b64 s[50:51], vcc
    s_cbranch_execz L_nocw
    global_load_dword v15, v3, s[48:49]
    L_nocw:
    s_mov_b64 exec, s[50:51]""")
    a(f"""v_lshrrev_b32 v3, 6, v0
    v_and_b32 v1, 63, v0
    v_readfirstlane_b32 s3, v3
    s_and_b32 s4, s2, 7
    s_lshr_b32 s5, s2, 3
    s_and_b32 s6, s5, 3
    s_lshr_b32 s7, s5, 2
    s_and_b32 s8, s5, 7
    s_lshr_b32 s9, s5, 3
    s_lshl_b32 s10, s4, 2
    s_add_u32 s10, s10, s9
    s_mov_b32 s56, {cap}
    v_mov_b32 v2, {TAGM}
    s_cmp_lt_u32 s3, 6
    s_cbranch_scc1 L_HB""")
    a(f"""s_setprio 2
    s_sub_u32 s3, s3, 6
    v_lshrrev_b32 v13, 3, v1
    v_and_b32 v14, 7, v1
    v_lshlrev_b32 v14, 4, v14
    v_lshl_add_u32 v8, v13, 13, v14
    v_mul_u32_u24 v9, 3584, v13
    v_add_u32 v9, v9, v14
    s_lshl_b32 s51, s9, 20
    s_lshl_b32 s49, s4, 10
    s_add_u32 s51, s51, s49
    s_lshl_b32 s55, s8, 7
    s_add_u32 s51, s51, s55
    s_lshl_b32 s49, s3, 18
    s_add_u32 s51, s51, s49
    s_lshl_b32 s49, s3, 12
    s_add_u32 m0, s49, {L_WQ}
    s_mov_b32 s46, {4<<20}
    s_mov_b32 s47, 0x20000
    s_lshl_b32 s54, s8, 2
    s_add_u32 s54, s54, s3
    s_mul_i32 s54, s54, {16*3584}
    s_lshl_b32 s49, s10, 7
    s_add_u32 s54, s54, s49
    s_lshl_b32 s48, s6, 24
    s_lshl_b32 s49, s4, 21
    s_add_u32 s48, s48, s49
    s_lshl_b32 s49, s7, 16
    s_add_u32 s48, s48, s49
    s_add_u32 s48, s48, 0x180000
    s_lshr_b32 s50, s2, {rsh}
    s_mul_i32 s50, s50, {rot}
    s_add_u32 s50, s50, s3
    s_lshl_b32 s50, s50, 10
    s_and_b32 s50, s50, 0xffff
    s_mov_b32 s38, 0x10000
    s_mov_b32 s39, 0x20000
    s_mov_b32 s42, 0x10000
    s_mov_b32 s43, 0x20000""")
    lanes()
    a("""v_lshlrev_b32 v6, 4, v5
    v_lshl_add_u32 v6, v3, 6, v6
    v_lshl_add_u32 v6, v4, 8, v6
    s_waitcnt lgkmcnt(0)
    s_mov_b32 s44, s22
    s_mov_b32 s45, s23
    s_barrier""")
    stream = [("q", j) for j in range(4)] + [("1", j) for j in range(2)] + [("K", j) for j in range(16)] + ([("2", 0), ("2", 1)] if w2pos else []) + [("V", j) for j in range(16)] + [("o", j) for j in range(4)]
    pos = {x: n for n, x in enumerate(stream)}
    st = dict(n=0, perm=0)
    VR, TR, AR, AC = 16, 80, 112, 144
    def waitfor(x): a(f"s_waitcnt vmcnt({st['n'] - 1 - pos[x]})")
    def breg(pp, j): return (TR if pp == 0 else VR) + 4 * j
    def mf(pp, jm): a(f"{MF} {v(AC+4*(jm>>2),4)}, {v(AR+16*pp+4*(jm&3),4)}, {v(breg(pp,jm),4)}, {v(AC+4*(jm>>2),4) if (pp or jm&3) else 0}")
    def perms(last=False):
        p = st["perm"]; pp, w = p >> 2, p & 3; i = 2 * p
        for j in range(8):
            a(f"v_perm_b32 v{breg(pp,j)+w}, v{VR+4*(i+1)+(j>>1)}, v{VR+4*i+(j>>1)}, s{57+(j&1)}")
            if last and j >= 2: mf(1, j - 2)
        st["perm"] += 1
    def ld():
        n = st["n"]; k, j = stream[n]
        if j == 0 and k == "1": a(f"s_mov_b32 s44, s28\ns_mov_b32 s45, s29\ns_cmp_ge_u32 s10, 28\ns_cselect_b32 s46, 0, {1792*1024}\ns_mov_b32 s51, s54\ns_lshl_b32 s49, s3, 11\ns_add_u32 m0, s49, {L_W1}")
        if j == 0 and k == "K": a(f"s_lshl_b32 s49, s3, 14\ns_add_u32 m0, s49, {L_K}")
        if j == 0 and k == "2": a(f"s_mov_b32 s44, s30\ns_mov_b32 s45, s31\ns_lshl_b32 s51, s10, 16\ns_add_u32 s51, s51, s55\ns_lshl_b32 s49, s3, 14\ns_add_u32 s51, s51, s49\ns_lshl_b32 s49, s3, 11\ns_add_u32 m0, s49, {L_W2}")
        if j == 0 and k == "o": a(f"s_mov_b32 s44, s24\ns_mov_b32 s45, s25\ns_mov_b32 s46, {4<<20}\ns_mov_b32 s51, s54\ns_lshl_b32 s49, s3, 12\ns_add_u32 m0, s49, {L_WO}")
        if n >= th: a(f"s_waitcnt vmcnt({th-1})")
        if k == "K": a(f"buffer_load_dwordx4 v6, s[36:39], s50 offen {nt} lds")
        elif k == "V": a(f"buffer_load_dwordx4 {v(VR+4*j,4)}, v7, s[40:43], s50 offen {nt}")
        else: a(f"buffer_load_dwordx4 {dict(q='v8', o='v10').get(k, 'v9')}, s[44:47], s51 offen {wnt} lds")
        if k in "KV": a("s_add_u32 s50, s50, 4096\ns_and_b32 s50, s50, 0xffff")
        else: a(f"s_add_u32 s51, s51, {dict(q=65536, o=16384).get(k) or {'1': 8*3584, '2': 8192}[k]}")
        if k != "V": a("s_add_u32 m0, m0, 1024")
        if k == "o": a("v_xor_b32 v10, 64, v10")
        st["n"] += 1
        if n == 0:
            a("s_load_dword s11, s[34:35], 0\ns_add_u32 s36, s18, s48\ns_addc_u32 s37, s19, 0\ns_add_u32 s40, s20, s48\ns_addc_u32 s41, s21, 0"); stamp(1)
        if n == 5 + th: a(f"ds_write_b32 v12, v2 offset:{F_W}")
        if n == pos[("V", 0)] - 1 + th: a(f"ds_write_b32 v12, v2 offset:{F_K}")
        if (k, j) == ("K", 15): stamp(2)
        if (k, j) == ("V", 15): stamp(3)
        while st["perm"] < 7 and pos[("V", 2 * st["perm"] + 1)] <= n - th: perms()
    while st["n"] < max(th, 6): ld()
    a(f"""v_lshl_add_u32 v9, v13, 10, v14
    v_and_b32 v15, 3, v13
    v_lshl_add_u32 v10, v15, 17, v14
    v_lshrrev_b32 v13, 2, v13
    v_lshl_add_u32 v10, v13, 13, v10
    v_bfe_u32 v15, v1, 4, 1
    v_lshlrev_b32 v15, 5, v15
    v_xor_b32 v10, v15, v10
    s_lshl_b32 s54, s4, 9
    s_and_b32 s49, s3, 1
    s_lshl_b32 s49, s49, 6
    s_add_u32 s54, s54, s49
    s_lshl_b32 s49, s9, 1
    s_add_u32 s54, s54, s49
    s_lshr_b32 s49, s3, 1
    s_add_u32 s54, s54, s49
    s_lshl_b32 s54, s54, 10
    s_add_u32 s54, s54, s55
    s_lshl_b32 s49, s3, 2
    v_mov_b32 v12, s49
    s_lshl_b32 s49, s3, 9
    v_add_u32 v11, s49, v7
    v_lshlrev_b32 v15, 4, v5
    v_lshl_add_u32 v15, v3, 6, v15
    v_add_u32 v15, s49, v15
    s_lshl_b32 s49, s3, 11
    v_add_u32 v13, s49, v7
    s_mov_b32 s57, 0x05040100
    s_mov_b32 s58, 0x07060302""")
    sidx("s48")
    a(f"s_lshl_b32 s48, s48, 11\ns_add_u32 s48, s48, {OP}\nv_add_u32 v14, s48, v11")
    for i in range(32): a(f"v_mov_b32 v{AR+i}, 0")
    while st["n"] < len(stream): ld()
    stamp(4)
    fwait("L_wp", "v12", F_P, 1, 8)
    for u in range(4):
        a(f"s_mov_b32 exec_lo, {0x000f000f << (4*u):#x}\ns_mov_b32 exec_hi, {0x000f000f << (4*u):#x}")
        for pp in range(2): a(f"ds_read_b128 {v(AR+16*pp+4*u,4)}, v15 offset:{L_P+256*pp}")
    a("s_mov_b64 exec, -1")
    getU(8); tags()
    stamp(6)
    a("s_waitcnt lgkmcnt(0)")
    assert st["perm"] >= 4
    for jm in range(8): mf(0, jm)
    while st["perm"] < 7:
        waitfor(("V", 2 * st["perm"] + 1)); perms()
    waitfor(("V", 15))
    stamp(7)
    perms(last=True); mf(1, 6); mf(1, 7)
    a(f"""ds_write_b128 v13, {v(AC,4)} offset:{L_OR}
    s_cmp_eq_u32 s52, 0
    ds_write_b128 v13, {v(AC+4,4)} offset:{L_OR+1024}
    s_mov_b32 exec_hi, 0
    s_waitcnt lgkmcnt(0)
    s_barrier""")
    for k in range(4): a(f"ds_read_b128 {v(80+4*k,4)}, v11 offset:{L_OR+2048*k}")
    for k in range(1, 4): a(f"s_waitcnt lgkmcnt({3-k})\nv_pk_add_f32 v[80:81], v[80:81], {v(80+4*k,2)}\nv_pk_add_f32 v[82:83], v[82:83], {v(82+4*k,2)}")
    tagins(80)
    cstore("L_so", "global_store_dwordx4 v14, v[80:83], s[34:35]")
    a("s_mov_b32 exec_hi, -1\ns_setprio 0")
    stamp(8)
    a("s_cmp_eq_u32 s3, 0\ns_cbranch_scc1 L_F\ns_waitcnt vmcnt(1)")
    stamp(10)
    a("s_barrier")
    endwave()
    a(f"""L_F:
    v_lshrrev_b32 v8, 1, v1
    v_and_b32 v9, 1, v1
    v_lshlrev_b32 v8, 10, v8
    v_lshl_add_u32 v8, v9, 4, v8
    s_lshl_b32 s48, s4, 15
    s_lshl_b32 s49, s5, 5
    s_add_u32 s48, s48, s49
    s_add_u32 s48, s48, {SP}
    v_add_u32 v8, s48, v8
    v_add_u32 v10, {YP-SP}, v8
    v_lshlrev_b32 v9, 1, v9
    v_lshl_add_u32 v9, v3, 10, v9
    s_lshl_b32 s48, s4, 7
    s_lshl_b32 s49, s5, 2
    s_add_u32 s48, s48, s49
    v_add_u32 v9, s48, v9
    global_load_ushort v11, v9, s[16:17]
    v_mov_b32 v16, 0
    v_mov_b32 v17, 0
    v_mov_b32 v18, 0
    v_mov_b32 v19, 0
    s_mov_b32 exec_hi, 0xffffff
    global_load_dwordx4 v[16:19], v10, s[34:35] sc1
    s_waitcnt vmcnt(3)""")
    stamp(10)
    a("s_barrier")
    stamp(11)
    gpoll("L_py", ["global_load_dwordx4 v[16:19], v10, s[34:35] sc1"], 16, 4, 6)
    a("s_mov_b32 exec_hi, -1")
    def fred(r):
        a(f"""v_permlane32_swap_b32 v{r}, v{r+2}
        v_permlane32_swap_b32 v{r+1}, v{r+3}
        v_add_f32 v{r}, v{r}, v{r+2}
        v_add_f32 v{r+1}, v{r+1}, v{r+3}
        v_permlane16_swap_b32 v{r}, v{r+1}
        v_add_f32 v{r}, v{r}, v{r+1}""")
        for s in (8, 4, 2): a(f"v_add_f32_dpp v{r}, v{r}, v{r} row_ror:{s} {DPPF}")
        a(f"v_cvt_pk_bf16_f32 v{r}, 0, v{r}")
    fred(16)
    a(f"""v_mul_f32 v17, 0xbfb8aa3b, v16
    v_exp_f32 v17, v17
    v_lshlrev_b32 v11, 16, v11
    v_add_f32 v17, 1.0, v17
    v_rcp_f32 v17, v17
    s_add_u32 s11, s11, 1
    v_mul_f32 v16, v16, v17
    v_cvt_pk_bf16_f32 v16, 0, v16""")
    stamp(13)
    if prof: a("s_mov_b32 s90, s56")
    a("s_setprio 3\nglobal_load_dwordx4 v[20:23], v8, s[34:35] sc1")
    gpoll("L_ps", ["global_load_dwordx4 v[20:23], v8, s[34:35] sc1"], 20, 4, 6)
    stamp(14)
    if prof: a("s_sub_u32 s90, s90, s56")
    fred(20)
    a(f"""v_mul_f32 v20, v20, v16
    s_mov_b32 exec_lo, 0x00030003
    v_cvt_pk_bf16_f32 v20, 0, v20
    s_mov_b32 exec_hi, 0x00030003
    v_add_f32 v20, v20, v11
    s_cmp_lg_u32 s2, 0
    v_cvt_pk_bf16_f32 v20, v20, v20
    global_store_short v9, v20, s[32:33]
    s_cbranch_scc1 {"L_prof" if prof else "L_end"}
    s_mov_b64 exec, 1
    v_mov_b32 v8, 0
    v_mov_b32 v10, s11
    global_store_dword v8, v10, s[34:35]""")
    endwave()
    def hwave(q):
        nk = 4 if q else 2
        lw = L_WQ if q else L_W1; xs = L_XS0 if q else L_XS1
        a("v_lshrrev_b32 v3, 4, v1\nv_and_b32 v4, 15, v1\nv_lshlrev_b32 v4, 4, v4\nv_lshl_add_u32 v3, v3, 10, v4")
        a("s_mov_b32 s48, s9" if q else "s_lshr_b32 s48, s8, 1")
        for i in range(4): a(f"s_add_u32 s49, s48, {i}\ns_and_b32 s49, s49, 3\ns_lshl_b32 s49, s49, 8\nv_add_u32 v{4+i}, s49, v3")
        a("s_waitcnt lgkmcnt(0)")
        for i in range(4): a(f"global_load_dwordx4 {v(16+4*i,4)}, v{4+i}, s[16:17]")
        a("s_barrier\ns_load_dword s11, s[34:35], 0")
        stamp(1)
        lanes()
        a(f"""v_lshl_add_u32 v10, v3, 3, v4
        v_lshlrev_b32 v10, 7, v10
        v_lshl_add_u32 v10, v5, 5, v10
        v_lshlrev_b32 v11, 4, v3
        v_lshl_add_u32 v11, v4, 8, v11
        v_lshlrev_b32 v12, 6, v3
        v_lshl_add_u32 v12, v5, 4, v12
        v_lshl_add_u32 v12, v4, {13 if q else 8}, v12
        v_mov_b32 v9, 0
        s_mov_b32 s52, 0xaaaaaaaa
        s_mov_b32 s53, 0xaaaaaaaa
        s_mov_b32 s54, 0xcccccccc
        s_mov_b32 s55, 0xcccccccc
        s_mov_b32 s59, 0x3f803f80
        s_getreg_b32 s58, hwreg(HW_REG_XCC_ID)
        s_and_b32 s58, s58, 15
        s_lshl_b32 s58, s58, 6""")
        if q: a(f"s_lshl_b32 s49, s4, 15\ns_lshl_b32 s50, s9, 11\ns_add_u32 s50, s50, s49\ns_lshl_b32 s51, s8, 8\ns_add_u32 s50, s50, s51\ns_add_u32 s50, s50, {QP}\ns_lshl_b32 s51, s6, 13\ns_add_u32 s49, s49, s51\ns_add_u32 s49, s49, {QP+4096}")
        else: a(f"s_and_b32 s49, s8, 1\ns_lshl_b32 s49, s49, 7\nv_add_u32 v11, s49, v11\ns_lshl_b32 s49, s10, 13\ns_lshl_b32 s50, s8, 10\ns_add_u32 s50, s50, s49\ns_add_u32 s50, s50, {HP}\ns_add_u32 s49, s49, {HP+4096}")
        a("v_add_u32 v12, s50, v12\nv_add_u32 v13, s49, v7\ns_waitcnt vmcnt(0)")
        stamp(2)
        a("v_dot2_f32_bf16 v48, v16, s59, 0\nv_dot2_f32_bf16 v49, v16, v16, 0")
        for i in range(1, 16): a(f"v_dot2_f32_bf16 v48, v{16+i}, s59, v48\nv_dot2_f32_bf16 v49, v{16+i}, v{16+i}, v49")
        for s in (8, 4, 2, 1): a(f"v_add_f32_dpp v48, v48, v48 row_ror:{s} {DPPF}\nv_add_f32_dpp v49, v49, v49 row_ror:{s} {DPPF}")
        a("""v_mul_f32 v48, 0x3b000000, v48
        v_mul_f32 v49, 0x3b000000, v49
        v_fma_f32 v49, -v48, v48, v49
        v_max_f32 v49, 0, v49
        v_cvt_pk_bf16_f32 v49, 0, v49
        v_add_f32 v49, 0x3727c5ac, v49
        v_cvt_pk_bf16_f32 v49, 0, v49
        v_sqrt_f32 v49, v49
        v_cvt_pk_bf16_f32 v48, 0, v48
        v_cvt_pk_bf16_f32 v49, 0, v49
        v_rcp_f32 v49, v49""")
        for i in range(4):
            a(f"""v_lshlrev_b32 v50, 16, v{16+i}
            v_and_b32 v51, 0xffff0000, v{16+i}
            v_sub_f32 v50, v50, v48
            v_sub_f32 v51, v51, v48
            v_cvt_pk_bf16_f32 v50, 0, v50
            v_cvt_pk_bf16_f32 v51, 0, v51
            v_mul_f32 v50, v50, v49
            v_mul_f32 v51, v51, v49
            v_cvt_pk_bf16_f32 v{16+i}, v50, v51""")
        a(f"ds_write_b128 v7, v[16:19] offset:{xs}")
        for t in range(nk): a(f"ds_read_b128 {v(32+4*t,4)}, v11 offset:{xs+64*t}")
        stamp(3)
        a("s_waitcnt lgkmcnt(0)")
        tags()
        nm = "L_pq" if q else "L_ph"
        fwait(nm + "w", "v9", F_W, 4, 20)
        stamp(4)
        if prof: a("s_waitcnt lgkmcnt(0)")
        trr = lambda t, tt: [a(f"ds_read_b64_tr_b16 {v(48+16*t+4*tt+2*h,2)}, v10 offset:{lw+t*4096+h*512+tt*8}") for h in range(2)]
        for tt in range(4): trr(0, tt)
        for t in range(nk):
            for tt in range(4):
                a(f"s_waitcnt lgkmcnt({6 if t + 1 < nk else 6-2*tt})")
                if t + 1 < nk: trr(t + 1, tt)
                a(f"{MF} {v(112+4*tt,4)}, {v(48+16*t+4*tt,4)}, {v(32+4*t,4)}, {v(112+4*tt,4) if t else 0}")
        for r in range(4): a(f"v_cndmask_b32 v{112+r}, v{112+r}, v{116+r}, s[52:53]")
        for r in range(4): a(f"v_cndmask_b32 v{120+r}, v{120+r}, v{124+r}, s[52:53]")
        for r in range(4): a(f"v_cndmask_b32 v{112+r}, v{112+r}, v{120+r}, s[54:55]")
        for r in range(4): a(f"v_bfi_b32 v{116+r}, v2, s{12+r}, v{112+r}")
        for r in range(4): a(f"s_xor_b32 s{12+r}, s{12+r}, s58")
        tagins(112)
        a(f"global_store_dwordx4 v12, v[112:115], s[34:35]\nv_add_u32 v12, {BOFF}, v12\nglobal_store_dwordx4 v12, v[116:119], s[34:35] sc1")
        stamp(5)
        a("s_waitcnt vmcnt(0)")
        if not q and not w2pos:
            a(f"v_lshrrev_b32 v6, 3, v1\nv_and_b32 v8, 7, v1\nv_lshlrev_b32 v8, 4, v8\nv_lshl_add_u32 v6, v6, 10, v8\ns_lshl_b32 s48, s10, 16\ns_lshl_b32 s49, s8, 7\ns_add_u32 s48, s48, s49\nv_add_u32 v6, s48, v6\ns_mov_b32 m0, {L_W2}")
            for j in range(8):
                if j: a("v_add_u32 v6, 8192, v6\ns_add_u32 m0, m0, 1024")
                a(f"global_load_lds_dwordx4 v6, s[30:31] {wnt}")
        if not q and w2pos: fwait("L_phk", "v9", F_K, 4, 20)
        stamp(6)
        a(f"s_mov_b32 s57, {ntry}")
        if not fast: a(f"s_branch {nm}_sw")
        a(f"{nm}:")
        for i in range(8): a(f"global_load_dwordx4 {v(16+4*i,4)}, v13, s[34:35] offset:{i*1024-4096} sc1")
        a("s_waitcnt vmcnt(0)")
        check(16, 32, 6)
        a(f"v_cmp_ne_u32 vcc, 0, v6\ns_cbranch_vccnz {nm}_r")
        stubs.append(f"""{nm}_r:
        s_sub_u32 s56, s56, 1
        s_cbranch_scc1 L_end
        s_sub_u32 s57, s57, 1
        s_cmp_lg_u32 s57, 0
        s_cbranch_scc1 {nm}
        {nm}_sw:
        s_mov_b32 s57, 0
        v_add_u32 v13, {BOFF}, v13
        s_xor_b32 s12, s12, s58
        s_xor_b32 s13, s13, s58
        s_xor_b32 s14, s14, s58
        s_xor_b32 s15, s15, s58
        s_branch {nm}""")
        stamp(7)
        if prof: a(f"s_sub_u32 s76, {ntry+1}, s57")
        a("v_lshlrev_b32 v14, 3, v1")
        if q:
            for i in range(0, 8, 2): a(f"v_pk_add_f32 {v(16+i,2)}, {v(16+i,2)}, {v(24+i,2)}\nv_pk_add_f32 {v(32+i,2)}, {v(32+i,2)}, {v(40+i,2)}")
            for i in range(0, 8, 2): a(f"v_pk_add_f32 {v(16+i,2)}, {v(16+i,2)}, {v(32+i,2)}")
            for i in range(4): a(f"v_cvt_pk_bf16_f32 v{16+i}, v{16+2*i}, v{17+2*i}")
            a(f"""s_cmp_gt_i32 s57, 0
            s_cselect_b32 s48, 3, 1
            ds_write_b64 v14, v[16:17] offset:{L_QS}
            v_mov_b32 v6, s48
            ds_write_b64 v14, v[18:19] offset:{L_QS+512}
            ds_write_b32 v9, v6 offset:{F_Q}
            s_waitcnt lgkmcnt(0)""")
        else:
            tags()
            for i in range(0, 16, 2): a(f"v_pk_add_f32 {v(16+i,2)}, {v(16+i,2)}, {v(32+i,2)}")
            for i in range(0, 8, 2): a(f"v_pk_add_f32 {v(16+i,2)}, {v(16+i,2)}, {v(24+i,2)}")
            for i in range(0, 4, 2): a(f"v_pk_add_f32 {v(16+i,2)}, {v(16+i,2)}, {v(20+i,2)}")
            for i in range(4): a(f"v_max_f32 v{16+i}, 0, v{16+i}")
            a(f"""v_cvt_pk_bf16_f32 v16, v16, v17
            v_cvt_pk_bf16_f32 v17, v18, v19
            ds_write_b64 v14, v[16:17] offset:{L_HS}
            v_lshlrev_b32 v11, 4, v3
            v_lshl_add_u32 v11, v5, 7, v11
            v_lshl_add_u32 v10, v3, 3, v4
            v_lshlrev_b32 v10, 7, v10
            v_lshl_add_u32 v10, v5, 3, v10
            s_lshl_b32 s48, s8, 15
            s_lshl_b32 s49, s10, 10
            s_add_u32 s48, s48, s49
            s_add_u32 s48, s48, {YP}
            v_add_u32 v12, s48, v7""")
            for t in range(2):
                a(f"ds_read_b128 {v(32+4*t,4)}, v11 offset:{L_HS+64*t}")
                for tt in range(4):
                    for h in range(2): a(f"ds_read_b64_tr_b16 {v(48+16*t+4*tt+2*h,2)}, v10 offset:{L_W2+t*4096+h*512+tt*32}")
                a("s_waitcnt lgkmcnt(0)")
                for tt in range(4): a(f"{MF} {v(112+4*tt,4)}, {v(32+4*t,4)}, {v(48+16*t+4*tt,4)}, {v(112+4*tt,4) if t else 0}")
            for tt in range(1, 4):
                for r in range(4): a(f"v_mov_b32_dpp v{112+r}, v{112+4*tt+r} quad_perm:[0,1,2,3] row_mask:{1<<tt} bank_mask:0xf")
            tagins(112)
            a("global_store_dwordx4 v12, v[112:115], s[34:35] sc1")
            stamp(11)
        a("s_barrier\ns_barrier")
        endwave()
    a("L_HB:\ns_cmp_ge_u32 s3, 2\ns_cbranch_scc1 L_B\ns_setprio 3\ns_cmp_lg_u32 s3, 0\ns_cbranch_scc1 L_H1")
    hwave(1)
    a("L_H1:\ns_cmp_ge_u32 s10, 28\ns_cbranch_scc1 L_end")
    hwave(0)
    a("L_B:\ns_sub_u32 s3, s3, 2")
    lanes()
    a(f"""v_mov_b32 v90, 0
    v_lshlrev_b32 v8, 2, v1
    s_cmp_lg_u32 s3, 2
    s_cbranch_scc1 L_nofl
    ds_write_b32 v8, v90 offset:{L_FL}
    L_nofl:""")
    sidx("s51")
    a(f"""v_and_b32 v8, 1, v1
    v_lshlrev_b32 v8, 7, v8
    v_bfe_u32 v9, v1, 1, 2
    v_lshl_add_u32 v8, v9, 13, v8
    s_lshl_b32 s49, s4, 15
    s_lshl_b32 s50, s9, 11
    s_add_u32 s50, s50, s49
    s_lshl_b32 s49, s8, 8
    s_add_u32 s50, s50, s49
    s_add_u32 s50, s50, {QP}
    v_add_u32 v8, s50, v8
    v_lshlrev_b32 v9, 7, v1
    s_lshl_b32 s49, s10, 13
    s_lshl_b32 s50, s8, 10
    s_add_u32 s50, s50, s49
    s_add_u32 s50, s50, {HP-1024}
    s_mov_b64 exec, 0xff00
    v_add_u32 v8, s50, v9
    s_lshl_b32 s50, s51, 11
    s_add_u32 s50, s50, {OP-2048}
    s_mov_b32 exec_lo, 0xffff0000
    v_add_u32 v8, s50, v9
    s_lshl_b32 s54, s8, 15
    s_lshl_b32 s49, s10, 10
    s_add_u32 s54, s54, s49
    s_add_u32 s54, s54, {SP}
    s_sub_u32 s50, s54, 4096
    s_mov_b32 exec_lo, 0
    s_mov_b32 exec_hi, -1
    v_add_u32 v8, s50, v9
    s_mov_b64 exec, -1
    s_lshl_b32 s51, s51, 5
    s_add_u32 s51, s51, {ML}
    v_writelane_b32 v8, s51, 40
    s_waitcnt lgkmcnt(0)
    s_barrier
    s_load_dword s11, s[34:35], 0
    s_cmp_lg_u32 s3, 0
    s_cbranch_scc1 L_nopre
    s_cmp_eq_u32 s8, s4
    s_cselect_b32 exec_hi, 0x1ff, 0
    s_or_b32 exec_hi, exec_hi, 0x100
    global_load_dword v80, v8, s[34:35] sc1
    s_mov_b64 exec, -1
    L_nopre:""")
    a(f"""s_mov_b32 s59, {LOG2E}
    v_lshl_add_u32 v8, v3, 3, v4
    v_lshlrev_b32 v8, 7, v8
    v_lshl_add_u32 v8, v5, 3, v8
    s_lshl_b32 s48, s3, 5
    v_add_u32 v8, s48, v8
    v_bfe_u32 v9, v1, 3, 2
    v_lshlrev_b32 v9, 5, v9
    v_xor_b32 v8, v9, v8
    v_lshlrev_b32 v9, 4, v3
    v_lshl_add_u32 v9, v5, 8, v9
    v_lshlrev_b32 v99, 3, v5
    v_add_u32 v10, {L_ML}, v99
    v_add_u32 v11, s48, v10
    v_add_u32 v99, s51, v99
    s_lshl_b32 s48, s3, 14
    s_add_u32 s48, s48, {L_K}
    v_add_u32 v92, s48, v7
    v_lshlrev_b32 v93, 8, v5
    v_lshl_add_u32 v93, v3, 6, v93
    v_lshl_add_u32 v93, v4, 4, v93
    s_lshl_b32 s48, s3, 2
    v_mov_b32 v94, s48
    v_lshlrev_b32 v95, 4, v5
    v_lshl_add_u32 v95, v3, 6, v95
    v_lshl_add_u32 v95, v4, 2, v95
    s_lshl_b32 s48, s3, 9
    v_add_u32 v95, s48, v95
    v_lshrrev_b32 v16, 5, v1
    v_and_b32 v98, 15, v1
    v_lshlrev_b32 v98, 3, v98
    v_lshl_add_u32 v98, v16, 7, v98
    s_lshl_b32 s48, s4, 2
    s_add_u32 s48, s48, s3
    s_lshl_b32 s49, s48, 8
    s_add_u32 s49, s49, {ML}
    v_add_u32 v98, s49, v98
    v_and_b32 v96, 31, v1
    v_lshlrev_b32 v6, 4, v96
    v_lshl_add_u32 v6, v16, 13, v6
    s_lshl_b32 s48, s48, 14
    s_lshl_b32 s49, s9, 9
    s_add_u32 s48, s48, s49
    s_add_u32 s48, s48, {OP+4096}
    v_add_u32 v6, s48, v6
    v_lshlrev_b32 v96, 3, v96
    v_lshl_add_u32 v96, v16, 2, v96
    s_lshl_b32 s49, s3, 8
    v_add_u32 v96, s49, v96
    s_add_u32 s54, s54, s49
    v_add_u32 v97, s54, v7
    s_waitcnt vmcnt(0) lgkmcnt(0)""")
    tags()
    a("s_lshl_b32 s50, s13, 10\ns_or_b32 s50, s50, s12\ns_and_b32 s50, s50, 0xffff")
    fwait("L_wk", "v94", F_K, 1, 80)
    stamp(2)
    for i in range(16):
        if i == 12: a("s_waitcnt lgkmcnt(0)")
        a(f"ds_read_b128 {v(16+4*i,4)}, v92 offset:{1024*i}")
    fwait("L_wq", "v90", F_Q, 1, 91)
    a(f"ds_read_b128 v[100:103], v93 offset:{L_QS}\ns_setprio 1")
    stamp(4)
    getU(91)
    a("s_waitcnt lgkmcnt(0)")
    S = 80
    def red(i):
        d = 12 + 4 * i
        if (i >> 1) & 1 == 0: a(f"v_add_f32_dpp v{d}, v{d+1}, v{d} row_ror:12 {DPPF}\nv_add_f32_dpp v{d+2}, v{d+3}, v{d+2} row_ror:12 {DPPF}")
        else: a(f"v_add_f32_dpp v{d}, v{d}, v{d+1} row_ror:4 {DPPF}\nv_add_f32_dpp v{d+2}, v{d+2}, v{d+3} row_ror:4 {DPPF}")
    def red2(i):
        d = 12 + 4 * i; pp, vv, e = i >> 3, (i >> 1) & 3, i & 1
        x, y = (d + 2, d) if vv < 2 else (d, d + 2)
        a(f"v_add_f32_dpp v{S+2*pp+e}, v{x}, v{y} row_ror:8 row_mask:0xf bank_mask:{1<<vv}")
    for i in range(16 + 4):
        if i < 16: a(f"{MF} {v(12+4*i,4)}, {v(16+4*i,4)}, v[100:103], 0")
        if 0 <= i - 3 < 16: red(i - 3)
        if 0 <= i - 4 < 16: red2(i - 4)
    for k in range(4): a(f"v_cvt_pk_bf16_f32 v{S+k}, 0, v{S+k}")
    for k in range(4): a(f"v_mul_f32 v{S+k}, 0x3db504f3, v{S+k}")
    for k in range(4): a(f"v_cvt_pk_bf16_f32 v{S+k}, 0, v{S+k}")
    def allred(op, r, t):
        a(f"""{op}_dpp v{r}, v{r}, v{r} row_ror:8 {DPPF}
        {op}_dpp v{r}, v{r}, v{r} row_ror:4 {DPPF}
        v_mov_b32 v{t}, v{r}
        v_permlane16_swap_b32 v{r}, v{t}
        {op} v{r}, v{r}, v{t}
        v_mov_b32 v{t}, v{r}
        v_permlane32_swap_b32 v{r}, v{t}
        {op} v{r}, v{r}, v{t}""")
    a("v_max3_f32 v84, v80, v81, v82\nv_max_f32 v84, v84, v83")
    allred("v_max_f32", 84, 86)
    for k in range(4): a(f"v_sub_f32 v{S+k}, v{S+k}, v84")
    for k in range(4): a(f"v_mul_f32 v{S+k}, s59, v{S+k}")
    for k in range(4): a(f"v_exp_f32 v{S+k}, v{S+k}")
    a("v_add_f32 v85, v80, v81\nv_add_f32 v86, v82, v83\nv_add_f32 v85, v85, v86")
    allred("v_add_f32", 85, 86)
    a(f"ds_write_b64 v11, v[84:85]\nds_write_b32 v94, v2 offset:{F_M}")
    fwait("L_wm", "v90", F_M, 4, 12)
    a("ds_read2_b64 v[16:19], v10 offset0:0 offset1:4\nds_read2_b64 v[20:23], v10 offset0:8 offset1:12")
    stamp(5)
    a("""s_waitcnt lgkmcnt(0)
    v_max3_f32 v24, v16, v18, v20
    v_max_f32 v24, v24, v22
    v_sub_f32 v84, v84, v24
    v_mul_f32 v84, s59, v84
    v_exp_f32 v84, v84""")
    for k in range(4): a(f"v_mul_f32 v{S+k}, v84, v{S+k}")
    a(f"""v_cvt_pk_bf16_f32 v80, v80, v81
    v_cvt_pk_bf16_f32 v81, v82, v83
    ds_write_b32 v95, v80 offset:{L_P}
    ds_write_b32 v95, v81 offset:{L_P+256}
    ds_write_b32 v94, v91 offset:{F_P}""")
    stamp(6)
    a("s_cmp_lg_u32 s3, 2\ns_cbranch_scc1 L_noml")
    for k in range(4): a(f"v_sub_f32 v{16+2*k}, v{16+2*k}, v24")
    for k in range(4): a(f"v_mul_f32 v{16+2*k}, s59, v{16+2*k}")
    for k in range(4): a(f"v_exp_f32 v{16+2*k}, v{16+2*k}")
    a("v_mul_f32 v25, v16, v17\nv_fmac_f32 v25, v18, v19\nv_fmac_f32 v25, v20, v21\nv_fmac_f32 v25, v22, v23")
    a("v_or_b32 v24, s50, v24\nv_bfi_b32 v25, v2, s14, v25\ns_mov_b64 exec, 15\ns_cmp_eq_u32 s52, 0")
    cstore("L_sml", "global_store_dwordx2 v99, v[24:25], s[34:35]")
    a("s_mov_b64 exec, -1\nL_noml:")
    stamp(9)
    a("v_mov_b32 v33, 0xffff\ns_waitcnt lgkmcnt(0)\ns_setprio 3\ns_barrier")
    stamp(12)
    if prof: a("s_mov_b32 s90, s56")
    ol = [f"global_load_dwordx4 {v(64+4*t,4)}, v6, s[34:35] offset:{t*2048-4096} sc1" for t in range(4)]
    a("L_pml:\nglobal_load_dwordx2 v[56:57], v98, s[34:35] sc1")
    for l in ol: a(l)
    a(f"""s_waitcnt vmcnt(4)
    v_xor_b32 v56, s50, v56
    v_xor_b32 v57, s14, v57
    v_and_b32 v32, v33, v56
    v_and_or_b32 v32, v57, v2, v32
    v_max_f32_dpp v58, v56, v56 row_ror:8 {DPPF}
    v_cmp_ne_u32 vcc, 0, v32
    s_cbranch_vccnz L_pml_r
    v_max_f32_dpp v58, v58, v58 row_ror:4 {DPPF}
    v_mov_b32 v59, v58
    v_permlane32_swap_b32 v58, v59
    v_max_f32 v58, v58, v59
    v_sub_f32 v56, v56, v58
    v_mul_f32 v56, s59, v56
    v_exp_f32 v56, v56
    v_mul_f32 v57, v56, v57
    v_add_f32_dpp v57, v57, v57 row_ror:8 {DPPF}
    v_add_f32_dpp v57, v57, v57 row_ror:4 {DPPF}
    v_mov_b32 v59, v57
    v_permlane32_swap_b32 v57, v59
    v_add_f32 v57, v57, v59
    v_rcp_f32 v57, v57
    v_mul_f32 v56, v56, v57""")
    stubs.append("L_pml_r:\ns_sub_u32 s56, s56, 1\ns_cbranch_scc0 L_pml\ns_endpgm")
    stamp(10)
    gpoll("L_po", ol, 64, 16, 32)
    stamp(13)
    if prof: a("s_sub_u32 s90, s90, s56")
    for t in range(4):
        for k in range(4): a(f"{'v_fmac_f32_dpp' if t else 'v_mul_f32_dpp'} v{60+k}, v56, v{64+4*t+k} row_newbcast:{4*t+k} {DPPF}")
    a(f"""v_permlane32_swap_b32 v60, v62
    v_permlane32_swap_b32 v61, v63
    v_add_f32 v60, v60, v62
    v_add_f32 v61, v61, v63
    v_cvt_pk_bf16_f32 v60, v60, v61
    ds_write_b32 v96, v60 offset:{L_OS}
    s_waitcnt lgkmcnt(0)
    s_barrier""")
    for t in range(4):
        a(f"ds_read_b128 {v(64+4*t,4)}, v9 offset:{L_OS+64*t}")
        for h in range(2): a(f"ds_read_b64_tr_b16 {v(16+4*t+2*h,2)}, v8 offset:{L_WO+t*4096+h*512}")
    for t in range(4): a(f"s_waitcnt lgkmcnt({9-3*t})\n{MF} v[48:51], {v(64+4*t,4)}, {v(16+4*t,4)}, {'v[48:51]' if t else 0}")
    a("s_mov_b64 exec, 0xffff\ns_cmp_eq_u32 s53, 0")
    tagins(48)
    cstore("L_ss", "global_store_dwordx4 v97, v[48:51], s[34:35]", inv=True)
    stamp(14)
    endwave()
    for x in stubs: a(x)
    if prof == 2:
        a("L_prof:\ns_mov_b64 exec, -1")
        if didx == 16: a("s_memrealtime s[92:93]")
        lo, hi = dict(H=(0, 0), B=(2, 5), A=(6, 9), F=(6, 6))[drole]
        a(f"""v_lshrrev_b32 v4, 6, v0
        v_readfirstlane_b32 s48, v4
        s_cmp_lt_u32 s48, {lo}
        s_cbranch_scc1 L_end
        s_cmp_gt_u32 s48, {hi}
        s_cbranch_scc1 L_end
        s_waitcnt lgkmcnt(0)
        s_add_u32 s48, s{60+2*didx}, 2000
        L_spin:
        s_sleep 1
        s_memrealtime s[50:51]
        s_waitcnt lgkmcnt(0)
        s_sub_u32 s50, s50, s48
        s_cmp_lt_i32 s50, 0
        s_cbranch_scc1 L_spin""")
    if prof == 1:
        a("L_prof:\ns_mov_b64 exec, -1\ns_memrealtime s[92:93]\ns_getreg_b32 s94, hwreg(HW_REG_XCC_ID)\ns_getreg_b32 s96, hwreg(HW_REG_HW_ID)\ns_waitcnt lgkmcnt(0)")
        for i in range(19): a(f"v_writelane_b32 v3, s{60+2*i}, {i}")
        a(f"v_lshrrev_b32 v4, 6, v0\ns_mul_i32 s48, s2, {NW}\nv_add_u32 v4, s48, v4\nv_lshlrev_b32 v4, 7, v4\nv_lshl_add_u32 v4, v1, 2, v4\nv_add_u32 v4, {PROF}, v4\ns_mov_b64 exec, 0x7ffff\nglobal_store_dword v4, v3, s[34:35]")
    a("L_end:\ns_endpgm")
    head = [l for l in open(REF).read().split("\n") if l.startswith(";") and "@launch" not in l]
    txt = "\n".join(head) + f"\n; @launch grid=(256,1,1) block=({NW*64},1,1) lds=131072\n"
    txt += f'.amdgcn_target "amdgcn-amd-amdhsa--gfx950"\n.text\n.globl {NAME}_kernel\n.p2align 8\n.type {NAME}_kernel,@function\n'
    txt += a.text()
    txt += f'''.section .rodata,"a"
.p2align 6
.amdhsa_kernel {NAME}_kernel
  .amdhsa_next_free_vgpr 152
  .amdhsa_next_free_sgpr 100
  .amdhsa_accum_offset 152
  .amdhsa_group_segment_fixed_size 0
  .amdhsa_kernarg_size 88
  .amdhsa_user_sgpr_count 2
  .amdhsa_user_sgpr_kernarg_segment_ptr 1
  .amdhsa_system_sgpr_workgroup_id_x 1
  .amdhsa_float_denorm_mode_32 3
.end_amdhsa_kernel
'''
    return txt
if __name__ == "__main__":
    out = sys.argv[1]; kw = {}
    for x in sys.argv[2:]:
        k, val = x.split("=")
        try: val = int(val, 0)
        except ValueError: pass
        kw[k] = val
    open(out, "w").write(gen(**kw))
```

```python
import sys
from asmlib import Asm
NAME = "recurrent_scan__sliding_block_cached__dense_activation_relu__decode"
REF = "cdna_kernels/" + NAME + ".s.ref"
QP, HP, OP, SP, YP, ML, PROF = 0x4000, 0x44000, 0xf4000, 0x174000, 0x1b4000, 0x1000, 0x400000
BOFF = 0x78000
L_WQ, L_W1, L_WO, L_W2, L_OR = 0, 16384, 24576, 40960, 49152
L_XS0, L_XS1, L_QS, L_HS, L_OS, L_ML, L_FL, L_P, L_K = 57344, 58368, 59392, 60416, 60928, 61952, 62080, 62464, 65536
F_W, F_K, F_M, F_P, F_Q = L_FL, L_FL + 16, L_FL + 32, L_FL + 48, L_FL + 64
TAGM = 0x3FF
LOG2E = "0x3fb8aa3b"
DPPF = "row_mask:0xf bank_mask:0xf"
NW = 10
def v(a, n=1): return f"v{a}" if n == 1 else f"v[{a}:{a+n-1}]"
MF = "v_mfma_f32_16x16x32_bf16"

def gen(prof=0, diag=None, nt="nt", wnt="nt", rot=9, rsh=0, cap=1 << 18, th=6, cw=1, fast=1, ntry=5, w2pos=1, tlbw=1, b00=1, **kw):
    a = Asm()
    if diag is not None: prof = 2; drole, didx = diag[0], int(diag[1:])
    stubs = []
    def stamp(i):
        if prof == 1 or (prof == 2 and i in (0, didx)): a(f"s_memrealtime s[{60+2*i}:{61+2*i}]")
    def endwave(): a("s_branch L_prof" if prof else "s_endpgm")
    def tags():
        a("s_add_u32 s12, s11, 1\ns_add_u32 s13, s11, 0x156\ns_add_u32 s14, s11, 0x2ab\ns_add_u32 s15, s11, 0xc4")
        for k in range(4): a(f"s_and_b32 s{12+k}, s{12+k}, {TAGM}")
    def tagins(r):
        for k in range(4): a(f"v_bfi_b32 v{r+k}, v2, s{12+k}, v{r+k}")
    def check(r0, n, acc):
        for i in range(n): a(f"v_xor_b32 v{r0+i}, s{12+i%4}, v{r0+i}")
        a(f"v_or3_b32 v{acc}, v{r0}, v{r0+1}, v{r0+2}")
        for i in range(3, n - 1, 2): a(f"v_or3_b32 v{acc}, v{r0+i}, v{r0+i+1}, v{acc}")
        a(f"v_bitop3_b32 v{acc}, v{r0+n-1}, v{acc}, v2 bitop3:0xa8")
    def cstore(name, ins, inv=False):
        a(f"s_cbranch_scc{0 if inv else 1} {name}_s\n{ins}{' sc1' if inv else ''}\n{name}_e:")
        stubs.append(f"{name}_s:\n{ins}{'' if inv else ' sc1'}\ns_branch {name}_e")
    def gpoll(name, loads, r0, n, acc):
        a(f"{name}_c:\ns_waitcnt vmcnt(0)")
        check(r0, n, acc)
        a(f"v_cmp_ne_u32 vcc, 0, v{acc}\ns_cbranch_vccnz {name}")
        stubs.append(f"{name}:\n" + "\n".join(loads) + f"\ns_sub_u32 s56, s56, 1\ns_cbranch_scc0 {name}_c\ns_endpgm")
    def fwait(name, addr, off, n, vt):
        a(f"{name}_c:\nds_read_b{32*n} {v(vt,n)}, {addr} offset:{off}\ns_waitcnt lgkmcnt(0)")
        if n == 4: a(f"v_bitop3_b32 v{vt}, v{vt}, v{vt+1}, v{vt+2} bitop3:0x80\nv_and_b32 v{vt}, v{vt}, v{vt+3}")
        a(f"v_cmp_eq_u32 vcc, 0, v{vt}\ns_cbranch_vccnz {name}")
        stubs.append(f"{name}:\ns_sleep 1\ns_sub_u32 s56, s56, 1\ns_cbranch_scc0 {name}_c\ns_endpgm")
    def getU(vt): a(f"v_readfirstlane_b32 s52, v{vt}\ns_lshr_b32 s52, s52, 1\ns_cmp_eq_u32 s8, s4\ns_cselect_b32 s53, s52, 0")
    def lanes(): a("v_lshrrev_b32 v3, 4, v1\nv_bfe_u32 v4, v1, 2, 2\nv_and_b32 v5, 3, v1\nv_lshlrev_b32 v7, 4, v1")
    def sidx(d): a(f"s_lshl_b32 {d}, s4, 2\ns_add_u32 {d}, {d}, s6\ns_lshl_b32 {d}, {d}, 3\ns_add_u32 {d}, {d}, s7")
    a(f"{NAME}_kernel:")
    stamp(0)
    a("""s_cmp_ge_u32 s2, 256
    s_cbranch_scc1 L_end
    s_load_dwordx16 s[16:31], s[0:1], 0
    s_load_dwordx2 s[34:35], s[0:1], 80
    s_load_dwordx2 s[32:33], s[0:1], 64""")
    if cw: a("""s_getpc_b64 s[48:49]
    L_pc:
    v_lshlrev_b32 v3, 7, v0
    v_cmp_gt_u32 vcc, L_end-L_pc, v3
    s_and_saveexec_b64 s[50:51], vcc
    s_cbranch_execz L_nocw
    global_load_dword v15, v3, s[48:49]
    L_nocw:
    s_mov_b64 exec, s[50:51]""")
    a(f"""v_lshrrev_b32 v3, 6, v0
    v_and_b32 v1, 63, v0
    v_readfirstlane_b32 s3, v3
    s_and_b32 s4, s2, 7
    s_lshr_b32 s5, s2, 3
    s_and_b32 s6, s5, 3
    s_lshr_b32 s7, s5, 2
    s_and_b32 s8, s5, 7
    s_lshr_b32 s9, s5, 3
    s_lshl_b32 s10, s4, 2
    s_add_u32 s10, s10, s9
    s_mov_b32 s56, {cap}
    v_mov_b32 v2, {TAGM}
    s_cmp_lt_u32 s3, 2
    s_cbranch_scc1 L_HB
    s_cmp_ge_u32 s3, 6
    s_cbranch_scc1 L_A
    v_mov_b32 v90, 0
    v_lshlrev_b32 v8, 2, v1
    ds_write_b32 v8, v90 offset:{L_FL}
    s_waitcnt lgkmcnt(0)
    s_barrier
    s_branch L_B
    L_A:""")
    a(f"""s_setprio 2
    s_sub_u32 s3, s3, 6
    v_lshrrev_b32 v13, 3, v1
    v_and_b32 v14, 7, v1
    v_lshlrev_b32 v14, 4, v14
    v_lshl_add_u32 v8, v13, 13, v14
    v_mul_u32_u24 v9, 3584, v13
    v_add_u32 v9, v9, v14
    s_lshl_b32 s51, s9, 20
    s_lshl_b32 s49, s4, 10
    s_add_u32 s51, s51, s49
    s_lshl_b32 s55, s8, 7
    s_add_u32 s51, s51, s55
    s_lshl_b32 s49, s3, 18
    s_add_u32 s51, s51, s49
    s_lshl_b32 s49, s3, 12
    s_add_u32 m0, s49, {L_WQ}
    s_mov_b32 s46, {4<<20}
    s_mov_b32 s47, 0x20000
    s_lshl_b32 s54, s8, 2
    s_add_u32 s54, s54, s3
    s_mul_i32 s54, s54, {16*3584}
    s_lshl_b32 s49, s10, 7
    s_add_u32 s54, s54, s49
    s_lshl_b32 s48, s6, 24
    s_lshl_b32 s49, s4, 21
    s_add_u32 s48, s48, s49
    s_lshl_b32 s49, s7, 16
    s_add_u32 s48, s48, s49
    s_add_u32 s48, s48, 0x180000
    s_lshr_b32 s50, s2, {rsh}
    s_mul_i32 s50, s50, {rot}
    s_add_u32 s50, s50, s3
    s_lshl_b32 s50, s50, 10
    s_and_b32 s50, s50, 0xffff
    s_mov_b32 s38, 0x10000
    s_mov_b32 s39, 0x20000
    s_mov_b32 s42, 0x10000
    s_mov_b32 s43, 0x20000""")
    lanes()
    a("""v_lshlrev_b32 v6, 4, v5
    v_lshl_add_u32 v6, v3, 6, v6
    v_lshl_add_u32 v6, v4, 8, v6
    s_waitcnt lgkmcnt(0)
    s_mov_b32 s44, s22
    s_mov_b32 s45, s23""")
    if b00: a("s_barrier")
    stream = [("q", j) for j in range(4)] + [("1", j) for j in range(2)] + [("K", j) for j in range(16)] + ([("2", 0), ("2", 1)] if w2pos else []) + [("V", j) for j in range(16)] + [("o", j) for j in range(4)]
    pos = {x: n for n, x in enumerate(stream)}
    st = dict(n=0, perm=0)
    VR, TR, AR, AC = 16, 80, 112, 144
    def waitfor(x): a(f"s_waitcnt vmcnt({st['n'] - 1 - pos[x]})")
    def breg(pp, j): return (TR if pp == 0 else VR) + 4 * j
    def mf(pp, jm): a(f"{MF} {v(AC+4*(jm>>2),4)}, {v(AR+16*pp+4*(jm&3),4)}, {v(breg(pp,jm),4)}, {v(AC+4*(jm>>2),4) if (pp or jm&3) else 0}")
    def perms(last=False):
        p = st["perm"]; pp, w = p >> 2, p & 3; i = 2 * p
        for j in range(8):
            a(f"v_perm_b32 v{breg(pp,j)+w}, v{VR+4*(i+1)+(j>>1)}, v{VR+4*i+(j>>1)}, s{57+(j&1)}")
            if last and j >= 2: mf(1, j - 2)
        st["perm"] += 1
    def ld():
        n = st["n"]; k, j = stream[n]
        if j == 0 and k == "1": a(f"s_mov_b32 s44, s28\ns_mov_b32 s45, s29\ns_cmp_ge_u32 s10, 28\ns_cselect_b32 s46, 0, {1792*1024}\ns_mov_b32 s51, s54\ns_lshl_b32 s49, s3, 11\ns_add_u32 m0, s49, {L_W1}")
        if j == 0 and k == "K": a(f"s_lshl_b32 s49, s3, 14\ns_add_u32 m0, s49, {L_K}")
        if j == 0 and k == "2": a(f"s_mov_b32 s44, s30\ns_mov_b32 s45, s31\ns_lshl_b32 s51, s10, 16\ns_add_u32 s51, s51, s55\ns_lshl_b32 s49, s3, 14\ns_add_u32 s51, s51, s49\ns_lshl_b32 s49, s3, 11\ns_add_u32 m0, s49, {L_W2}")
        if j == 0 and k == "o": a(f"s_mov_b32 s44, s24\ns_mov_b32 s45, s25\ns_mov_b32 s46, {4<<20}\ns_mov_b32 s51, s54\ns_lshl_b32 s49, s3, 12\ns_add_u32 m0, s49, {L_WO}")
        if n >= th: a(f"s_waitcnt vmcnt({th-1})")
        if k == "K": a(f"buffer_load_dwordx4 v6, s[36:39], s50 offen {nt} lds")
        elif k == "V": a(f"buffer_load_dwordx4 {v(VR+4*j,4)}, v7, s[40:43], s50 offen {nt}")
        else: a(f"buffer_load_dwordx4 {dict(q='v8', o='v10').get(k, 'v9')}, s[44:47], s51 offen {wnt} lds")
        if k in "KV": a("s_add_u32 s50, s50, 4096\ns_and_b32 s50, s50, 0xffff")
        else: a(f"s_add_u32 s51, s51, {dict(q=65536, o=16384).get(k) or {'1': 8*3584, '2': 8192}[k]}")
        if k != "V": a("s_add_u32 m0, m0, 1024")
        if k == "o": a("v_xor_b32 v10, 64, v10")
        st["n"] += 1
        if n == 0:
            a("s_load_dword s11, s[34:35], 0\ns_add_u32 s36, s18, s48\ns_addc_u32 s37, s19, 0\ns_add_u32 s40, s20, s48\ns_addc_u32 s41, s21, 0"); stamp(1)
        if n == 5 + th: a(f"ds_write_b32 v12, v2 offset:{F_W}")
        if n == pos[("V", 0)] - 1 + th: a(f"ds_write_b32 v12, v2 offset:{F_K}")
        if (k, j) == ("K", 15): stamp(2)
        if (k, j) == ("V", 15): stamp(3)
        while st["perm"] < 7 and pos[("V", 2 * st["perm"] + 1)] <= n - th: perms()
    while st["n"] < max(th, 6): ld()
    if not b00: a("s_barrier")
    a(f"""v_lshl_add_u32 v9, v13, 10, v14
    v_and_b32 v15, 3, v13
    v_lshl_add_u32 v10, v15, 17, v14
    v_lshrrev_b32 v13, 2, v13
    v_lshl_add_u32 v10, v13, 13, v10
    v_bfe_u32 v15, v1, 4, 1
    v_lshlrev_b32 v15, 5, v15
    v_xor_b32 v10, v15, v10
    s_lshl_b32 s54, s4, 9
    s_and_b32 s49, s3, 1
    s_lshl_b32 s49, s49, 6
    s_add_u32 s54, s54, s49
    s_lshl_b32 s49, s9, 1
    s_add_u32 s54, s54, s49
    s_lshr_b32 s49, s3, 1
    s_add_u32 s54, s54, s49
    s_lshl_b32 s54, s54, 10
    s_add_u32 s54, s54, s55
    s_lshl_b32 s49, s3, 2
    v_mov_b32 v12, s49
    s_lshl_b32 s49, s3, 9
    v_add_u32 v11, s49, v7
    v_lshlrev_b32 v15, 4, v5
    v_lshl_add_u32 v15, v3, 6, v15
    v_add_u32 v15, s49, v15
    s_lshl_b32 s49, s3, 11
    v_add_u32 v13, s49, v7
    s_mov_b32 s57, 0x05040100
    s_mov_b32 s58, 0x07060302""")
    sidx("s48")
    a(f"s_lshl_b32 s48, s48, 11\ns_add_u32 s48, s48, {OP}\nv_add_u32 v14, s48, v11")
    for i in range(32): a(f"v_mov_b32 v{AR+i}, 0")
    while st["n"] < len(stream): ld()
    stamp(4)
    fwait("L_wp", "v12", F_P, 1, 8)
    for u in range(4):
        a(f"s_mov_b32 exec_lo, {0x000f000f << (4*u):#x}\ns_mov_b32 exec_hi, {0x000f000f << (4*u):#x}")
        for pp in range(2): a(f"ds_read_b128 {v(AR+16*pp+4*u,4)}, v15 offset:{L_P+256*pp}")
    a("s_mov_b64 exec, -1")
    getU(8); tags()
    stamp(6)
    a("s_waitcnt lgkmcnt(0)")
    assert st["perm"] >= 4
    for jm in range(8): mf(0, jm)
    while st["perm"] < 7:
        waitfor(("V", 2 * st["perm"] + 1)); perms()
    waitfor(("V", 15))
    stamp(7)
    perms(last=True); mf(1, 6); mf(1, 7)
    a(f"""ds_write_b128 v13, {v(AC,4)} offset:{L_OR}
    s_cmp_eq_u32 s52, 0
    ds_write_b128 v13, {v(AC+4,4)} offset:{L_OR+1024}
    s_mov_b32 exec_hi, 0
    s_waitcnt lgkmcnt(0)
    s_barrier""")
    for k in range(4): a(f"ds_read_b128 {v(80+4*k,4)}, v11 offset:{L_OR+2048*k}")
    for k in range(1, 4): a(f"s_waitcnt lgkmcnt({3-k})\nv_pk_add_f32 v[80:81], v[80:81], {v(80+4*k,2)}\nv_pk_add_f32 v[82:83], v[82:83], {v(82+4*k,2)}")
    tagins(80)
    cstore("L_so", "global_store_dwordx4 v14, v[80:83], s[34:35]")
    a("s_mov_b32 exec_hi, -1\ns_setprio 0")
    stamp(8)
    a("s_cmp_eq_u32 s3, 0\ns_cbranch_scc1 L_F\ns_waitcnt vmcnt(1)")
    stamp(10)
    a("s_barrier")
    endwave()
    a(f"""L_F:
    v_lshrrev_b32 v8, 1, v1
    v_and_b32 v9, 1, v1
    v_lshlrev_b32 v8, 10, v8
    v_lshl_add_u32 v8, v9, 4, v8
    s_lshl_b32 s48, s4, 15
    s_lshl_b32 s49, s5, 5
    s_add_u32 s48, s48, s49
    s_add_u32 s48, s48, {SP}
    v_add_u32 v8, s48, v8
    v_add_u32 v10, {YP-SP}, v8
    v_lshlrev_b32 v9, 1, v9
    v_lshl_add_u32 v9, v3, 10, v9
    s_lshl_b32 s48, s4, 7
    s_lshl_b32 s49, s5, 2
    s_add_u32 s48, s48, s49
    v_add_u32 v9, s48, v9
    global_load_ushort v11, v9, s[16:17]
    v_mov_b32 v16, 0
    v_mov_b32 v17, 0
    v_mov_b32 v18, 0
    v_mov_b32 v19, 0
    s_mov_b32 exec_hi, 0xffffff
    global_load_dwordx4 v[16:19], v10, s[34:35] sc1
    s_waitcnt vmcnt(3)""")
    stamp(10)
    a("s_barrier")
    stamp(11)
    gpoll("L_py", ["global_load_dwordx4 v[16:19], v10, s[34:35] sc1"], 16, 4, 6)
    a("s_mov_b32 exec_hi, -1")
    def fred(r):
        a(f"""v_permlane32_swap_b32 v{r}, v{r+2}
        v_permlane32_swap_b32 v{r+1}, v{r+3}
        v_add_f32 v{r}, v{r}, v{r+2}
        v_add_f32 v{r+1}, v{r+1}, v{r+3}
        v_permlane16_swap_b32 v{r}, v{r+1}
        v_add_f32 v{r}, v{r}, v{r+1}""")
        for s in (8, 4, 2): a(f"v_add_f32_dpp v{r}, v{r}, v{r} row_ror:{s} {DPPF}")
        a(f"v_cvt_pk_bf16_f32 v{r}, 0, v{r}")
    fred(16)
    a(f"""v_mul_f32 v17, 0xbfb8aa3b, v16
    v_exp_f32 v17, v17
    v_lshlrev_b32 v11, 16, v11
    v_add_f32 v17, 1.0, v17
    v_rcp_f32 v17, v17
    s_add_u32 s11, s11, 1
    v_mul_f32 v16, v16, v17
    v_cvt_pk_bf16_f32 v16, 0, v16""")
    stamp(13)
    if prof: a("s_mov_b32 s90, s56")
    a("s_setprio 3\nglobal_load_dwordx4 v[20:23], v8, s[34:35] sc1")
    gpoll("L_ps", ["global_load_dwordx4 v[20:23], v8, s[34:35] sc1"], 20, 4, 6)
    stamp(14)
    if prof: a("s_sub_u32 s90, s90, s56")
    fred(20)
    a(f"""v_mul_f32 v20, v20, v16
    s_mov_b32 exec_lo, 0x00030003
    v_cvt_pk_bf16_f32 v20, 0, v20
    s_mov_b32 exec_hi, 0x00030003
    v_add_f32 v20, v20, v11
    s_cmp_lg_u32 s2, 0
    v_cvt_pk_bf16_f32 v20, v20, v20
    global_store_short v9, v20, s[32:33]
    s_cbranch_scc1 {"L_prof" if prof else "L_end"}
    s_mov_b64 exec, 1
    v_mov_b32 v8, 0
    v_mov_b32 v10, s11
    global_store_dword v8, v10, s[34:35]""")
    endwave()
    def hwave(q):
        nk = 4 if q else 2
        lw = L_WQ if q else L_W1; xs = L_XS0 if q else L_XS1
        a("v_lshrrev_b32 v3, 4, v1\nv_and_b32 v4, 15, v1\nv_lshlrev_b32 v4, 4, v4\nv_lshl_add_u32 v3, v3, 10, v4")
        a("s_mov_b32 s48, s9" if q else "s_lshr_b32 s48, s8, 1")
        for i in range(4): a(f"s_add_u32 s49, s48, {i}\ns_and_b32 s49, s49, 3\ns_lshl_b32 s49, s49, 8\nv_add_u32 v{4+i}, s49, v3")
        a("s_waitcnt lgkmcnt(0)")
        for i in range(4): a(f"global_load_dwordx4 {v(16+4*i,4)}, v{4+i}, s[16:17]")
        a("s_barrier\ns_load_dword s11, s[34:35], 0")
        stamp(1)
        lanes()
        a(f"""v_lshl_add_u32 v10, v3, 3, v4
        v_lshlrev_b32 v10, 7, v10
        v_lshl_add_u32 v10, v5, 5, v10
        v_lshlrev_b32 v11, 4, v3
        v_lshl_add_u32 v11, v4, 8, v11
        v_lshlrev_b32 v12, 6, v3
        v_lshl_add_u32 v12, v5, 4, v12
        v_lshl_add_u32 v12, v4, {13 if q else 8}, v12
        v_mov_b32 v9, 0
        s_mov_b32 s52, 0xaaaaaaaa
        s_mov_b32 s53, 0xaaaaaaaa
        s_mov_b32 s54, 0xcccccccc
        s_mov_b32 s55, 0xcccccccc
        s_mov_b32 s59, 0x3f803f80
        s_getreg_b32 s58, hwreg(HW_REG_XCC_ID)
        s_and_b32 s58, s58, 15
        s_lshl_b32 s58, s58, 6""")
        if q: a(f"s_lshl_b32 s49, s4, 15\ns_lshl_b32 s50, s9, 11\ns_add_u32 s50, s50, s49\ns_lshl_b32 s51, s8, 8\ns_add_u32 s50, s50, s51\ns_add_u32 s50, s50, {QP}\ns_lshl_b32 s51, s6, 13\ns_add_u32 s49, s49, s51\ns_add_u32 s49, s49, {QP+4096}")
        else: a(f"s_and_b32 s49, s8, 1\ns_lshl_b32 s49, s49, 7\nv_add_u32 v11, s49, v11\ns_lshl_b32 s49, s10, 13\ns_lshl_b32 s50, s8, 10\ns_add_u32 s50, s50, s49\ns_add_u32 s50, s50, {HP}\ns_add_u32 s49, s49, {HP+4096}")
        a("v_add_u32 v12, s50, v12\nv_add_u32 v13, s49, v7\ns_waitcnt vmcnt(0)")
        stamp(2)
        a("v_dot2_f32_bf16 v48, v16, s59, 0\nv_dot2_f32_bf16 v49, v16, v16, 0")
        for i in range(1, 16): a(f"v_dot2_f32_bf16 v48, v{16+i}, s59, v48\nv_dot2_f32_bf16 v49, v{16+i}, v{16+i}, v49")
        for s in (8, 4, 2, 1): a(f"v_add_f32_dpp v48, v48, v48 row_ror:{s} {DPPF}\nv_add_f32_dpp v49, v49, v49 row_ror:{s} {DPPF}")
        a("""v_mul_f32 v48, 0x3b000000, v48
        v_mul_f32 v49, 0x3b000000, v49
        v_fma_f32 v49, -v48, v48, v49
        v_max_f32 v49, 0, v49
        v_cvt_pk_bf16_f32 v49, 0, v49
        v_add_f32 v49, 0x3727c5ac, v49
        v_cvt_pk_bf16_f32 v49, 0, v49
        v_sqrt_f32 v49, v49
        v_cvt_pk_bf16_f32 v48, 0, v48
        v_cvt_pk_bf16_f32 v49, 0, v49
        v_rcp_f32 v49, v49""")
        for i in range(4):
            a(f"""v_lshlrev_b32 v50, 16, v{16+i}
            v_and_b32 v51, 0xffff0000, v{16+i}
            v_sub_f32 v50, v50, v48
            v_sub_f32 v51, v51, v48
            v_cvt_pk_bf16_f32 v50, 0, v50
            v_cvt_pk_bf16_f32 v51, 0, v51
            v_mul_f32 v50, v50, v49
            v_mul_f32 v51, v51, v49
            v_cvt_pk_bf16_f32 v{16+i}, v50, v51""")
        a(f"ds_write_b128 v7, v[16:19] offset:{xs}")
        for t in range(nk): a(f"ds_read_b128 {v(32+4*t,4)}, v11 offset:{xs+64*t}")
        stamp(3)
        a("s_waitcnt lgkmcnt(0)")
        tags()
        nm = "L_pq" if q else "L_ph"
        fwait(nm + "w", "v9", F_W, 4, 20)
        stamp(4)
        if prof: a("s_waitcnt lgkmcnt(0)")
        trr = lambda t, tt: [a(f"ds_read_b64_tr_b16 {v(48+16*t+4*tt+2*h,2)}, v10 offset:{lw+t*4096+h*512+tt*8}") for h in range(2)]
        for tt in range(4): trr(0, tt)
        for t in range(nk):
            for tt in range(4):
                a(f"s_waitcnt lgkmcnt({6 if t + 1 < nk else 6-2*tt})")
                if t + 1 < nk: trr(t + 1, tt)
                a(f"{MF} {v(112+4*tt,4)}, {v(48+16*t+4*tt,4)}, {v(32+4*t,4)}, {v(112+4*tt,4) if t else 0}")
        for r in range(4): a(f"v_cndmask_b32 v{112+r}, v{112+r}, v{116+r}, s[52:53]")
        for r in range(4): a(f"v_cndmask_b32 v{120+r}, v{120+r}, v{124+r}, s[52:53]")
        for r in range(4): a(f"v_cndmask_b32 v{112+r}, v{112+r}, v{120+r}, s[54:55]")
        for r in range(4): a(f"v_bfi_b32 v{116+r}, v2, s{12+r}, v{112+r}")
        for r in range(4): a(f"s_xor_b32 s{12+r}, s{12+r}, s58")
        tagins(112)
        a(f"global_store_dwordx4 v12, v[112:115], s[34:35]\nv_add_u32 v12, {BOFF}, v12\nglobal_store_dwordx4 v12, v[116:119], s[34:35] sc1")
        stamp(5)
        a("s_waitcnt vmcnt(0)")
        if not q and not w2pos:
            a(f"v_lshrrev_b32 v6, 3, v1\nv_and_b32 v8, 7, v1\nv_lshlrev_b32 v8, 4, v8\nv_lshl_add_u32 v6, v6, 10, v8\ns_lshl_b32 s48, s10, 16\ns_lshl_b32 s49, s8, 7\ns_add_u32 s48, s48, s49\nv_add_u32 v6, s48, v6\ns_mov_b32 m0, {L_W2}")
            for j in range(8):
                if j: a("v_add_u32 v6, 8192, v6\ns_add_u32 m0, m0, 1024")
                a(f"global_load_lds_dwordx4 v6, s[30:31] {wnt}")
        if not q and w2pos: fwait("L_phk", "v9", F_K, 4, 20)
        stamp(6)
        a(f"s_mov_b32 s57, {ntry}")
        if not fast: a(f"s_branch {nm}_sw")
        a(f"{nm}:")
        for i in range(8): a(f"global_load_dwordx4 {v(16+4*i,4)}, v13, s[34:35] offset:{i*1024-4096} sc1")
        a("s_waitcnt vmcnt(0)")
        check(16, 32, 6)
        a(f"v_cmp_ne_u32 vcc, 0, v6\ns_cbranch_vccnz {nm}_r")
        stubs.append(f"""{nm}_r:
        s_sub_u32 s56, s56, 1
        s_cbranch_scc1 L_end
        s_sub_u32 s57, s57, 1
        s_cmp_lg_u32 s57, 0
        s_cbranch_scc1 {nm}
        {nm}_sw:
        s_mov_b32 s57, 0
        v_add_u32 v13, {BOFF}, v13
        s_xor_b32 s12, s12, s58
        s_xor_b32 s13, s13, s58
        s_xor_b32 s14, s14, s58
        s_xor_b32 s15, s15, s58
        s_branch {nm}""")
        stamp(7)
        if prof: a(f"s_sub_u32 s76, {ntry+1}, s57")
        a("v_lshlrev_b32 v14, 3, v1")
        if q:
            for i in range(0, 8, 2): a(f"v_pk_add_f32 {v(16+i,2)}, {v(16+i,2)}, {v(24+i,2)}\nv_pk_add_f32 {v(32+i,2)}, {v(32+i,2)}, {v(40+i,2)}")
            for i in range(0, 8, 2): a(f"v_pk_add_f32 {v(16+i,2)}, {v(16+i,2)}, {v(32+i,2)}")
            for i in range(4): a(f"v_cvt_pk_bf16_f32 v{16+i}, v{16+2*i}, v{17+2*i}")
            a(f"""s_cmp_gt_i32 s57, 0
            s_cselect_b32 s48, 3, 1
            ds_write_b64 v14, v[16:17] offset:{L_QS}
            v_mov_b32 v6, s48
            ds_write_b64 v14, v[18:19] offset:{L_QS+512}
            ds_write_b32 v9, v6 offset:{F_Q}
            s_waitcnt lgkmcnt(0)""")
        else:
            tags()
            for i in range(0, 16, 2): a(f"v_pk_add_f32 {v(16+i,2)}, {v(16+i,2)}, {v(32+i,2)}")
            for i in range(0, 8, 2): a(f"v_pk_add_f32 {v(16+i,2)}, {v(16+i,2)}, {v(24+i,2)}")
            for i in range(0, 4, 2): a(f"v_pk_add_f32 {v(16+i,2)}, {v(16+i,2)}, {v(20+i,2)}")
            for i in range(4): a(f"v_max_f32 v{16+i}, 0, v{16+i}")
            a(f"""v_cvt_pk_bf16_f32 v16, v16, v17
            v_cvt_pk_bf16_f32 v17, v18, v19
            ds_write_b64 v14, v[16:17] offset:{L_HS}
            v_lshlrev_b32 v11, 4, v3
            v_lshl_add_u32 v11, v5, 7, v11
            v_lshl_add_u32 v10, v3, 3, v4
            v_lshlrev_b32 v10, 7, v10
            v_lshl_add_u32 v10, v5, 3, v10
            s_lshl_b32 s48, s8, 15
            s_lshl_b32 s49, s10, 10
            s_add_u32 s48, s48, s49
            s_add_u32 s48, s48, {YP}
            v_add_u32 v12, s48, v7""")
            for t in range(2):
                a(f"ds_read_b128 {v(32+4*t,4)}, v11 offset:{L_HS+64*t}")
                for tt in range(4):
                    for h in range(2): a(f"ds_read_b64_tr_b16 {v(48+16*t+4*tt+2*h,2)}, v10 offset:{L_W2+t*4096+h*512+tt*32}")
                a("s_waitcnt lgkmcnt(0)")
                for tt in range(4): a(f"{MF} {v(112+4*tt,4)}, {v(32+4*t,4)}, {v(48+16*t+4*tt,4)}, {v(112+4*tt,4) if t else 0}")
            for tt in range(1, 4):
                for r in range(4): a(f"v_mov_b32_dpp v{112+r}, v{112+4*tt+r} quad_perm:[0,1,2,3] row_mask:{1<<tt} bank_mask:0xf")
            tagins(112)
            a("global_store_dwordx4 v12, v[112:115], s[34:35] sc1")
            stamp(11)
        a("s_barrier\ns_barrier")
        endwave()
    a("L_HB:\ns_setprio 3\ns_cmp_lg_u32 s3, 0\ns_cbranch_scc1 L_H1")
    hwave(1)
    a("L_H1:\ns_cmp_ge_u32 s10, 28\ns_cbranch_scc1 L_end")
    hwave(0)
    a("L_B:\ns_sub_u32 s3, s3, 2")
    lanes()
    a("s_load_dword s11, s[34:35], 0")
    if tlbw: a(f"""s_cmp_lg_u32 s3, 1
    s_cbranch_scc1 L_notlb
    s_lshl_b32 s48, s6, 24
    s_lshl_b32 s49, s4, 21
    s_add_u32 s48, s48, s49
    s_lshl_b32 s49, s7, 16
    s_add_u32 s48, s48, s49
    s_add_u32 s48, s48, 0x180000
    s_lshl_b32 s49, s4, 19
    s_min_u32 s50, s10, 27
    s_lshl_b32 s50, s50, 16
    s_mov_b64 exec, 1
    v_mov_b32 v8, s48
    v_mov_b32 v9, s49
    v_mov_b32 v10, s50
    global_load_dword v81, v8, s[18:19] nt
    global_load_dword v82, v8, s[20:21] nt
    global_load_dword v83, v10, s[30:31] nt
    global_load_dword v84, v9, s[24:25] nt
    global_load_dword v85, v90, s[32:33]
    s_mov_b64 exec, -1
    L_notlb:""")
    sidx("s51")
    a(f"""v_and_b32 v8, 1, v1
    v_lshlrev_b32 v8, 7, v8
    v_bfe_u32 v9, v1, 1, 2
    v_lshl_add_u32 v8, v9, 13, v8
    s_lshl_b32 s49, s4, 15
    s_lshl_b32 s50, s9, 11
    s_add_u32 s50, s50, s49
    s_lshl_b32 s49, s8, 8
    s_add_u32 s50, s50, s49
    s_add_u32 s50, s50, {QP}
    v_add_u32 v8, s50, v8
    v_lshlrev_b32 v9, 7, v1
    s_lshl_b32 s49, s10, 13
    s_lshl_b32 s50, s8, 10
    s_add_u32 s50, s50, s49
    s_add_u32 s50, s50, {HP-1024}
    s_mov_b64 exec, 0xff00
    v_add_u32 v8, s50, v9
    s_lshl_b32 s50, s51, 11
    s_add_u32 s50, s50, {OP-2048}
    s_mov_b32 exec_lo, 0xffff0000
    v_add_u32 v8, s50, v9
    s_lshl_b32 s54, s8, 15
    s_lshl_b32 s49, s10, 10
    s_add_u32 s54, s54, s49
    s_add_u32 s54, s54, {SP}
    s_sub_u32 s50, s54, 4096
    s_mov_b32 exec_lo, 0
    s_mov_b32 exec_hi, -1
    v_add_u32 v8, s50, v9
    s_mov_b64 exec, -1
    s_lshl_b32 s51, s51, 5
    s_add_u32 s51, s51, {ML}
    v_writelane_b32 v8, s51, 40
    s_cmp_lg_u32 s3, 0
    s_cbranch_scc1 L_nopre
    s_cmp_eq_u32 s8, s4
    s_cselect_b32 exec_hi, 0x1ff, 0
    s_or_b32 exec_hi, exec_hi, 0x100
    global_load_dword v80, v8, s[34:35] sc1
    s_mov_b64 exec, -1
    L_nopre:""")
    a(f"""s_mov_b32 s59, {LOG2E}
    v_lshl_add_u32 v8, v3, 3, v4
    v_lshlrev_b32 v8, 7, v8
    v_lshl_add_u32 v8, v5, 3, v8
    s_lshl_b32 s48, s3, 5
    v_add_u32 v8, s48, v8
    v_bfe_u32 v9, v1, 3, 2
    v_lshlrev_b32 v9, 5, v9
    v_xor_b32 v8, v9, v8
    v_lshlrev_b32 v9, 4, v3
    v_lshl_add_u32 v9, v5, 8, v9
    v_lshlrev_b32 v99, 3, v5
    v_add_u32 v10, {L_ML}, v99
    v_add_u32 v11, s48, v10
    v_add_u32 v99, s51, v99
    s_lshl_b32 s48, s3, 14
    s_add_u32 s48, s48, {L_K}
    v_add_u32 v92, s48, v7
    v_lshlrev_b32 v93, 8, v5
    v_lshl_add_u32 v93, v3, 6, v93
    v_lshl_add_u32 v93, v4, 4, v93
    s_lshl_b32 s48, s3, 2
    v_mov_b32 v94, s48
    v_lshlrev_b32 v95, 4, v5
    v_lshl_add_u32 v95, v3, 6, v95
    v_lshl_add_u32 v95, v4, 2, v95
    s_lshl_b32 s48, s3, 9
    v_add_u32 v95, s48, v95
    v_lshrrev_b32 v16, 5, v1
    v_and_b32 v98, 15, v1
    v_lshlrev_b32 v98, 3, v98
    v_lshl_add_u32 v98, v16, 7, v98
    s_lshl_b32 s48, s4, 2
    s_add_u32 s48, s48, s3
    s_lshl_b32 s49, s48, 8
    s_add_u32 s49, s49, {ML}
    v_add_u32 v98, s49, v98
    v_and_b32 v96, 31, v1
    v_lshlrev_b32 v6, 4, v96
    v_lshl_add_u32 v6, v16, 13, v6
    s_lshl_b32 s48, s48, 14
    s_lshl_b32 s49, s9, 9
    s_add_u32 s48, s48, s49
    s_add_u32 s48, s48, {OP+4096}
    v_add_u32 v6, s48, v6
    v_lshlrev_b32 v96, 3, v96
    v_lshl_add_u32 v96, v16, 2, v96
    s_lshl_b32 s49, s3, 8
    v_add_u32 v96, s49, v96
    s_add_u32 s54, s54, s49
    v_add_u32 v97, s54, v7
    s_waitcnt vmcnt(0) lgkmcnt(0)""")
    tags()
    a("s_lshl_b32 s50, s13, 10\ns_or_b32 s50, s50, s12\ns_and_b32 s50, s50, 0xffff")
    fwait("L_wk", "v94", F_K, 1, 80)
    stamp(2)
    for i in range(16):
        if i == 12: a("s_waitcnt lgkmcnt(0)")
        a(f"ds_read_b128 {v(16+4*i,4)}, v92 offset:{1024*i}")
    fwait("L_wq", "v90", F_Q, 1, 91)
    a(f"ds_read_b128 v[100:103], v93 offset:{L_QS}\ns_setprio 1")
    stamp(4)
    getU(91)
    a("s_waitcnt lgkmcnt(0)")
    S = 80
    def red(i):
        d = 12 + 4 * i
        if (i >> 1) & 1 == 0: a(f"v_add_f32_dpp v{d}, v{d+1}, v{d} row_ror:12 {DPPF}\nv_add_f32_dpp v{d+2}, v{d+3}, v{d+2} row_ror:12 {DPPF}")
        else: a(f"v_add_f32_dpp v{d}, v{d}, v{d+1} row_ror:4 {DPPF}\nv_add_f32_dpp v{d+2}, v{d+2}, v{d+3} row_ror:4 {DPPF}")
    def red2(i):
        d = 12 + 4 * i; pp, vv, e = i >> 3, (i >> 1) & 3, i & 1
        x, y = (d + 2, d) if vv < 2 else (d, d + 2)
        a(f"v_add_f32_dpp v{S+2*pp+e}, v{x}, v{y} row_ror:8 row_mask:0xf bank_mask:{1<<vv}")
    for i in range(16 + 4):
        if i < 16: a(f"{MF} {v(12+4*i,4)}, {v(16+4*i,4)}, v[100:103], 0")
        if 0 <= i - 3 < 16: red(i - 3)
        if 0 <= i - 4 < 16: red2(i - 4)
    for k in range(4): a(f"v_cvt_pk_bf16_f32 v{S+k}, 0, v{S+k}")
    for k in range(4): a(f"v_mul_f32 v{S+k}, 0x3db504f3, v{S+k}")
    for k in range(4): a(f"v_cvt_pk_bf16_f32 v{S+k}, 0, v{S+k}")
    def allred(op, r, t):
        a(f"""{op}_dpp v{r}, v{r}, v{r} row_ror:8 {DPPF}
        {op}_dpp v{r}, v{r}, v{r} row_ror:4 {DPPF}
        v_mov_b32 v{t}, v{r}
        v_permlane16_swap_b32 v{r}, v{t}
        {op} v{r}, v{r}, v{t}
        v_mov_b32 v{t}, v{r}
        v_permlane32_swap_b32 v{r}, v{t}
        {op} v{r}, v{r}, v{t}""")
    a("v_max3_f32 v84, v80, v81, v82\nv_max_f32 v84, v84, v83")
    allred("v_max_f32", 84, 86)
    for k in range(4): a(f"v_sub_f32 v{S+k}, v{S+k}, v84")
    for k in range(4): a(f"v_mul_f32 v{S+k}, s59, v{S+k}")
    for k in range(4): a(f"v_exp_f32 v{S+k}, v{S+k}")
    a("v_add_f32 v85, v80, v81\nv_add_f32 v86, v82, v83\nv_add_f32 v85, v85, v86")
    allred("v_add_f32", 85, 86)
    a(f"ds_write_b64 v11, v[84:85]\nds_write_b32 v94, v2 offset:{F_M}")
    fwait("L_wm", "v90", F_M, 4, 12)
    a("ds_read2_b64 v[16:19], v10 offset0:0 offset1:4\nds_read2_b64 v[20:23], v10 offset0:8 offset1:12")
    stamp(5)
    a("""s_waitcnt lgkmcnt(0)
    v_max3_f32 v24, v16, v18, v20
    v_max_f32 v24, v24, v22
    v_sub_f32 v84, v84, v24
    v_mul_f32 v84, s59, v84
    v_exp_f32 v84, v84""")
    for k in range(4): a(f"v_mul_f32 v{S+k}, v84, v{S+k}")
    a(f"""v_cvt_pk_bf16_f32 v80, v80, v81
    v_cvt_pk_bf16_f32 v81, v82, v83
    ds_write_b32 v95, v80 offset:{L_P}
    ds_write_b32 v95, v81 offset:{L_P+256}
    ds_write_b32 v94, v91 offset:{F_P}""")
    stamp(6)
    a("s_cmp_lg_u32 s3, 2\ns_cbranch_scc1 L_noml")
    for k in range(4): a(f"v_sub_f32 v{16+2*k}, v{16+2*k}, v24")
    for k in range(4): a(f"v_mul_f32 v{16+2*k}, s59, v{16+2*k}")
    for k in range(4): a(f"v_exp_f32 v{16+2*k}, v{16+2*k}")
    a("v_mul_f32 v25, v16, v17\nv_fmac_f32 v25, v18, v19\nv_fmac_f32 v25, v20, v21\nv_fmac_f32 v25, v22, v23")
    a("v_or_b32 v24, s50, v24\nv_bfi_b32 v25, v2, s14, v25\ns_mov_b64 exec, 15\ns_cmp_eq_u32 s52, 0")
    cstore("L_sml", "global_store_dwordx2 v99, v[24:25], s[34:35]")
    a("s_mov_b64 exec, -1\nL_noml:")
    stamp(9)
    a("v_mov_b32 v33, 0xffff\ns_waitcnt lgkmcnt(0)\ns_setprio 3\ns_barrier")
    stamp(12)
    if prof: a("s_mov_b32 s90, s56")
    ol = [f"global_load_dwordx4 {v(64+4*t,4)}, v6, s[34:35] offset:{t*2048-4096} sc1" for t in range(4)]
    a("L_pml:\nglobal_load_dwordx2 v[56:57], v98, s[34:35] sc1")
    for l in ol: a(l)
    a(f"""s_waitcnt vmcnt(4)
    v_xor_b32 v56, s50, v56
    v_xor_b32 v57, s14, v57
    v_and_b32 v32, v33, v56
    v_and_or_b32 v32, v57, v2, v32
    v_max_f32_dpp v58, v56, v56 row_ror:8 {DPPF}
    v_cmp_ne_u32 vcc, 0, v32
    s_cbranch_vccnz L_pml_r
    v_max_f32_dpp v58, v58, v58 row_ror:4 {DPPF}
    v_mov_b32 v59, v58
    v_permlane32_swap_b32 v58, v59
    v_max_f32 v58, v58, v59
    v_sub_f32 v56, v56, v58
    v_mul_f32 v56, s59, v56
    v_exp_f32 v56, v56
    v_mul_f32 v57, v56, v57
    v_add_f32_dpp v57, v57, v57 row_ror:8 {DPPF}
    v_add_f32_dpp v57, v57, v57 row_ror:4 {DPPF}
    v_mov_b32 v59, v57
    v_permlane32_swap_b32 v57, v59
    v_add_f32 v57, v57, v59
    v_rcp_f32 v57, v57
    v_mul_f32 v56, v56, v57""")
    stubs.append("L_pml_r:\ns_sub_u32 s56, s56, 1\ns_cbranch_scc0 L_pml\ns_endpgm")
    stamp(10)
    gpoll("L_po", ol, 64, 16, 32)
    stamp(13)
    if prof: a("s_sub_u32 s90, s90, s56")
    for t in range(4):
        for k in range(4): a(f"{'v_fmac_f32_dpp' if t else 'v_mul_f32_dpp'} v{60+k}, v56, v{64+4*t+k} row_newbcast:{4*t+k} {DPPF}")
    a(f"""v_permlane32_swap_b32 v60, v62
    v_permlane32_swap_b32 v61, v63
    v_add_f32 v60, v60, v62
    v_add_f32 v61, v61, v63
    v_cvt_pk_bf16_f32 v60, v60, v61
    ds_write_b32 v96, v60 offset:{L_OS}
    s_waitcnt lgkmcnt(0)
    s_barrier""")
    for t in range(4):
        a(f"ds_read_b128 {v(64+4*t,4)}, v9 offset:{L_OS+64*t}")
        for h in range(2): a(f"ds_read_b64_tr_b16 {v(16+4*t+2*h,2)}, v8 offset:{L_WO+t*4096+h*512}")
    for t in range(4): a(f"s_waitcnt lgkmcnt({9-3*t})\n{MF} v[48:51], {v(64+4*t,4)}, {v(16+4*t,4)}, {'v[48:51]' if t else 0}")
    a("s_mov_b64 exec, 0xffff\ns_cmp_eq_u32 s53, 0")
    tagins(48)
    cstore("L_ss", "global_store_dwordx4 v97, v[48:51], s[34:35]", inv=True)
    stamp(14)
    endwave()
    for x in stubs: a(x)
    if prof == 2:
        a("L_prof:\ns_mov_b64 exec, -1")
        if didx == 16: a("s_memrealtime s[92:93]")
        lo, hi = dict(H=(0, 0), B=(2, 5), A=(6, 9), F=(6, 6))[drole]
        a(f"""v_lshrrev_b32 v4, 6, v0
        v_readfirstlane_b32 s48, v4
        s_cmp_lt_u32 s48, {lo}
        s_cbranch_scc1 L_end
        s_cmp_gt_u32 s48, {hi}
        s_cbranch_scc1 L_end
        s_waitcnt lgkmcnt(0)
        s_add_u32 s48, s{60+2*didx}, 2000
        L_spin:
        s_sleep 1
        s_memrealtime s[50:51]
        s_waitcnt lgkmcnt(0)
        s_sub_u32 s50, s50, s48
        s_cmp_lt_i32 s50, 0
        s_cbranch_scc1 L_spin""")
    if prof == 1:
        a("L_prof:\ns_mov_b64 exec, -1\ns_memrealtime s[92:93]\ns_getreg_b32 s94, hwreg(HW_REG_XCC_ID)\ns_getreg_b32 s96, hwreg(HW_REG_HW_ID)\ns_waitcnt lgkmcnt(0)")
        for i in range(19): a(f"v_writelane_b32 v3, s{60+2*i}, {i}")
        a(f"v_lshrrev_b32 v4, 6, v0\ns_mul_i32 s48, s2, {NW}\nv_add_u32 v4, s48, v4\nv_lshlrev_b32 v4, 7, v4\nv_lshl_add_u32 v4, v1, 2, v4\nv_add_u32 v4, {PROF}, v4\ns_mov_b64 exec, 0x7ffff\nglobal_store_dword v4, v3, s[34:35]")
    a("L_end:\ns_endpgm")
    head = [l for l in open(REF).read().split("\n") if l.startswith(";") and "@launch" not in l]
    txt = "\n".join(head) + f"\n; @launch grid=(256,1,1) block=({NW*64},1,1) lds=131072\n"
    txt += f'.amdgcn_target "amdgcn-amd-amdhsa--gfx950"\n.text\n.globl {NAME}_kernel\n.p2align 8\n.type {NAME}_kernel,@function\n'
    txt += a.text()
    txt += f'''.section .rodata,"a"
.p2align 6
.amdhsa_kernel {NAME}_kernel
  .amdhsa_next_free_vgpr 152
  .amdhsa_next_free_sgpr 100
  .amdhsa_accum_offset 152
  .amdhsa_group_segment_fixed_size 0
  .amdhsa_kernarg_size 88
  .amdhsa_user_sgpr_count 2
  .amdhsa_user_sgpr_kernarg_segment_ptr 1
  .amdhsa_system_sgpr_workgroup_id_x 1
  .amdhsa_float_denorm_mode_32 3
.end_amdhsa_kernel
'''
    return txt
if __name__ == "__main__":
    out = sys.argv[1]; kw = {}
    for x in sys.argv[2:]:
        k, val = x.split("=")
        try: val = int(val, 0)
        except ValueError: pass
        kw[k] = val
    open(out, "w").write(gen(**kw))
```

```python
import sys
from asmlib import Asm
NAME = "recurrent_scan__sliding_block_cached__dense_activation_relu__decode"
REF = "cdna_kernels/" + NAME + ".s.ref"
QP, HP, OP, SP, YP, ML, PROF = 0x4000, 0x44000, 0xf4000, 0x174000, 0x1b4000, 0x1000, 0x400000
BOFF = 0x78000
L_WQ, L_W1, L_WO, L_W2, L_OR = 0, 16384, 24576, 40960, 49152
L_XS0, L_XS1, L_QS, L_HS, L_OS, L_ML, L_FL, L_P, L_K = 57344, 58368, 59392, 60416, 60928, 61952, 62080, 62464, 65536
F_W, F_K, F_M, F_P, F_Q = L_FL, L_FL + 16, L_FL + 32, L_FL + 48, L_FL + 64
TAGM = 0x3FF
LOG2E = "0x3fb8aa3b"
DPPF = "row_mask:0xf bank_mask:0xf"
NW = 10
def v(a, n=1): return f"v{a}" if n == 1 else f"v[{a}:{a+n-1}]"
MF = "v_mfma_f32_16x16x32_bf16"

def gen(prof=0, diag=None, nt="nt", wnt="nt", rot=9, rsh=0, cap=1 << 18, th=6, cw=1, fast=1, ntry=5, w2pos=1, tlbw=1, b00=1, th0=0, n0=0, th1=0, n1=99, fx=0, cx=0, xw=0, order=None, na=0, nb=0, dx=1, ns=0, sl=2, cp=0, osel=0, b4=0, se=0, ye=0, pe=0, oi=0, **kw):
    a = Asm()
    if diag is not None: prof = 2; drole, didx = diag[0], int(diag[1:])
    stubs = []
    def stamp(i):
        if prof == 1 or (prof == 2 and i in (0, didx)): a(f"s_memrealtime s[{60+2*i}:{61+2*i}]")
    def endwave(): a("s_branch L_prof" if prof else "s_endpgm")
    def tags():
        a("s_add_u32 s12, s11, 1\ns_add_u32 s13, s11, 0x156\ns_add_u32 s14, s11, 0x2ab\ns_add_u32 s15, s11, 0xc4")
        for k in range(4): a(f"s_and_b32 s{12+k}, s{12+k}, {TAGM}")
    def tagins(r):
        for k in range(4): a(f"v_bfi_b32 v{r+k}, v2, s{12+k}, v{r+k}")
    def check(r0, n, acc):
        for i in range(n): a(f"v_xor_b32 v{r0+i}, s{12+i%4}, v{r0+i}")
        a(f"v_or3_b32 v{acc}, v{r0}, v{r0+1}, v{r0+2}")
        for i in range(3, n - 1, 2): a(f"v_or3_b32 v{acc}, v{r0+i}, v{r0+i+1}, v{acc}")
        a(f"v_bitop3_b32 v{acc}, v{r0+n-1}, v{acc}, v2 bitop3:0xa8")
    def cstore(name, ins, inv=False):
        a(f"s_cbranch_scc{0 if inv else 1} {name}_s\n{ins}{' sc1' if inv else ''}\n{name}_e:")
        stubs.append(f"{name}_s:\n{ins}{'' if inv else ' sc1'}\ns_branch {name}_e")
    def gpoll(name, loads, r0, n, acc):
        a(f"{name}_c:\ns_waitcnt vmcnt(0)")
        check(r0, n, acc)
        a(f"v_cmp_ne_u32 vcc, 0, v{acc}\ns_cbranch_vccnz {name}")
        stubs.append(f"{name}:\n" + "\n".join(loads) + f"\ns_sub_u32 s56, s56, 1\ns_cbranch_scc0 {name}_c\ns_endpgm")
    def fwait(name, addr, off, n, vt):
        a(f"{name}_c:\nds_read_b{32*n} {v(vt,n)}, {addr} offset:{off}\ns_waitcnt lgkmcnt(0)")
        if n == 4: a(f"v_bitop3_b32 v{vt}, v{vt}, v{vt+1}, v{vt+2} bitop3:0x80\nv_and_b32 v{vt}, v{vt}, v{vt+3}")
        a(f"v_cmp_eq_u32 vcc, 0, v{vt}\ns_cbranch_vccnz {name}")
        stubs.append(f"{name}:\ns_sleep 1\ns_sub_u32 s56, s56, 1\ns_cbranch_scc0 {name}_c\ns_endpgm")
    def getU(vt): a(f"v_readfirstlane_b32 s52, v{vt}\ns_lshr_b32 s52, s52, 1\ns_cmp_eq_u32 s8, s4\ns_cselect_b32 s53, s52, 0")
    def lanes(): a("v_lshrrev_b32 v3, 4, v1\nv_bfe_u32 v4, v1, 2, 2\nv_and_b32 v5, 3, v1\nv_lshlrev_b32 v7, 4, v1")
    def sidx(d): a(f"s_lshl_b32 {d}, s4, 2\ns_add_u32 {d}, {d}, s6\ns_lshl_b32 {d}, {d}, 3\ns_add_u32 {d}, {d}, s7")
    a(f"{NAME}_kernel:")
    stamp(0)
    a("""s_cmp_ge_u32 s2, 256
    s_cbranch_scc1 L_end
    s_load_dwordx16 s[16:31], s[0:1], 0
    s_load_dwordx2 s[34:35], s[0:1], 80
    s_load_dwordx2 s[32:33], s[0:1], 64""")
    if cw: a("""s_getpc_b64 s[48:49]
    L_pc:
    v_lshlrev_b32 v3, 7, v0
    v_cmp_gt_u32 vcc, L_end-L_pc, v3
    s_and_saveexec_b64 s[50:51], vcc
    s_cbranch_execz L_nocw
    global_load_dword v15, v3, s[48:49]
    L_nocw:
    s_mov_b64 exec, s[50:51]""")
    a(f"""v_lshrrev_b32 v3, 6, v0
    v_and_b32 v1, 63, v0
    v_readfirstlane_b32 s3, v3
    s_and_b32 s4, s2, 7
    s_lshr_b32 s5, s2, 3
    s_and_b32 s6, s5, 3
    s_lshr_b32 s7, s5, 2
    s_and_b32 s8, s5, 7
    {f"s_xor_b32 s8, s8, {cx}" if cx else ""}
    s_lshr_b32 s9, s5, 3
    s_lshl_b32 s10, s4, 2
    s_add_u32 s10, s10, s9
    s_mov_b32 s56, {cap}
    v_mov_b32 v2, {TAGM}
    s_cmp_lt_u32 s3, 2
    s_cbranch_scc1 L_HB
    s_cmp_ge_u32 s3, 6
    s_cbranch_scc1 L_A
    v_mov_b32 v90, 0
    v_lshlrev_b32 v8, 2, v1
    ds_write_b32 v8, v90 offset:{L_FL}
    s_waitcnt lgkmcnt(0)
    s_barrier
    s_branch L_B
    L_A:""")
    a(f"""s_setprio 2
    s_sub_u32 s3, s3, 6
    v_lshrrev_b32 v13, 3, v1
    v_and_b32 v14, 7, v1
    v_lshlrev_b32 v14, 4, v14
    v_lshl_add_u32 v8, v13, 13, v14
    v_mul_u32_u24 v9, 3584, v13
    v_add_u32 v9, v9, v14
    s_lshl_b32 s51, s9, 20
    s_lshl_b32 s49, s4, 10
    s_add_u32 s51, s51, s49
    s_lshl_b32 s55, s8, 7
    s_add_u32 s51, s51, s55
    s_lshl_b32 s49, s3, 18
    s_add_u32 s51, s51, s49
    s_lshl_b32 s59, s3, 12
    s_add_u32 m0, s59, {L_WQ}
    s_lshl_b32 s98, s3, 11
    s_lshl_b32 s53, s3, 14
    s_mov_b32 s46, {4<<20}
    s_mov_b32 s47, 0x20000
    s_xor_b32 s54, s8, {fx}
    s_lshl_b32 s54, s54, 2
    s_add_u32 s54, s54, s3
    s_mul_i32 s54, s54, {16*3584}
    s_lshl_b32 s49, s10, 7
    s_add_u32 s54, s54, s49
    s_lshl_b32 s48, s6, 24
    s_lshl_b32 s49, s4, 21
    s_add_u32 s48, s48, s49
    s_lshl_b32 s49, s7, 16
    s_add_u32 s48, s48, s49
    s_add_u32 s48, s48, 0x180000
    s_lshr_b32 s50, s2, {rsh}
    s_mul_i32 s50, s50, {rot}
    s_add_u32 s50, s50, s3
    s_lshl_b32 s50, s50, 10
    s_and_b32 s50, s50, 0xffff
    s_mov_b32 s38, 0x10000
    s_mov_b32 s39, 0x20000
    s_mov_b32 s42, 0x10000
    s_mov_b32 s43, 0x20000""")
    lanes()
    a("""v_lshlrev_b32 v6, 4, v5
    v_lshl_add_u32 v6, v3, 6, v6
    v_lshl_add_u32 v6, v4, 8, v6
    s_waitcnt lgkmcnt(0)
    s_mov_b32 s44, s22
    s_mov_b32 s45, s23""")
    if b00: a("s_barrier")
    coff = lambda k: 0x200000 + (k - 1) * 0x40000 - SP
    yld = "global_load_dwordx4 v[152:155], v158, s[34:35] sc1"
    def fsetup():
        a(f"""v_lshrrev_b32 v157, 1, v1
        v_and_b32 v159, 1, v1
        v_lshlrev_b32 v157, 10, v157
        v_lshl_add_u32 v157, v159, 4, v157
        s_lshl_b32 s48, s4, 15
        s_lshl_b32 s49, s5, 5
        s_add_u32 s48, s48, s49
        s_add_u32 s48, s48, {SP}
        v_add_u32 v157, s48, v157
        v_add_u32 v158, {YP-SP}, v157
        v_lshlrev_b32 v159, 1, v159
        v_lshl_add_u32 v159, v3, 10, v159
        s_lshl_b32 s48, s4, 7
        s_lshl_b32 s49, s5, 2
        s_add_u32 s48, s48, s49
        v_add_u32 v159, s48, v159
        v_mov_b32 v152, 0
        v_mov_b32 v153, 0
        v_mov_b32 v154, 0
        v_mov_b32 v155, 0""")
    order = order or ("qqqq11" + "K" * 16 + ("22" if w2pos else "") + "V" * 16 + "oooo")
    stream = [(c, order[:n].count(c)) for n, c in enumerate(order)]
    assert [order.count(c) for c in "q1K2Vo"] == [4, 2, 16, 2 if w2pos else 0, 16, 4] and order[0] == "q"
    ws_ = [c for c in order if c in "q12o"]; assert ws_ == sorted(ws_, key="q12o".index)
    nW = max(n for n, c in enumerate(order) if c in "q1"); nK = max(n for n, c in enumerate(order) if c in "K2")
    m0v = lambda k, j: {"q": ("s59", L_WQ), "1": ("s98", L_W1), "K": ("s53", L_K), "2": ("s98", L_W2), "o": ("s59", L_WO)}[k]
    pos = {x: n for n, x in enumerate(stream)}
    st = dict(n=0, perm=0, land=-1, fw=0, fk=0)
    thf = lambda n: th0 if n < n0 else (th1 if n >= n1 else (th + xw if 22 < n <= 22 + th else th))
    VR, TR, AR, AC = 16, 80, 112, 144
    def waitfor(x): a(f"s_waitcnt vmcnt({st['n'] - 1 - pos[x]})")
    def breg(pp, j): return (TR if pp == 0 else VR) + 4 * j
    def mf(pp, jm): a(f"{MF} {v(AC+4*(jm>>2),4)}, {v(AR+16*pp+4*(jm&3),4)}, {v(breg(pp,jm),4)}, {v(AC+4*(jm>>2),4) if (pp or jm&3) else 0}")
    def perms(last=False):
        p = st["perm"]; pp, w = p >> 2, p & 3; i = 2 * p
        for j in range(8):
            a(f"v_perm_b32 v{breg(pp,j)+w}, v{VR+4*(i+1)+(j>>1)}, v{VR+4*i+(j>>1)}, s{57+(j&1)}")
            if last and j >= 2: mf(1, j - 2)
        st["perm"] += 1
    def ld():
        n = st["n"]; k, j = stream[n]
        if j == 0 and k == "1": a(f"s_mov_b32 s44, s28\ns_mov_b32 s45, s29\ns_cmp_ge_u32 s10, 28\ns_cselect_b32 s46, 0, {1792*1024}\ns_mov_b32 s51, s54")
        if j == 0 and k == "2": a(f"s_mov_b32 s44, s30\ns_mov_b32 s45, s31\ns_lshl_b32 s51, s10, 16\ns_add_u32 s51, s51, s55\ns_add_u32 s51, s51, s53")
        if j == 0 and k == "o": a(f"s_mov_b32 s44, s24\ns_mov_b32 s45, s25\ns_mov_b32 s46, {4<<20}\ns_mov_b32 s51, s99")
        if n and k != "V": a(f"s_add_u32 m0, {m0v(k, j)[0]}, {m0v(k, j)[1] + 1024 * j}")
        if na <= n < nb and n >= thf(n):
            a(f"s_cbranch_vccnz L_dw{n}\ns_waitcnt vmcnt({thf(n)-1})\nL_dw{n}:\ns_waitcnt vmcnt({thf(n)-1+dx})"); st["land"] = max(st["land"], n - thf(n) - dx)
        elif n - thf(n) > st["land"]: a(f"s_waitcnt vmcnt({thf(n)-1})"); st["land"] = n - thf(n)
        if k == "K": a(f"buffer_load_dwordx4 v6, s[36:39], s50 offen {nt} lds")
        elif k == "V": a(f"buffer_load_dwordx4 {v(VR+4*j,4)}, v7, s[40:43], s50 offen {nt}")
        else: a(f"buffer_load_dwordx4 { {'1': 'v9', 'o': 'v10'}.get(k, 'v8')}, s[44:47], s51 offen {wnt} lds")
        if k in "KV": a("s_add_u32 s50, s50, 4096\ns_and_b32 s50, s50, 0xffff")
        else: a(f"s_add_u32 s51, s51, {dict(q=65536, o=16384).get(k) or {'1': 8*3584, '2': 8192}[k]}")
        if k == "o": a("v_xor_b32 v10, 64, v10")
        st["n"] += 1
        if n == 0:
            a("s_load_dword s11, s[34:35], 0\ns_add_u32 s36, s18, s48\ns_addc_u32 s37, s19, 0\ns_add_u32 s40, s20, s48\ns_addc_u32 s41, s21, 0"); stamp(1)
            if nb: a("s_lshr_b32 s49, s22, 7\ns_add_u32 s49, s49, s8\ns_and_b32 s49, s49, 7\ns_cmp_eq_u32 s49, 3\ns_cselect_b64 vcc, -1, 0")
        if st["land"] >= nW and not st["fw"]: a(f"ds_write_b32 v12, v2 offset:{F_W}"); st["fw"] = 1
        if st["land"] >= nK and not st["fk"]: a(f"ds_write_b32 v12, v2 offset:{F_K}"); st["fk"] = 1
        if (k, j) == ("K", 15): stamp(2)
        if (k, j) == ("V", 15): stamp(3)
        while st["perm"] < 7 and pos[("V", 2 * st["perm"] + 1)] <= st["land"]: perms()
    while st["n"] < max(thf(0), pos[("q", 3)] + 1): ld()
    if not b00: a("s_barrier")
    a(f"""v_lshl_add_u32 v8, v13, 10, v14
    v_and_b32 v15, 3, v13
    v_lshl_add_u32 v10, v15, 17, v14
    v_lshrrev_b32 v13, 2, v13
    v_lshl_add_u32 v10, v13, 13, v10
    v_bfe_u32 v15, v1, 4, 1
    v_lshlrev_b32 v15, 5, v15
    v_xor_b32 v10, v15, v10
    s_lshl_b32 s99, s4, 9
    s_and_b32 s49, s3, 1
    s_lshl_b32 s49, s49, 6
    s_add_u32 s99, s99, s49
    s_lshl_b32 s49, s9, 1
    s_add_u32 s99, s99, s49
    s_lshr_b32 s49, s3, 1
    s_add_u32 s99, s99, s49
    s_lshl_b32 s99, s99, 10
    s_add_u32 s99, s99, s55
    s_lshl_b32 s49, s3, 2
    v_mov_b32 v12, s49
    s_lshl_b32 s49, s3, 9
    v_add_u32 v11, s49, v7
    v_lshlrev_b32 v15, 4, v5
    v_lshl_add_u32 v15, v3, 6, v15
    v_add_u32 v15, s49, v15
    s_lshl_b32 s49, s3, 11
    v_add_u32 v13, s49, v7
    s_mov_b32 s57, 0x05040100
    s_mov_b32 s58, 0x07060302""")
    sidx("s48")
    a(f"s_lshl_b32 s48, s48, 11\ns_add_u32 s48, s48, {OP}\nv_add_u32 v14, s48, v11")
    for i in range(32): a(f"v_mov_b32 v{AR+i}, 0")
    if ye == 1: fsetup()
    while st["n"] < len(stream) - pe: ld()
    if ye == 1:
        a(f"s_cmp_eq_u32 s3, 0\ns_cselect_b64 exec, -1, 1\nglobal_load_ushort v156, v159, s[16:17]\ns_and_b32 exec_hi, exec_hi, 0xffffff\n{yld}\ns_mov_b64 exec, -1"); st["n"] += 2
    if not st["fk"]: waitfor(stream[nK]); a(f"ds_write_b32 v12, v2 offset:{F_K}")
    while st["perm"] < 4:
        waitfor(("V", 2 * st["perm"] + 1)); perms()
    stamp(4)
    fwait("L_wp", "v12", F_P, 1, 8)
    for u in range(4):
        a(f"s_mov_b32 exec_lo, {0x000f000f << (4*u):#x}\ns_mov_b32 exec_hi, {0x000f000f << (4*u):#x}")
        for pp in range(2): a(f"ds_read_b128 {v(AR+16*pp+4*u,4)}, v15 offset:{L_P+256*pp}")
    a("s_mov_b64 exec, -1")
    getU(8); tags()
    stamp(6)
    a("s_waitcnt lgkmcnt(0)")
    assert st["perm"] >= 4
    for jm in range(8): mf(0, jm)
    while st["n"] < len(stream): ld()
    while st["perm"] < 7:
        waitfor(("V", 2 * st["perm"] + 1)); perms()
    waitfor(("V", 15))
    stamp(7)
    perms(last=True); mf(1, 6); mf(1, 7)
    a(f"""ds_write_b128 v13, {v(AC,4)} offset:{L_OR}
    s_cmp_eq_u32 s52, 0
    ds_write_b128 v13, {v(AC+4,4)} offset:{L_OR+1024}
    s_mov_b32 exec_hi, 0
    s_waitcnt lgkmcnt(0)
    s_barrier""")
    for k in range(4): a(f"ds_read_b128 {v(80+4*k,4)}, v11 offset:{L_OR+2048*k}")
    for k in range(1, 4): a(f"s_waitcnt lgkmcnt({3-k})\nv_pk_add_f32 v[80:81], v[80:81], {v(80+4*k,2)}\nv_pk_add_f32 v[82:83], v[82:83], {v(82+4*k,2)}")
    tagins(80)
    cstore("L_so", "global_store_dwordx4 v14, v[80:83], s[34:35]")
    if b4 >= 3: a("s_barrier")
    a("s_mov_b32 exec_hi, -1\ns_setprio 0")
    stamp(8)
    a("s_cmp_eq_u32 s3, 0\ns_cbranch_scc1 L_F\ns_waitcnt vmcnt(" + ("3" if ye == 1 else "1") + ")")
    stamp(10)
    a("s_barrier\n" * (1 + (0 < b4 < 4)))
    endwave()
    a("L_F:")
    xyld = f"global_load_ushort v156, v159, s[16:17]\ns_mov_b32 exec_hi, 0xffffff\n{yld}"
    if not ye: fsetup(); a(xyld)
    a("s_waitcnt vmcnt(1)" if ye >= 2 else f"s_mov_b32 exec_hi, 0xffffff\ns_waitcnt vmcnt(3)")
    stamp(10)
    if 0 < b4 < 4: a("s_barrier")
    s0 = "s_mov_b32 exec_hi, -1\nglobal_load_dwordx4 v[24:27], v157, s[34:35] sc1\ns_mov_b32 exec_hi, 0xffffff"
    if se == 1: a(s0)
    if ye >= 2: fsetup()
    if ye == 3: a(xyld)
    a("s_barrier")
    stamp(11)
    if ye == 2: a(xyld + "\n" + s0)
    a("s_waitcnt vmcnt(0)")
    if se == 2: a(s0)
    a("L_py_c:"); check(152, 4, 6)
    a("v_cmp_ne_u32 vcc, 0, v6\ns_and_b64 exec, exec, vcc\ns_cbranch_scc1 L_py")
    stubs.append(f"L_py:\n{yld}\ns_sub_u32 s56, s56, 1\ns_waitcnt vmcnt(0)\ns_cbranch_scc0 L_py_c\ns_endpgm")
    a("s_mov_b64 exec, -1")
    def fred(r):
        a(f"""v_permlane32_swap_b32 v{r}, v{r+2}
        v_permlane32_swap_b32 v{r+1}, v{r+3}
        v_add_f32 v{r}, v{r}, v{r+2}
        v_add_f32 v{r+1}, v{r+1}, v{r+3}
        v_permlane16_swap_b32 v{r}, v{r+1}
        v_add_f32 v{r}, v{r}, v{r+1}""")
        for s in (8, 4, 2): a(f"v_add_f32_dpp v{r}, v{r}, v{r} row_ror:{s} {DPPF}")
        a(f"v_cvt_pk_bf16_f32 v{r}, 0, v{r}")
    fred(152)
    a(f"""v_mul_f32 v17, 0xbfb8aa3b, v152
    v_exp_f32 v17, v17
    v_lshlrev_b32 v11, 16, v156
    v_add_f32 v17, 1.0, v17
    v_rcp_f32 v17, v17
    s_add_u32 s11, s11, 1
    v_mul_f32 v16, v152, v17
    v_cvt_pk_bf16_f32 v16, 0, v16""")
    stamp(13)
    if prof: a("s_mov_b32 s90, s56")
    if not ns:
        a("s_setprio 3\nglobal_load_dwordx4 v[20:23], v157, s[34:35] sc1")
        gpoll("L_ps", ["global_load_dwordx4 v[20:23], v157, s[34:35] sc1"], 20, 4, 6)
    else:
        sld = lambda k: f"global_load_dwordx4 {v(24+4*k,4)}, v157, s[34:35] sc1"
        a("s_setprio 3")
        def schk(k):
            for i in range(4): a(f"v_xor_b32 v{20+i}, s{12+i}, v{24+4*k+i}")
            a(f"v_or3_b32 v6, v20, v21, v22\nv_bitop3_b32 v6, v23, v6, v2 bitop3:0xa8\nv_cmp_ne_u32 vcc, 0, v6\ns_and_b64 exec, exec, vcc\ns_cbranch_scc0 L_psd")
        if se == 1 or ye == 2: schk(0)
        for k in range(se == 2, ns): a(sld(k))
        a("L_ps:")
        for k in range(ns):
            a(f"s_waitcnt vmcnt({ns-1})")
            schk(k); a(sld(k))
            if sl: a(f"s_sleep {sl}")
        a("s_sub_u32 s56, s56, 1\ns_cbranch_scc0 L_ps\ns_endpgm\nL_psd:\ns_mov_b64 exec, -1")
    stamp(14)
    if prof: a("s_sub_u32 s90, s90, s56")
    fred(20)
    a(f"""v_mul_f32 v20, v20, v16
    s_mov_b32 exec_lo, 0x00030003
    v_cvt_pk_bf16_f32 v20, 0, v20
    s_mov_b32 exec_hi, 0x00030003
    v_add_f32 v20, v20, v11
    s_cmp_lg_u32 s2, 0
    v_cvt_pk_bf16_f32 v20, v20, v20
    global_store_short v159, v20, s[32:33]
    s_cbranch_scc1 {"L_prof" if prof else "L_end"}
    s_mov_b64 exec, 1
    v_mov_b32 v8, 0
    v_mov_b32 v10, s11
    global_store_dword v8, v10, s[34:35]""")
    endwave()
    def hwave(q):
        nk = 4 if q else 2
        lw = L_WQ if q else L_W1; xs = L_XS0 if q else L_XS1
        a("v_lshrrev_b32 v3, 4, v1\nv_and_b32 v4, 15, v1\nv_lshlrev_b32 v4, 4, v4\nv_lshl_add_u32 v3, v3, 10, v4")
        a("s_mov_b32 s48, s9" if q else f"s_xor_b32 s48, s8, {fx}\ns_lshr_b32 s48, s48, 1")
        for i in range(4): a(f"s_add_u32 s49, s48, {i}\ns_and_b32 s49, s49, 3\ns_lshl_b32 s49, s49, 8\nv_add_u32 v{4+i}, s49, v3")
        a("s_waitcnt lgkmcnt(0)")
        for i in range(4): a(f"global_load_dwordx4 {v(16+4*i,4)}, v{4+i}, s[16:17]")
        a("s_barrier\ns_load_dword s11, s[34:35], 0")
        stamp(1)
        lanes()
        a(f"""v_lshl_add_u32 v10, v3, 3, v4
        v_lshlrev_b32 v10, 7, v10
        v_lshl_add_u32 v10, v5, 5, v10
        v_lshlrev_b32 v11, 4, v3
        v_lshl_add_u32 v11, v4, 8, v11
        v_lshlrev_b32 v12, 6, v3
        v_lshl_add_u32 v12, v5, 4, v12
        v_lshl_add_u32 v12, v4, {13 if q else 8}, v12
        v_mov_b32 v9, 0
        s_mov_b32 s52, 0xaaaaaaaa
        s_mov_b32 s53, 0xaaaaaaaa
        s_mov_b32 s54, 0xcccccccc
        s_mov_b32 s55, 0xcccccccc
        s_mov_b32 s59, 0x3f803f80
        s_getreg_b32 s58, hwreg(HW_REG_XCC_ID)
        s_and_b32 s58, s58, 15
        s_lshl_b32 s58, s58, 6""")
        if q: a(f"s_lshl_b32 s49, s4, 15\ns_lshl_b32 s50, s9, 11\ns_add_u32 s50, s50, s49\ns_lshl_b32 s51, s8, 8\ns_add_u32 s50, s50, s51\ns_add_u32 s50, s50, {QP}\ns_lshl_b32 s51, s6, 13\ns_add_u32 s49, s49, s51\ns_add_u32 s49, s49, {QP+4096}")
        else: a(f"s_xor_b32 s49, s8, {fx}\ns_and_b32 s49, s49, 1\ns_lshl_b32 s49, s49, 7\nv_add_u32 v11, s49, v11\ns_lshl_b32 s49, s10, 13\ns_lshl_b32 s50, s8, 10\ns_add_u32 s50, s50, s49\ns_add_u32 s50, s50, {HP}\ns_add_u32 s49, s49, {HP+4096}")
        a("v_add_u32 v12, s50, v12\nv_add_u32 v13, s49, v7\ns_waitcnt vmcnt(0)")
        stamp(2)
        a("v_dot2_f32_bf16 v48, v16, s59, 0\nv_dot2_f32_bf16 v49, v16, v16, 0")
        for i in range(1, 16): a(f"v_dot2_f32_bf16 v48, v{16+i}, s59, v48\nv_dot2_f32_bf16 v49, v{16+i}, v{16+i}, v49")
        for s in (8, 4, 2, 1): a(f"v_add_f32_dpp v48, v48, v48 row_ror:{s} {DPPF}\nv_add_f32_dpp v49, v49, v49 row_ror:{s} {DPPF}")
        a("""v_mul_f32 v48, 0x3b000000, v48
        v_mul_f32 v49, 0x3b000000, v49
        v_fma_f32 v49, -v48, v48, v49
        v_max_f32 v49, 0, v49
        v_cvt_pk_bf16_f32 v49, 0, v49
        v_add_f32 v49, 0x3727c5ac, v49
        v_cvt_pk_bf16_f32 v49, 0, v49
        v_sqrt_f32 v49, v49
        v_cvt_pk_bf16_f32 v48, 0, v48
        v_cvt_pk_bf16_f32 v49, 0, v49
        v_rcp_f32 v49, v49""")
        for i in range(4):
            a(f"""v_lshlrev_b32 v50, 16, v{16+i}
            v_and_b32 v51, 0xffff0000, v{16+i}
            v_sub_f32 v50, v50, v48
            v_sub_f32 v51, v51, v48
            v_cvt_pk_bf16_f32 v50, 0, v50
            v_cvt_pk_bf16_f32 v51, 0, v51
            v_mul_f32 v50, v50, v49
            v_mul_f32 v51, v51, v49
            v_cvt_pk_bf16_f32 v{16+i}, v50, v51""")
        a(f"ds_write_b128 v7, v[16:19] offset:{xs}")
        for t in range(nk): a(f"ds_read_b128 {v(32+4*t,4)}, v11 offset:{xs+64*t}")
        stamp(3)
        a("s_waitcnt lgkmcnt(0)")
        tags()
        nm = "L_pq" if q else "L_ph"
        fwait(nm + "w", "v9", F_W, 4, 20)
        stamp(4)
        if prof: a("s_waitcnt lgkmcnt(0)")
        trr = lambda t, tt: [a(f"ds_read_b64_tr_b16 {v(48+16*t+4*tt+2*h,2)}, v10 offset:{lw+t*4096+h*512+tt*8}") for h in range(2)]
        for tt in range(4): trr(0, tt)
        for t in range(nk):
            for tt in range(4):
                a(f"s_waitcnt lgkmcnt({6 if t + 1 < nk else 6-2*tt})")
                if t + 1 < nk: trr(t + 1, tt)
                a(f"{MF} {v(112+4*tt,4)}, {v(48+16*t+4*tt,4)}, {v(32+4*t,4)}, {v(112+4*tt,4) if t else 0}")
        for r in range(4): a(f"v_cndmask_b32 v{112+r}, v{112+r}, v{116+r}, s[52:53]")
        for r in range(4): a(f"v_cndmask_b32 v{120+r}, v{120+r}, v{124+r}, s[52:53]")
        for r in range(4): a(f"v_cndmask_b32 v{112+r}, v{112+r}, v{120+r}, s[54:55]")
        for r in range(4): a(f"v_bfi_b32 v{116+r}, v2, s{12+r}, v{112+r}")
        for r in range(4): a(f"s_xor_b32 s{12+r}, s{12+r}, s58")
        tagins(112)
        a(f"global_store_dwordx4 v12, v[112:115], s[34:35]\nv_add_u32 v12, {BOFF}, v12\nglobal_store_dwordx4 v12, v[116:119], s[34:35] sc1")
        stamp(5)
        a("s_waitcnt vmcnt(0)")
        if not q and not w2pos:
            a(f"v_lshrrev_b32 v6, 3, v1\nv_and_b32 v8, 7, v1\nv_lshlrev_b32 v8, 4, v8\nv_lshl_add_u32 v6, v6, 10, v8\ns_lshl_b32 s48, s10, 16\ns_lshl_b32 s49, s8, 7\ns_add_u32 s48, s48, s49\nv_add_u32 v6, s48, v6\ns_mov_b32 m0, {L_W2}")
            for j in range(8):
                if j: a("v_add_u32 v6, 8192, v6\ns_add_u32 m0, m0, 1024")
                a(f"global_load_lds_dwordx4 v6, s[30:31] {wnt}")
        if not q and w2pos: fwait("L_phk", "v9", F_K, 4, 20)
        stamp(6)
        a(f"s_mov_b32 s57, {ntry}")
        if not fast: a(f"s_branch {nm}_sw")
        a(f"{nm}:")
        for i in range(8): a(f"global_load_dwordx4 {v(16+4*i,4)}, v13, s[34:35] offset:{i*1024-4096} sc1")
        a("s_waitcnt vmcnt(0)")
        check(16, 32, 6)
        a(f"v_cmp_ne_u32 vcc, 0, v6\ns_cbranch_vccnz {nm}_r")
        stubs.append(f"""{nm}_r:
        s_sub_u32 s56, s56, 1
        s_cbranch_scc1 L_end
        s_sub_u32 s57, s57, 1
        s_cmp_lg_u32 s57, 0
        s_cbranch_scc1 {nm}
        {nm}_sw:
        s_mov_b32 s57, 0
        v_add_u32 v13, {BOFF}, v13
        s_xor_b32 s12, s12, s58
        s_xor_b32 s13, s13, s58
        s_xor_b32 s14, s14, s58
        s_xor_b32 s15, s15, s58
        s_branch {nm}""")
        stamp(7)
        if prof: a(f"s_sub_u32 s76, {ntry+1}, s57")
        a("v_lshlrev_b32 v14, 3, v1")
        if q:
            for i in range(0, 8, 2): a(f"v_pk_add_f32 {v(16+i,2)}, {v(16+i,2)}, {v(24+i,2)}\nv_pk_add_f32 {v(32+i,2)}, {v(32+i,2)}, {v(40+i,2)}")
            for i in range(0, 8, 2): a(f"v_pk_add_f32 {v(16+i,2)}, {v(16+i,2)}, {v(32+i,2)}")
            for i in range(4): a(f"v_cvt_pk_bf16_f32 v{16+i}, v{16+2*i}, v{17+2*i}")
            a(f"""s_cmp_gt_i32 s57, 0
            s_cselect_b32 s48, 3, 1
            ds_write_b64 v14, v[16:17] offset:{L_QS}
            v_mov_b32 v6, s48
            ds_write_b64 v14, v[18:19] offset:{L_QS+512}
            ds_write_b32 v9, v6 offset:{F_Q}
            s_waitcnt lgkmcnt(0)""")
        else:
            tags()
            for i in range(0, 16, 2): a(f"v_pk_add_f32 {v(16+i,2)}, {v(16+i,2)}, {v(32+i,2)}")
            for i in range(0, 8, 2): a(f"v_pk_add_f32 {v(16+i,2)}, {v(16+i,2)}, {v(24+i,2)}")
            for i in range(0, 4, 2): a(f"v_pk_add_f32 {v(16+i,2)}, {v(16+i,2)}, {v(20+i,2)}")
            for i in range(4): a(f"v_max_f32 v{16+i}, 0, v{16+i}")
            a(f"""v_cvt_pk_bf16_f32 v16, v16, v17
            v_cvt_pk_bf16_f32 v17, v18, v19
            ds_write_b64 v14, v[16:17] offset:{L_HS}
            v_lshlrev_b32 v11, 4, v3
            v_lshl_add_u32 v11, v5, 7, v11
            v_lshl_add_u32 v10, v3, 3, v4
            v_lshlrev_b32 v10, 7, v10
            v_lshl_add_u32 v10, v5, 3, v10
            s_lshl_b32 s48, s8, 15
            s_lshl_b32 s49, s10, 10
            s_add_u32 s48, s48, s49
            s_add_u32 s48, s48, {YP}
            v_add_u32 v12, s48, v7""")
            for t in range(2):
                a(f"ds_read_b128 {v(32+4*t,4)}, v11 offset:{L_HS+64*t}")
                for tt in range(4):
                    for h in range(2): a(f"ds_read_b64_tr_b16 {v(48+16*t+4*tt+2*h,2)}, v10 offset:{L_W2+t*4096+h*512+tt*32}")
                a("s_waitcnt lgkmcnt(0)")
                for tt in range(4): a(f"{MF} {v(112+4*tt,4)}, {v(32+4*t,4)}, {v(48+16*t+4*tt,4)}, {v(112+4*tt,4) if t else 0}")
            for tt in range(1, 4):
                for r in range(4): a(f"v_mov_b32_dpp v{112+r}, v{112+4*tt+r} quad_perm:[0,1,2,3] row_mask:{1<<tt} bank_mask:0xf")
            tagins(112)
            a("global_store_dwordx4 v12, v[112:115], s[34:35] sc1")
            stamp(11)
        a("s_barrier\n" * (2 + (b4 > 0) + (b4 == 3)))
        endwave()
    a("L_HB:\ns_setprio 3\ns_cmp_lg_u32 s3, 0\ns_cbranch_scc1 L_H1")
    hwave(1)
    a("L_H1:\ns_cmp_ge_u32 s10, 28\ns_cbranch_scc1 L_end")
    hwave(0)
    a("L_B:\ns_sub_u32 s3, s3, 2")
    lanes()
    a("s_load_dword s11, s[34:35], 0")
    if tlbw: a(f"""s_cmp_lg_u32 s3, 1
    s_cbranch_scc1 L_notlb
    s_lshl_b32 s48, s6, 24
    s_lshl_b32 s49, s4, 21
    s_add_u32 s48, s48, s49
    s_lshl_b32 s49, s7, 16
    s_add_u32 s48, s48, s49
    s_add_u32 s48, s48, 0x180000
    s_lshl_b32 s49, s4, 19
    s_min_u32 s50, s10, 27
    s_lshl_b32 s50, s50, 16
    s_mov_b64 exec, 1
    v_mov_b32 v8, s48
    v_mov_b32 v9, s49
    v_mov_b32 v10, s50
    global_load_dword v81, v8, s[18:19] nt
    global_load_dword v82, v8, s[20:21] nt
    global_load_dword v83, v10, s[30:31] nt
    global_load_dword v84, v9, s[24:25] nt
    global_load_dword v85, v90, s[32:33]
    {"v_mov_b32 v9, 0x2f0000" if cp else ""}
    {"global_load_dword v86, v9, s[34:35]" if cp else ""}
    s_mov_b64 exec, -1
    L_notlb:""")
    sidx("s51")
    a(f"""v_and_b32 v8, 1, v1
    v_lshlrev_b32 v8, 7, v8
    v_bfe_u32 v9, v1, 1, 2
    v_lshl_add_u32 v8, v9, 13, v8
    s_lshl_b32 s49, s4, 15
    s_lshl_b32 s50, s9, 11
    s_add_u32 s50, s50, s49
    s_lshl_b32 s49, s8, 8
    s_add_u32 s50, s50, s49
    s_add_u32 s50, s50, {QP}
    v_add_u32 v8, s50, v8
    v_lshlrev_b32 v9, 7, v1
    s_lshl_b32 s49, s10, 13
    s_lshl_b32 s50, s8, 10
    s_add_u32 s50, s50, s49
    s_add_u32 s50, s50, {HP-1024}
    s_mov_b64 exec, 0xff00
    v_add_u32 v8, s50, v9
    s_lshl_b32 s50, s51, 11
    s_add_u32 s50, s50, {OP-2048}
    s_mov_b32 exec_lo, 0xffff0000
    v_add_u32 v8, s50, v9
    s_lshl_b32 s54, s8, 15
    s_lshl_b32 s49, s10, 10
    s_add_u32 s54, s54, s49
    s_add_u32 s54, s54, {SP}
    s_sub_u32 s50, s54, 4096
    s_mov_b32 exec_lo, 0
    s_mov_b32 exec_hi, -1
    v_add_u32 v8, s50, v9
    s_mov_b64 exec, -1
    s_lshl_b32 s51, s51, 5
    s_add_u32 s51, s51, {ML}
    v_writelane_b32 v8, s51, 40
    s_cmp_lg_u32 s3, 0
    s_cbranch_scc1 L_nopre
    s_cmp_eq_u32 s8, s4
    s_cselect_b32 exec_hi, 0x1ff, 0
    s_or_b32 exec_hi, exec_hi, 0x100
    global_load_dword v80, v8, s[34:35] sc1
    s_mov_b64 exec, -1
    L_nopre:""")
    a(f"""s_mov_b32 s59, {LOG2E}
    v_lshl_add_u32 v8, v3, 3, v4
    v_lshlrev_b32 v8, 7, v8
    v_lshl_add_u32 v8, v5, 3, v8
    s_lshl_b32 s48, s3, 5
    v_add_u32 v8, s48, v8
    v_bfe_u32 v9, v1, 3, 2
    v_lshlrev_b32 v9, 5, v9
    v_xor_b32 v8, v9, v8
    v_lshlrev_b32 v9, 4, v3
    v_lshl_add_u32 v9, v5, 8, v9
    v_lshlrev_b32 v99, 3, v5
    v_add_u32 v10, {L_ML}, v99
    v_add_u32 v11, s48, v10
    v_add_u32 v99, s51, v99
    s_lshl_b32 s48, s3, 14
    s_add_u32 s48, s48, {L_K}
    v_add_u32 v92, s48, v7
    v_lshlrev_b32 v93, 8, v5
    v_lshl_add_u32 v93, v3, 6, v93
    v_lshl_add_u32 v93, v4, 4, v93
    s_lshl_b32 s48, s3, 2
    v_mov_b32 v94, s48
    v_lshlrev_b32 v95, 4, v5
    v_lshl_add_u32 v95, v3, 6, v95
    v_lshl_add_u32 v95, v4, 2, v95
    s_lshl_b32 s48, s3, 9
    v_add_u32 v95, s48, v95
    v_lshrrev_b32 v16, 5, v1
    v_and_b32 v98, 15, v1
    v_lshlrev_b32 v98, 3, v98
    v_lshl_add_u32 v98, v16, 7, v98
    s_lshl_b32 s48, s4, 2
    s_add_u32 s48, s48, s3
    s_lshl_b32 s49, s48, 8
    s_add_u32 s49, s49, {ML}
    v_add_u32 v98, s49, v98
    v_and_b32 v96, 31, v1
    v_lshlrev_b32 v6, 4, v96
    v_lshl_add_u32 v6, v16, 13, v6
    s_lshl_b32 s48, s48, 14
    s_lshl_b32 s49, s9, 9
    s_add_u32 s48, s48, s49
    s_add_u32 s48, s48, {OP+4096}
    v_add_u32 v6, s48, v6
    v_lshlrev_b32 v96, 3, v96
    v_lshl_add_u32 v96, v16, 2, v96
    s_lshl_b32 s49, s3, 8
    v_add_u32 v96, s49, v96
    s_add_u32 s54, s54, s49
    v_add_u32 v97, s54, v7
    s_waitcnt vmcnt(0) lgkmcnt(0)""")
    tags()
    a("s_lshl_b32 s50, s13, 10\ns_or_b32 s50, s50, s12\ns_and_b32 s50, s50, 0xffff")
    fwait("L_wk", "v94", F_K, 1, 80)
    stamp(2)
    for i in range(16):
        if i == 12: a("s_waitcnt lgkmcnt(0)")
        a(f"ds_read_b128 {v(16+4*i,4)}, v92 offset:{1024*i}")
    fwait("L_wq", "v90", F_Q, 1, 91)
    a(f"ds_read_b128 v[100:103], v93 offset:{L_QS}\ns_setprio 1")
    stamp(4)
    getU(91)
    a("s_waitcnt lgkmcnt(0)")
    S = 80
    def red(i):
        d = 12 + 4 * i
        if (i >> 1) & 1 == 0: a(f"v_add_f32_dpp v{d}, v{d+1}, v{d} row_ror:12 {DPPF}\nv_add_f32_dpp v{d+2}, v{d+3}, v{d+2} row_ror:12 {DPPF}")
        else: a(f"v_add_f32_dpp v{d}, v{d}, v{d+1} row_ror:4 {DPPF}\nv_add_f32_dpp v{d+2}, v{d+2}, v{d+3} row_ror:4 {DPPF}")
    def red2(i):
        d = 12 + 4 * i; pp, vv, e = i >> 3, (i >> 1) & 3, i & 1
        x, y = (d + 2, d) if vv < 2 else (d, d + 2)
        a(f"v_add_f32_dpp v{S+2*pp+e}, v{x}, v{y} row_ror:8 row_mask:0xf bank_mask:{1<<vv}")
    for i in range(16 + 4):
        if i < 16: a(f"{MF} {v(12+4*i,4)}, {v(16+4*i,4)}, v[100:103], 0")
        if 0 <= i - 3 < 16: red(i - 3)
        if 0 <= i - 4 < 16: red2(i - 4)
    for k in range(4): a(f"v_cvt_pk_bf16_f32 v{S+k}, 0, v{S+k}")
    for k in range(4): a(f"v_mul_f32 v{S+k}, 0x3db504f3, v{S+k}")
    for k in range(4): a(f"v_cvt_pk_bf16_f32 v{S+k}, 0, v{S+k}")
    def allred(op, r, t):
        a(f"""{op}_dpp v{r}, v{r}, v{r} row_ror:8 {DPPF}
        {op}_dpp v{r}, v{r}, v{r} row_ror:4 {DPPF}
        v_mov_b32 v{t}, v{r}
        v_permlane16_swap_b32 v{r}, v{t}
        {op} v{r}, v{r}, v{t}
        v_mov_b32 v{t}, v{r}
        v_permlane32_swap_b32 v{r}, v{t}
        {op} v{r}, v{r}, v{t}""")
    a("v_max3_f32 v84, v80, v81, v82\nv_max_f32 v84, v84, v83")
    allred("v_max_f32", 84, 86)
    for k in range(4): a(f"v_sub_f32 v{S+k}, v{S+k}, v84")
    for k in range(4): a(f"v_mul_f32 v{S+k}, s59, v{S+k}")
    for k in range(4): a(f"v_exp_f32 v{S+k}, v{S+k}")
    a("v_add_f32 v85, v80, v81\nv_add_f32 v86, v82, v83\nv_add_f32 v85, v85, v86")
    allred("v_add_f32", 85, 86)
    a(f"ds_write_b64 v11, v[84:85]\nds_write_b32 v94, v2 offset:{F_M}")
    fwait("L_wm", "v90", F_M, 4, 12)
    a("ds_read2_b64 v[16:19], v10 offset0:0 offset1:4\nds_read2_b64 v[20:23], v10 offset0:8 offset1:12")
    stamp(5)
    a("""s_waitcnt lgkmcnt(0)
    v_max3_f32 v24, v16, v18, v20
    v_max_f32 v24, v24, v22
    v_sub_f32 v84, v84, v24
    v_mul_f32 v84, s59, v84
    v_exp_f32 v84, v84""")
    for k in range(4): a(f"v_mul_f32 v{S+k}, v84, v{S+k}")
    a(f"""v_cvt_pk_bf16_f32 v80, v80, v81
    v_cvt_pk_bf16_f32 v81, v82, v83
    ds_write_b32 v95, v80 offset:{L_P}
    ds_write_b32 v95, v81 offset:{L_P+256}
    ds_write_b32 v94, v91 offset:{F_P}""")
    stamp(6)
    a("s_cmp_lg_u32 s3, 2\ns_cbranch_scc1 L_noml")
    for k in range(4): a(f"v_sub_f32 v{16+2*k}, v{16+2*k}, v24")
    for k in range(4): a(f"v_mul_f32 v{16+2*k}, s59, v{16+2*k}")
    for k in range(4): a(f"v_exp_f32 v{16+2*k}, v{16+2*k}")
    a("v_mul_f32 v25, v16, v17\nv_fmac_f32 v25, v18, v19\nv_fmac_f32 v25, v20, v21\nv_fmac_f32 v25, v22, v23")
    a("v_or_b32 v24, s50, v24\nv_bfi_b32 v25, v2, s14, v25\ns_mov_b64 exec, 15\ns_cmp_eq_u32 s52, 0")
    cstore("L_sml", "global_store_dwordx2 v99, v[24:25], s[34:35]")
    a("s_mov_b64 exec, -1\nL_noml:")
    stamp(9)
    if cp:
        for k in range(1, ns): a(f"v_add_u32 v{33+k}, {coff(k)}, v97")
    if osel:
        for t in range(4): a(f"s_mov_b64 s[{36+2*t}:{37+2*t}], -1")
    a("v_mov_b32 v33, 0xffff\ns_waitcnt lgkmcnt(0)\ns_setprio 3\ns_barrier")
    stamp(12)
    if prof: a("s_mov_b32 s90, s56")
    ol = [f"global_load_dwordx4 {v(64+4*t,4)}, v6, s[34:35] offset:{t*2048-4096} sc1" for t in range(4)]
    mll = "global_load_dwordx2 v[56:57], v98, s[34:35] sc1"
    wotr = lambda t: [a(f"ds_read_b64_tr_b16 {v(16+4*t+2*h,2)}, v8 offset:{L_WO+t*4096+h*512}") for h in range(2)]
    a(mll)
    if b4 >= 2: a("s_barrier")
    for l in ol: a(l)
    if 0 < b4 < 4:
        if b4 & 1: a("s_barrier")
        for t in range(4): wotr(t)
    a("L_pml:")
    a(f"""s_waitcnt vmcnt(4)
    v_xor_b32 v56, s50, v56
    v_xor_b32 v57, s14, v57
    v_and_b32 v32, v33, v56
    v_and_or_b32 v32, v57, v2, v32
    v_max_f32_dpp v58, v56, v56 row_ror:8 {DPPF}
    v_cmp_ne_u32 vcc, 0, v32
    s_cbranch_vccnz L_pml_r
    v_max_f32_dpp v58, v58, v58 row_ror:4 {DPPF}
    v_mov_b32 v59, v58
    v_permlane32_swap_b32 v58, v59
    v_max_f32 v58, v58, v59
    v_sub_f32 v56, v56, v58
    v_mul_f32 v56, s59, v56
    v_exp_f32 v56, v56
    v_mul_f32 v57, v56, v57
    v_add_f32_dpp v57, v57, v57 row_ror:8 {DPPF}
    v_add_f32_dpp v57, v57, v57 row_ror:4 {DPPF}
    v_mov_b32 v59, v57
    v_permlane32_swap_b32 v57, v59
    v_add_f32 v57, v57, v59
    v_rcp_f32 v57, v57
    v_mul_f32 v56, v56, v57""")
    stubs.append("L_pml_r:\n" + "\n".join([mll] + ol) + "\ns_sub_u32 s56, s56, 1\ns_cbranch_scc0 L_pml\ns_endpgm")
    stamp(10)
    fma = lambda t: [a(f"{'v_fmac_f32_dpp' if t else 'v_mul_f32_dpp'} v{60+k}, v56, v{64+4*t+k} row_newbcast:{4*t+k} {DPPF}") for k in range(4)]
    if oi:
        a("L_po_c:")
        for t in range(4):
            r0 = 64 + 4 * t
            a(f"s_waitcnt vmcnt({3-t})")
            for i in range(4): a(f"v_xor_b32 v{r0+i}, s{12+i}, v{r0+i}")
            a(f"v_or3_b32 v32, v{r0}, v{r0+1}, {'v32' if t else 0}\nv_or3_b32 v32, v{r0+2}, v{r0+3}, v32")
            if t == 3: a("v_and_b32 v32, v2, v32\nv_cmp_ne_u32 vcc, 0, v32")
            fma(t)
        a("s_cbranch_vccnz L_po")
        stubs.append("L_po:\n" + "\n".join(ol) + "\ns_sub_u32 s56, s56, 1\ns_cbranch_scc0 L_po_c\ns_endpgm")
    elif not osel: gpoll("L_po", ol, 64, 16, 32)
    else:
        a("L_po_c:")
        for t in range(4):
            a(f"s_waitcnt vmcnt({3-t})\ns_mov_b64 exec, s[{36+2*t}:{37+2*t}]")
            check(64 + 4 * t, 4, 32)
            a(f"v_cmp_ne_u32 s[{36+2*t}:{37+2*t}], 0, v32")
            if t == 2: a("s_or_b64 s[44:45], s[36:37], s[38:39]")
        a("s_or_b64 s[44:45], s[44:45], s[40:41]\ns_or_b64 s[44:45], s[44:45], s[42:43]\ns_mov_b64 exec, -1\ns_cbranch_scc1 L_po")
        stubs.append("L_po:\n" + "\n".join(f"s_mov_b64 exec, s[{36+2*t}:{37+2*t}]\n{ol[t]}" for t in range(4)) + "\ns_sub_u32 s56, s56, 1\ns_cbranch_scc0 L_po_c\ns_endpgm")
    stamp(13)
    if prof: a("s_sub_u32 s90, s90, s56")
    if not oi:
        for t in range(4): fma(t)
    a(f"""v_permlane32_swap_b32 v60, v62
    v_permlane32_swap_b32 v61, v63
    v_add_f32 v60, v60, v62
    v_add_f32 v61, v61, v63
    v_cvt_pk_bf16_f32 v60, v60, v61
    ds_write_b32 v96, v60 offset:{L_OS}
    s_waitcnt lgkmcnt(0)
    s_barrier""")
    for t in range(4):
        a(f"ds_read_b128 {v(64+4*t,4)}, v9 offset:{L_OS+64*t}")
        if b4 in (0, 4): wotr(t)
    for t in range(4): a(f"s_waitcnt lgkmcnt({9-3*t if b4 in (0, 4) else 3-t})\n{MF} v[48:51], {v(64+4*t,4)}, {v(16+4*t,4)}, {'v[48:51]' if t else 0}")
    a("s_mov_b64 exec, 0xffff\ns_cmp_eq_u32 s53, 0")
    tagins(48)
    cstore("L_ss", "global_store_dwordx4 v97, v[48:51], s[34:35]", inv=True)
    if cp:
        a("s_cmp_eq_u32 s8, s4\ns_cbranch_scc1 L_nocp")
        for k in range(1, ns): a(f"global_store_dwordx4 v{33+k}, v[48:51], s[34:35] sc1")
        a("L_nocp:")
    stamp(14)
    endwave()
    for x in stubs: a(x)
    if prof == 2:
        a("L_prof:\ns_mov_b64 exec, -1")
        if didx == 16: a("s_memrealtime s[92:93]")
        lo, hi = dict(H=(0, 0), B=(2, 5), A=(6, 9), F=(6, 6))[drole]
        a(f"""v_lshrrev_b32 v4, 6, v0
        v_readfirstlane_b32 s48, v4
        s_cmp_lt_u32 s48, {lo}
        s_cbranch_scc1 L_end
        s_cmp_gt_u32 s48, {hi}
        s_cbranch_scc1 L_end
        s_waitcnt lgkmcnt(0)
        s_add_u32 s48, s{60+2*didx}, 2000
        L_spin:
        s_sleep 1
        s_memrealtime s[50:51]
        s_waitcnt lgkmcnt(0)
        s_sub_u32 s50, s50, s48
        s_cmp_lt_i32 s50, 0
        s_cbranch_scc1 L_spin""")
    if prof == 1:
        a("L_prof:\ns_mov_b64 exec, -1\ns_memrealtime s[92:93]\ns_getreg_b32 s94, hwreg(HW_REG_XCC_ID)\ns_getreg_b32 s96, hwreg(HW_REG_HW_ID)\ns_waitcnt lgkmcnt(0)")
        for i in range(19): a(f"v_writelane_b32 v3, s{60+2*i}, {i}")
        a(f"v_lshrrev_b32 v4, 6, v0\ns_mul_i32 s48, s2, {NW}\nv_add_u32 v4, s48, v4\nv_lshlrev_b32 v4, 7, v4\nv_lshl_add_u32 v4, v1, 2, v4\nv_add_u32 v4, {PROF}, v4\ns_mov_b64 exec, 0x7ffff\nglobal_store_dword v4, v3, s[34:35]")
    a("L_end:\ns_endpgm")
    head = [l for l in open(REF).read().split("\n") if l.startswith(";") and "@launch" not in l]
    txt = "\n".join(head) + f"\n; @launch grid=(256,1,1) block=({NW*64},1,1) lds=131072\n"
    txt += f'.amdgcn_target "amdgcn-amd-amdhsa--gfx950"\n.text\n.globl {NAME}_kernel\n.p2align 8\n.type {NAME}_kernel,@function\n'
    txt += a.text()
    txt += f'''.section .rodata,"a"
.p2align 6
.amdhsa_kernel {NAME}_kernel
  .amdhsa_next_free_vgpr 160
  .amdhsa_next_free_sgpr 100
  .amdhsa_accum_offset 160
  .amdhsa_group_segment_fixed_size 0
  .amdhsa_kernarg_size 88
  .amdhsa_user_sgpr_count 2
  .amdhsa_user_sgpr_kernarg_segment_ptr 1
  .amdhsa_system_sgpr_workgroup_id_x 1
  .amdhsa_float_denorm_mode_32 3
.end_amdhsa_kernel
'''
    return txt
if __name__ == "__main__":
    out = sys.argv[1]; kw = {}
    for x in sys.argv[2:]:
        k, val = x.split("=")
        try: val = int(val, 0)
        except ValueError: pass
        kw[k] = val
    open(out, "w").write(gen(**kw))
```

```python
import sys
from asmlib import Asm
NAME = "recurrent_scan__sliding_block_cached__dense_activation_relu__decode"
REF = "cdna_kernels/" + NAME + ".s.ref"
QP, HP, OP, SP, YP, ML, PROF = 0x4000, 0x44000, 0xf4000, 0x174000, 0x1b4000, 0x1000, 0x400000
BOFF = 0x78000
L_WQ, L_W1, L_WO, L_W2, L_OR = 0, 16384, 24576, 40960, 49152
L_XS0, L_XS1, L_QS, L_HS, L_OS, L_ML, L_FL, L_P, L_K = 57344, 58368, 59392, 60416, 60928, 61952, 62080, 62464, 65536
F_W, F_K, F_M, F_P, F_Q, F_2, F_1 = L_FL, L_FL + 16, L_FL + 32, L_FL + 48, L_FL + 64, L_FL + 80, L_FL + 96
TAGM = 0x3FF
LOG2E = "0x3fb8aa3b"
DPPF = "row_mask:0xf bank_mask:0xf"
NW = 10
def v(a, n=1): return f"v{a}" if n == 1 else f"v[{a}:{a+n-1}]"
MF = "v_mfma_f32_16x16x32_bf16"

def gen(prof=0, diag=None, nt="nt", wnt="nt", rot=9, rsh=0, cap=1 << 18, th=6, cw=1, fast=1, ntry=5, w2pos=1, tlbw=1, b00=1, th0=0, n0=0, th1=0, n1=99, fx=0, cx=0, xw=0, order=None, na=12, nb=28, dx=1, ns=2, sl=3, cp=0, osel=0, b4=2, se=0, ye=2, pe=4, oi=1, nopl=0, pw=3, pwp=1, hg=0, f1=1, **kw):
    a = Asm()
    if diag is not None: prof = 2; drole, didx = diag[0], int(diag[1:])
    stubs = []
    def stamp(i):
        if prof == 1 or (prof == 2 and i in (0, didx)): a(f"s_memrealtime s[{60+2*i}:{61+2*i}]")
    def endwave(): a("s_branch L_prof" if prof else "s_endpgm")
    def tags():
        a("s_add_u32 s12, s11, 1\ns_add_u32 s13, s11, 0x156\ns_add_u32 s14, s11, 0x2ab\ns_add_u32 s15, s11, 0xc4")
        for k in range(4): a(f"s_and_b32 s{12+k}, s{12+k}, {TAGM}")
    def tagins(r):
        for k in range(4): a(f"v_bfi_b32 v{r+k}, v2, s{12+k}, v{r+k}")
    def check(r0, n, acc):
        for i in range(n): a(f"v_xor_b32 v{r0+i}, s{12+i%4}, v{r0+i}")
        a(f"v_or3_b32 v{acc}, v{r0}, v{r0+1}, v{r0+2}")
        for i in range(3, n - 1, 2): a(f"v_or3_b32 v{acc}, v{r0+i}, v{r0+i+1}, v{acc}")
        a(f"v_bitop3_b32 v{acc}, v{r0+n-1}, v{acc}, v2 bitop3:0xa8")
    def cstore(name, ins, inv=False):
        a(f"s_cbranch_scc{0 if inv else 1} {name}_s\n{ins}{' sc1' if inv else ''}\n{name}_e:")
        stubs.append(f"{name}_s:\n{ins}{'' if inv else ' sc1'}\ns_branch {name}_e")
    def gpoll(name, loads, r0, n, acc):
        a(f"{name}_c:\ns_waitcnt vmcnt(0)")
        check(r0, n, acc)
        a(f"v_cmp_ne_u32 vcc, 0, v{acc}\ns_cbranch_vccnz {name}")
        stubs.append(f"{name}:\n" + "\n".join(loads) + f"\ns_sub_u32 s56, s56, 1\ns_cbranch_scc0 {name}_c\ns_endpgm")
    def fwait(name, addr, off, n, vt):
        a(f"{name}_c:\nds_read_b{32*n} {v(vt,n)}, {addr} offset:{off}\ns_waitcnt lgkmcnt(0)")
        if n == 4: a(f"v_bitop3_b32 v{vt}, v{vt}, v{vt+1}, v{vt+2} bitop3:0x80\nv_and_b32 v{vt}, v{vt}, v{vt+3}")
        a(f"v_cmp_eq_u32 vcc, 0, v{vt}\ns_cbranch_vccnz {name}")
        stubs.append(f"{name}:\ns_sleep 1\ns_sub_u32 s56, s56, 1\ns_cbranch_scc0 {name}_c\ns_endpgm")
    def getU(vt): a(f"v_readfirstlane_b32 s52, v{vt}\ns_lshr_b32 s52, s52, 1\ns_cmp_eq_u32 s8, s4\ns_cselect_b32 s53, s52, 0")
    def lanes(): a("v_lshrrev_b32 v3, 4, v1\nv_bfe_u32 v4, v1, 2, 2\nv_and_b32 v5, 3, v1\nv_lshlrev_b32 v7, 4, v1")
    def sidx(d): a(f"s_lshl_b32 {d}, s4, 2\ns_add_u32 {d}, {d}, s6\ns_lshl_b32 {d}, {d}, 3\ns_add_u32 {d}, {d}, s7")
    a(f"{NAME}_kernel:")
    stamp(0)
    a("""s_cmp_ge_u32 s2, 256
    s_cbranch_scc1 L_end
    s_load_dwordx16 s[16:31], s[0:1], 0
    s_load_dwordx2 s[34:35], s[0:1], 80
    s_load_dwordx2 s[32:33], s[0:1], 64""")
    if cw: a("""s_getpc_b64 s[48:49]
    L_pc:
    v_lshlrev_b32 v3, 7, v0
    v_cmp_gt_u32 vcc, L_end-L_pc, v3
    s_and_saveexec_b64 s[50:51], vcc
    s_cbranch_execz L_nocw
    global_load_dword v15, v3, s[48:49]
    L_nocw:
    s_mov_b64 exec, s[50:51]""")
    a(f"""v_lshrrev_b32 v3, 6, v0
    v_and_b32 v1, 63, v0
    v_readfirstlane_b32 s3, v3
    s_and_b32 s4, s2, 7
    s_lshr_b32 s5, s2, 3
    s_and_b32 s6, s5, 3
    s_lshr_b32 s7, s5, 2
    s_and_b32 s8, s5, 7
    {f"s_xor_b32 s8, s8, {cx}" if cx else ""}
    s_lshr_b32 s9, s5, 3
    s_lshl_b32 s10, s4, 2
    s_add_u32 s10, s10, s9
    s_mov_b32 s56, {cap}
    v_mov_b32 v2, {TAGM}
    s_cmp_lt_u32 s3, 2
    s_cbranch_scc1 L_HB
    s_cmp_ge_u32 s3, 6
    s_cbranch_scc1 L_A
    v_mov_b32 v90, 0
    v_lshlrev_b32 v8, 2, v1
    ds_write_b32 v8, v90 offset:{L_FL}
    s_waitcnt lgkmcnt(0)
    s_barrier
    s_branch L_B
    L_A:""")
    a(f"""s_setprio 2
    s_sub_u32 s3, s3, 6
    v_lshrrev_b32 v13, 3, v1
    v_and_b32 v14, 7, v1
    v_lshlrev_b32 v14, 4, v14
    v_lshl_add_u32 v8, v13, 13, v14
    v_mul_u32_u24 v9, 3584, v13
    v_add_u32 v9, v9, v14
    s_lshl_b32 s51, s9, 20
    s_lshl_b32 s49, s4, 10
    s_add_u32 s51, s51, s49
    s_lshl_b32 s55, s8, 7
    s_add_u32 s51, s51, s55
    s_lshl_b32 s49, s3, 18
    s_add_u32 s51, s51, s49
    s_lshl_b32 s59, s3, 12
    s_add_u32 m0, s59, {L_WQ}
    s_lshl_b32 s98, s3, 11
    s_lshl_b32 s53, s3, 14
    s_mov_b32 s46, {4<<20}
    s_mov_b32 s47, 0x20000
    s_xor_b32 s54, s8, {fx}
    s_lshl_b32 s54, s54, 2
    s_add_u32 s54, s54, s3
    s_mul_i32 s54, s54, {16*3584}
    s_lshl_b32 s49, s10, 7
    s_add_u32 s54, s54, s49
    s_lshl_b32 s48, s6, 24
    s_lshl_b32 s49, s4, 21
    s_add_u32 s48, s48, s49
    s_lshl_b32 s49, s7, 16
    s_add_u32 s48, s48, s49
    s_add_u32 s48, s48, 0x180000
    s_lshr_b32 s50, s2, {rsh}
    s_mul_i32 s50, s50, {rot}
    s_add_u32 s50, s50, s3
    s_lshl_b32 s50, s50, 10
    s_and_b32 s50, s50, 0xffff
    s_mov_b32 s38, 0x10000
    s_mov_b32 s39, 0x20000
    s_mov_b32 s42, 0x10000
    s_mov_b32 s43, 0x20000""")
    lanes()
    a("""v_lshlrev_b32 v6, 4, v5
    v_lshl_add_u32 v6, v3, 6, v6
    v_lshl_add_u32 v6, v4, 8, v6
    s_waitcnt lgkmcnt(0)
    s_mov_b32 s44, s22
    s_mov_b32 s45, s23""")
    if b00: a("s_barrier")
    coff = lambda k: 0x200000 + (k - 1) * 0x40000 - SP
    yld = "global_load_dwordx4 v[152:155], v158, s[34:35] sc1"
    def fsetup():
        a(f"""v_lshrrev_b32 v157, 1, v1
        v_and_b32 v159, 1, v1
        v_lshlrev_b32 v157, 10, v157
        v_lshl_add_u32 v157, v159, 4, v157
        s_lshl_b32 s48, s4, 15
        s_lshl_b32 s49, s5, 5
        s_add_u32 s48, s48, s49
        s_add_u32 s48, s48, {SP}
        v_add_u32 v157, s48, v157
        v_add_u32 v158, {YP-SP}, v157
        v_lshlrev_b32 v159, 1, v159
        v_lshl_add_u32 v159, v3, 10, v159
        s_lshl_b32 s48, s4, 7
        s_lshl_b32 s49, s5, 2
        s_add_u32 s48, s48, s49
        v_add_u32 v159, s48, v159
        v_mov_b32 v152, 0
        v_mov_b32 v153, 0
        v_mov_b32 v154, 0
        v_mov_b32 v155, 0""")
    order = order or ("qqqq11KK2KK2" + "K" * 12 + "V" * 16 + "oooo")
    stream = [(c, order[:n].count(c)) for n, c in enumerate(order)]
    assert [order.count(c) for c in "q1K2Vo"] == [4, 2, 16, 2 if w2pos else 0, 16, 4] and order[0] == "q"
    ws_ = [c for c in order if c in "q12o"]; assert ws_ == sorted(ws_, key="q12o".index)
    nW = max(n for n, c in enumerate(order) if c in ("q" if f1 else "q1")); nK = max(n for n, c in enumerate(order) if c in ("K" if hg else "K2"))
    m0v = lambda k, j: {"q": ("s59", L_WQ), "1": ("s98", L_W1), "K": ("s53", L_K), "2": ("s98", L_W2), "o": ("s59", L_WO)}[k]
    pos = {x: n for n, x in enumerate(stream)}
    st = dict(n=0, perm=0, land=-1, fw=0, fk=0)
    thf = lambda n: th0 if n < n0 else (th1 if n >= n1 else (th + xw if 22 < n <= 22 + th else th))
    VR, TR, AR, AC = 16, 80, 112, 144
    def waitfor(x): a(f"s_waitcnt vmcnt({st['n'] - 1 - pos[x]})")
    def breg(pp, j): return (TR if pp == 0 else VR) + 4 * j
    def mf(pp, jm): a(f"{MF} {v(AC+4*(jm>>2),4)}, {v(AR+16*pp+4*(jm&3),4)}, {v(breg(pp,jm),4)}, {v(AC+4*(jm>>2),4) if (pp or jm&3) else 0}")
    def perms(last=False):
        p = st["perm"]; pp, w = p >> 2, p & 3; i = 2 * p
        for j in range(8):
            a(f"v_perm_b32 v{breg(pp,j)+w}, v{VR+4*(i+1)+(j>>1)}, v{VR+4*i+(j>>1)}, s{57+(j&1)}")
            if last and j >= 2: mf(1, j - 2)
        st["perm"] += 1
    def ld():
        n = st["n"]; k, j = stream[n]
        if j == 0 and k == "1": a(f"s_mov_b32 s44, s28\ns_mov_b32 s45, s29\ns_cmp_ge_u32 s10, 28\ns_cselect_b32 s46, 0, {1792*1024}\ns_mov_b32 s51, s54")
        if j == 0 and k == "2": a(f"s_mov_b32 s44, s30\ns_mov_b32 s45, s31\ns_lshl_b32 s51, s10, 16\ns_add_u32 s51, s51, s55\ns_add_u32 s51, s51, s53")
        if j == 0 and k == "o": a(f"s_mov_b32 s44, s24\ns_mov_b32 s45, s25\ns_mov_b32 s46, {4<<20}\ns_mov_b32 s51, s99")
        if n and k != "V": a(f"s_add_u32 m0, {m0v(k, j)[0]}, {m0v(k, j)[1] + 1024 * j}")
        if na <= n < nb and n >= thf(n):
            a(f"s_cbranch_vccnz L_dw{n}\ns_waitcnt vmcnt({thf(n)-1})\nL_dw{n}:\ns_waitcnt vmcnt({thf(n)-1+dx})"); st["land"] = max(st["land"], n - thf(n) - dx)
        elif n - thf(n) > st["land"]: a(f"s_waitcnt vmcnt({thf(n)-1})"); st["land"] = n - thf(n)
        if k == "K": a(f"buffer_load_dwordx4 v6, s[36:39], s50 offen {nt} lds")
        elif k == "V": a(f"buffer_load_dwordx4 {v(VR+4*j,4)}, v7, s[40:43], s50 offen {nt}")
        else: a(f"buffer_load_dwordx4 { {'1': 'v9', 'o': 'v10'}.get(k, 'v8')}, s[44:47], s51 offen {wnt} lds")
        if k in "KV": a("s_add_u32 s50, s50, 4096\ns_and_b32 s50, s50, 0xffff")
        else: a(f"s_add_u32 s51, s51, {dict(q=65536, o=16384).get(k) or {'1': 8*3584, '2': 8192}[k]}")
        if k == "o": a("v_xor_b32 v10, 64, v10")
        st["n"] += 1
        if n == 0:
            a("s_load_dword s11, s[34:35], 0\ns_add_u32 s36, s18, s48\ns_addc_u32 s37, s19, 0\ns_add_u32 s40, s20, s48\ns_addc_u32 s41, s21, 0"); stamp(1)
            if nb: a("s_lshr_b32 s49, s22, 7\ns_add_u32 s49, s49, s8\ns_and_b32 s49, s49, 7\ns_cmp_eq_u32 s49, 3\ns_cselect_b64 vcc, -1, 0")
        if st["land"] >= nW and not st["fw"]: a(f"ds_write_b32 v12, v2 offset:{F_W}"); st["fw"] = 1
        if st["land"] >= nK and not st["fk"]: a(f"ds_write_b32 v12, v2 offset:{F_K}"); st["fk"] = 1
        if hg and st["land"] >= pos[("2", 1)] and not st.get("f2"): a(f"ds_write_b32 v12, v2 offset:{F_2}"); st["f2"] = 1
        if f1 and st["land"] >= pos[("1", 1)] and not st.get("f1"): a(f"ds_write_b32 v12, v2 offset:{F_1}"); st["f1"] = 1
        if (k, j) == ("K", 15): stamp(2)
        if (k, j) == ("V", 15): stamp(3)
        while st["perm"] < 7 and pos[("V", 2 * st["perm"] + 1)] <= st["land"]: perms()
    while st["n"] < max(thf(0), pos[("q", 3)] + 1): ld()
    if not b00: a("s_barrier")
    a(f"""v_lshl_add_u32 v8, v13, 10, v14
    v_and_b32 v15, 3, v13
    v_lshl_add_u32 v10, v15, 17, v14
    v_lshrrev_b32 v13, 2, v13
    v_lshl_add_u32 v10, v13, 13, v10
    v_bfe_u32 v15, v1, 4, 1
    v_lshlrev_b32 v15, 5, v15
    v_xor_b32 v10, v15, v10
    s_lshl_b32 s99, s4, 9
    s_and_b32 s49, s3, 1
    s_lshl_b32 s49, s49, 6
    s_add_u32 s99, s99, s49
    s_lshl_b32 s49, s9, 1
    s_add_u32 s99, s99, s49
    s_lshr_b32 s49, s3, 1
    s_add_u32 s99, s99, s49
    s_lshl_b32 s99, s99, 10
    s_add_u32 s99, s99, s55
    s_lshl_b32 s49, s3, 2
    v_mov_b32 v12, s49
    s_lshl_b32 s49, s3, 9
    v_add_u32 v11, s49, v7
    v_lshlrev_b32 v15, 4, v5
    v_lshl_add_u32 v15, v3, 6, v15
    v_add_u32 v15, s49, v15
    s_lshl_b32 s49, s3, 11
    v_add_u32 v13, s49, v7
    s_mov_b32 s57, 0x05040100
    s_mov_b32 s58, 0x07060302""")
    sidx("s48")
    a(f"s_lshl_b32 s48, s48, 11\ns_add_u32 s48, s48, {OP}\nv_add_u32 v14, s48, v11")
    for i in range(32): a(f"v_mov_b32 v{AR+i}, 0")
    if ye == 1: fsetup()
    while st["n"] < len(stream) - pe: ld()
    if ye == 1:
        a(f"s_cmp_eq_u32 s3, 0\ns_cselect_b64 exec, -1, 1\nglobal_load_ushort v156, v159, s[16:17]\ns_and_b32 exec_hi, exec_hi, 0xffffff\n{yld}\ns_mov_b64 exec, -1"); st["n"] += 2
    if not st["fk"]: waitfor(stream[nK]); a(f"ds_write_b32 v12, v2 offset:{F_K}")
    while st["perm"] < 4:
        waitfor(("V", 2 * st["perm"] + 1)); perms()
    assert not hg or st["f2"]
    stamp(4)
    fwait("L_wp", "v12", F_P, 1, 8)
    for u in range(4):
        a(f"s_mov_b32 exec_lo, {0x000f000f << (4*u):#x}\ns_mov_b32 exec_hi, {0x000f000f << (4*u):#x}")
        for pp in range(2): a(f"ds_read_b128 {v(AR+16*pp+4*u,4)}, v15 offset:{L_P+256*pp}")
    a("s_mov_b64 exec, -1")
    getU(8); tags()
    stamp(6)
    a("s_waitcnt lgkmcnt(0)")
    assert st["perm"] >= 4
    for jm in range(8): mf(0, jm)
    while st["n"] < len(stream): ld()
    while st["perm"] < 7:
        waitfor(("V", 2 * st["perm"] + 1)); perms()
    waitfor(("V", 15))
    stamp(7)
    perms(last=True); mf(1, 6); mf(1, 7)
    a(f"""ds_write_b128 v13, {v(AC,4)} offset:{L_OR}
    s_cmp_eq_u32 s52, 0
    ds_write_b128 v13, {v(AC+4,4)} offset:{L_OR+1024}
    s_mov_b32 exec_hi, 0
    s_waitcnt lgkmcnt(0)
    s_barrier""")
    for k in range(4): a(f"ds_read_b128 {v(80+4*k,4)}, v11 offset:{L_OR+2048*k}")
    for k in range(1, 4): a(f"s_waitcnt lgkmcnt({3-k})\nv_pk_add_f32 v[80:81], v[80:81], {v(80+4*k,2)}\nv_pk_add_f32 v[82:83], v[82:83], {v(82+4*k,2)}")
    tagins(80)
    cstore("L_so", "global_store_dwordx4 v14, v[80:83], s[34:35]")
    if b4 >= 3: a("s_barrier")
    a("s_mov_b32 exec_hi, -1\ns_setprio 0")
    stamp(8)
    a("s_cmp_eq_u32 s3, 0\ns_cbranch_scc1 L_F\ns_waitcnt vmcnt(" + ("3" if ye == 1 else "1") + ")")
    stamp(10)
    a("s_barrier\n" * (1 + (0 < b4 < 4)))
    endwave()
    a("L_F:")
    xyld = f"global_load_ushort v156, v159, s[16:17]\ns_mov_b32 exec_hi, 0xffffff\n{yld}"
    if not ye: fsetup(); a(xyld)
    a("s_waitcnt vmcnt(1)" if ye >= 2 else f"s_mov_b32 exec_hi, 0xffffff\ns_waitcnt vmcnt(3)")
    stamp(10)
    if 0 < b4 < 4: a("s_barrier")
    s0 = "s_mov_b32 exec_hi, -1\nglobal_load_dwordx4 v[24:27], v157, s[34:35] sc1\ns_mov_b32 exec_hi, 0xffffff"
    if se == 1: a(s0)
    if ye >= 2: fsetup()
    if ye == 3: a(xyld)
    a("s_barrier")
    stamp(11)
    if ye == 2: a(xyld + "\n" + s0)
    a("s_waitcnt vmcnt(0)")
    if se == 2: a(s0)
    a("L_py_c:"); check(152, 4, 6)
    a("v_cmp_ne_u32 vcc, 0, v6\ns_and_b64 exec, exec, vcc\ns_cbranch_scc1 L_py")
    stubs.append(f"L_py:\n{yld}\ns_sub_u32 s56, s56, 1\ns_waitcnt vmcnt(0)\ns_cbranch_scc0 L_py_c\ns_endpgm")
    a("s_mov_b64 exec, -1")
    def fred(r):
        a(f"""v_permlane32_swap_b32 v{r}, v{r+2}
        v_permlane32_swap_b32 v{r+1}, v{r+3}
        v_add_f32 v{r}, v{r}, v{r+2}
        v_add_f32 v{r+1}, v{r+1}, v{r+3}
        v_permlane16_swap_b32 v{r}, v{r+1}
        v_add_f32 v{r}, v{r}, v{r+1}""")
        for s in (8, 4, 2): a(f"v_add_f32_dpp v{r}, v{r}, v{r} row_ror:{s} {DPPF}")
        a(f"v_cvt_pk_bf16_f32 v{r}, 0, v{r}")
    fred(152)
    a(f"""v_mul_f32 v17, 0xbfb8aa3b, v152
    v_exp_f32 v17, v17
    v_lshlrev_b32 v11, 16, v156
    v_add_f32 v17, 1.0, v17
    v_rcp_f32 v17, v17
    s_add_u32 s11, s11, 1
    v_mul_f32 v16, v152, v17
    v_cvt_pk_bf16_f32 v16, 0, v16""")
    stamp(13)
    if prof: a("s_mov_b32 s90, s56")
    if not ns:
        a("s_setprio 3\nglobal_load_dwordx4 v[20:23], v157, s[34:35] sc1")
        gpoll("L_ps", ["global_load_dwordx4 v[20:23], v157, s[34:35] sc1"], 20, 4, 6)
    else:
        sld = lambda k: f"global_load_dwordx4 {v(24+4*k,4)}, v157, s[34:35] sc1"
        a("s_setprio 3")
        def schk(k):
            for i in range(4): a(f"v_xor_b32 v{20+i}, s{12+i}, v{24+4*k+i}")
            a(f"v_or3_b32 v6, v20, v21, v22\nv_bitop3_b32 v6, v23, v6, v2 bitop3:0xa8\nv_cmp_ne_u32 vcc, 0, v6\ns_and_b64 exec, exec, vcc\ns_cbranch_scc0 L_psd")
        if se == 1 or ye == 2: schk(0)
        for k in range(se == 2, ns): a(sld(k))
        a("L_ps:")
        for k in range(ns):
            a(f"s_waitcnt vmcnt({ns-1})")
            schk(k); a(sld(k))
            if sl: a(f"s_sleep {sl}")
        a("s_sub_u32 s56, s56, 1\ns_cbranch_scc0 L_ps\ns_endpgm\nL_psd:\ns_mov_b64 exec, -1")
    stamp(14)
    if prof: a("s_sub_u32 s90, s90, s56")
    fred(20)
    a(f"""v_mul_f32 v20, v20, v16
    s_mov_b32 exec_lo, 0x00030003
    v_cvt_pk_bf16_f32 v20, 0, v20
    s_mov_b32 exec_hi, 0x00030003
    v_add_f32 v20, v20, v11
    s_cmp_lg_u32 s2, 0
    v_cvt_pk_bf16_f32 v20, v20, v20
    global_store_short v159, v20, s[32:33]
    s_cbranch_scc1 {"L_prof" if prof else "L_end"}
    s_mov_b64 exec, 1
    v_mov_b32 v8, 0
    v_mov_b32 v10, s11
    global_store_dword v8, v10, s[34:35]""")
    endwave()
    def hwave(q):
        nk = 4 if q else 2
        lw = L_WQ if q else L_W1; xs = L_XS0 if q else L_XS1
        a("v_lshrrev_b32 v3, 4, v1\nv_and_b32 v4, 15, v1\nv_lshlrev_b32 v4, 4, v4\nv_lshl_add_u32 v3, v3, 10, v4")
        a("s_mov_b32 s48, s9" if q else f"s_xor_b32 s48, s8, {fx}\ns_lshr_b32 s48, s48, 1")
        for i in range(4): a(f"s_add_u32 s49, s48, {i}\ns_and_b32 s49, s49, 3\ns_lshl_b32 s49, s49, 8\nv_add_u32 v{4+i}, s49, v3")
        a("s_waitcnt lgkmcnt(0)")
        for i in range(4): a(f"global_load_dwordx4 {v(16+4*i,4)}, v{4+i}, s[16:17]")
        a("s_barrier\ns_load_dword s11, s[34:35], 0")
        stamp(1)
        lanes()
        a(f"""v_lshl_add_u32 v10, v3, 3, v4
        v_lshlrev_b32 v10, 7, v10
        v_lshl_add_u32 v10, v5, 5, v10
        v_lshlrev_b32 v11, 4, v3
        v_lshl_add_u32 v11, v4, 8, v11
        v_lshlrev_b32 v12, 6, v3
        v_lshl_add_u32 v12, v5, 4, v12
        v_lshl_add_u32 v12, v4, {13 if q else 8}, v12
        v_mov_b32 v9, 0
        s_mov_b32 s52, 0xaaaaaaaa
        s_mov_b32 s53, 0xaaaaaaaa
        s_mov_b32 s54, 0xcccccccc
        s_mov_b32 s55, 0xcccccccc
        s_mov_b32 s59, 0x3f803f80
        s_getreg_b32 s58, hwreg(HW_REG_XCC_ID)
        s_and_b32 s58, s58, 15
        s_lshl_b32 s58, s58, 6""")
        if q: a(f"s_lshl_b32 s49, s4, 15\ns_lshl_b32 s50, s9, 11\ns_add_u32 s50, s50, s49\ns_lshl_b32 s51, s8, 8\ns_add_u32 s50, s50, s51\ns_add_u32 s50, s50, {QP}\ns_lshl_b32 s51, s6, 13\ns_add_u32 s49, s49, s51\ns_add_u32 s49, s49, {QP+4096}")
        else: a(f"s_xor_b32 s49, s8, {fx}\ns_and_b32 s49, s49, 1\ns_lshl_b32 s49, s49, 7\nv_add_u32 v11, s49, v11\ns_lshl_b32 s49, s10, 13\ns_lshl_b32 s50, s8, 10\ns_add_u32 s50, s50, s49\ns_add_u32 s50, s50, {HP}\ns_add_u32 s49, s49, {HP+4096}")
        a("v_add_u32 v12, s50, v12\nv_add_u32 v13, s49, v7\ns_waitcnt vmcnt(0)")
        stamp(2)
        a("v_dot2_f32_bf16 v48, v16, s59, 0\nv_dot2_f32_bf16 v49, v16, v16, 0")
        for i in range(1, 16): a(f"v_dot2_f32_bf16 v48, v{16+i}, s59, v48\nv_dot2_f32_bf16 v49, v{16+i}, v{16+i}, v49")
        for s in (8, 4, 2, 1): a(f"v_add_f32_dpp v48, v48, v48 row_ror:{s} {DPPF}\nv_add_f32_dpp v49, v49, v49 row_ror:{s} {DPPF}")
        a("""v_mul_f32 v48, 0x3b000000, v48
        v_mul_f32 v49, 0x3b000000, v49
        v_fma_f32 v49, -v48, v48, v49
        v_max_f32 v49, 0, v49
        v_cvt_pk_bf16_f32 v49, 0, v49
        v_add_f32 v49, 0x3727c5ac, v49
        v_cvt_pk_bf16_f32 v49, 0, v49
        v_sqrt_f32 v49, v49
        v_cvt_pk_bf16_f32 v48, 0, v48
        v_cvt_pk_bf16_f32 v49, 0, v49
        v_rcp_f32 v49, v49""")
        for i in range(4):
            a(f"""v_lshlrev_b32 v50, 16, v{16+i}
            v_and_b32 v51, 0xffff0000, v{16+i}
            v_sub_f32 v50, v50, v48
            v_sub_f32 v51, v51, v48
            v_cvt_pk_bf16_f32 v50, 0, v50
            v_cvt_pk_bf16_f32 v51, 0, v51
            v_mul_f32 v50, v50, v49
            v_mul_f32 v51, v51, v49
            v_cvt_pk_bf16_f32 v{16+i}, v50, v51""")
        a(f"ds_write_b128 v7, v[16:19] offset:{xs}")
        for t in range(nk): a(f"ds_read_b128 {v(32+4*t,4)}, v11 offset:{xs+64*t}")
        stamp(3)
        a("s_waitcnt lgkmcnt(0)")
        tags()
        if pw & 1:
            for r in range(4): a(f"v_xor_b32_e64 v{116+r}, s{12+r}, 1")
            a("global_store_dwordx4 v12, v[116:119], s[34:35]")
        nm = "L_pq" if q else "L_ph"
        fwait(nm + "w", "v9", F_1 if f1 and not q else F_W, 4, 20)
        stamp(4)
        if prof: a("s_waitcnt lgkmcnt(0)")
        trr = lambda t, tt: [a(f"ds_read_b64_tr_b16 {v(48+16*t+4*tt+2*h,2)}, v10 offset:{lw+t*4096+h*512+tt*8}") for h in range(2)]
        for tt in range(4): trr(0, tt)
        for t in range(nk):
            for tt in range(4):
                a(f"s_waitcnt lgkmcnt({6 if t + 1 < nk else 6-2*tt})")
                if t + 1 < nk: trr(t + 1, tt)
                a(f"{MF} {v(112+4*tt,4)}, {v(48+16*t+4*tt,4)}, {v(32+4*t,4)}, {v(112+4*tt,4) if t else 0}")
        for r in range(4): a(f"v_cndmask_b32 v{112+r}, v{112+r}, v{116+r}, s[52:53]")
        for r in range(4): a(f"v_cndmask_b32 v{120+r}, v{120+r}, v{124+r}, s[52:53]")
        for r in range(4): a(f"v_cndmask_b32 v{112+r}, v{112+r}, v{120+r}, s[54:55]")
        for r in range(4): a(f"v_bfi_b32 v{116+r}, v2, s{12+r}, v{112+r}")
        for r in range(4): a(f"s_xor_b32 s{12+r}, s{12+r}, s58")
        tagins(112)
        a(f"global_store_dwordx4 v12, v[112:115], s[34:35]{' sc1' if nopl else ''}\nv_add_u32 v12, {BOFF}, v12\nglobal_store_dwordx4 v12, v[116:119], s[34:35] sc1")
        stamp(5)
        a("s_waitcnt vmcnt(0)")
        if not q and not w2pos:
            a(f"v_lshrrev_b32 v6, 3, v1\nv_and_b32 v8, 7, v1\nv_lshlrev_b32 v8, 4, v8\nv_lshl_add_u32 v6, v6, 10, v8\ns_lshl_b32 s48, s10, 16\ns_lshl_b32 s49, s8, 7\ns_add_u32 s48, s48, s49\nv_add_u32 v6, s48, v6\ns_mov_b32 m0, {L_W2}")
            for j in range(8):
                if j: a("v_add_u32 v6, 8192, v6\ns_add_u32 m0, m0, 1024")
                a(f"global_load_lds_dwordx4 v6, s[30:31] {wnt}")
        if not q and w2pos and hg < 2: fwait("L_phk", "v9", F_2 if hg else F_K, 4, 20)
        stamp(6)
        a(f"s_mov_b32 s57, {ntry}")
        if not fast: a(f"s_branch {nm}_sw")
        a(f"{nm}:")
        for i in range(8): a(f"global_load_dwordx4 {v(16+4*i,4)}, v13, s[34:35] offset:{i*1024-4096} sc1")
        a("s_waitcnt vmcnt(0)")
        check(16, 32, 6)
        a(f"v_cmp_ne_u32 vcc, 0, v6\ns_cbranch_vccnz {nm}_r")
        stubs.append(f"""{nm}_r:
        s_sub_u32 s56, s56, 1
        s_cbranch_scc1 L_end
        s_sub_u32 s57, s57, 1
        s_cmp_lg_u32 s57, 0
        s_cbranch_scc1 {nm}
        {nm}_sw:
        s_mov_b32 s57, 0
        v_add_u32 v13, {BOFF}, v13
        s_xor_b32 s12, s12, s58
        s_xor_b32 s13, s13, s58
        s_xor_b32 s14, s14, s58
        s_xor_b32 s15, s15, s58
        s_branch {nm}""")
        stamp(7)
        if prof: a(f"s_sub_u32 s76, {ntry+1}, s57")
        a("v_lshlrev_b32 v14, 3, v1")
        if q:
            for i in range(0, 8, 2): a(f"v_pk_add_f32 {v(16+i,2)}, {v(16+i,2)}, {v(24+i,2)}\nv_pk_add_f32 {v(32+i,2)}, {v(32+i,2)}, {v(40+i,2)}")
            for i in range(0, 8, 2): a(f"v_pk_add_f32 {v(16+i,2)}, {v(16+i,2)}, {v(32+i,2)}")
            for i in range(4): a(f"v_cvt_pk_bf16_f32 v{16+i}, v{16+2*i}, v{17+2*i}")
            a(f"""s_cmp_gt_i32 s57, 0
            s_cselect_b32 s48, 3, 1
            ds_write_b64 v14, v[16:17] offset:{L_QS}
            v_mov_b32 v6, s48
            ds_write_b64 v14, v[18:19] offset:{L_QS+512}
            ds_write_b32 v9, v6 offset:{F_Q}
            s_waitcnt lgkmcnt(0)""")
        else:
            tags()
            for i in range(0, 16, 2): a(f"v_pk_add_f32 {v(16+i,2)}, {v(16+i,2)}, {v(32+i,2)}")
            for i in range(0, 8, 2): a(f"v_pk_add_f32 {v(16+i,2)}, {v(16+i,2)}, {v(24+i,2)}")
            for i in range(0, 4, 2): a(f"v_pk_add_f32 {v(16+i,2)}, {v(16+i,2)}, {v(20+i,2)}")
            for i in range(4): a(f"v_max_f32 v{16+i}, 0, v{16+i}")
            a(f"""v_cvt_pk_bf16_f32 v16, v16, v17
            v_cvt_pk_bf16_f32 v17, v18, v19
            ds_write_b64 v14, v[16:17] offset:{L_HS}
            v_lshlrev_b32 v11, 4, v3
            v_lshl_add_u32 v11, v5, 7, v11
            v_lshl_add_u32 v10, v3, 3, v4
            v_lshlrev_b32 v10, 7, v10
            v_lshl_add_u32 v10, v5, 3, v10
            s_lshl_b32 s48, s8, 15
            s_lshl_b32 s49, s10, 10
            s_add_u32 s48, s48, s49
            s_add_u32 s48, s48, {YP}
            v_add_u32 v12, s48, v7""")
            if hg == 2: fwait("L_phk", "v9", F_2, 4, 20)
            for t in range(2):
                a(f"ds_read_b128 {v(32+4*t,4)}, v11 offset:{L_HS+64*t}")
                for tt in range(4):
                    for h in range(2): a(f"ds_read_b64_tr_b16 {v(48+16*t+4*tt+2*h,2)}, v10 offset:{L_W2+t*4096+h*512+tt*32}")
                a("s_waitcnt lgkmcnt(0)")
                for tt in range(4): a(f"{MF} {v(112+4*tt,4)}, {v(32+4*t,4)}, {v(48+16*t+4*tt,4)}, {v(112+4*tt,4) if t else 0}")
            for tt in range(1, 4):
                for r in range(4): a(f"v_mov_b32_dpp v{112+r}, v{112+4*tt+r} quad_perm:[0,1,2,3] row_mask:{1<<tt} bank_mask:0xf")
            tagins(112)
            a("global_store_dwordx4 v12, v[112:115], s[34:35] sc1")
            stamp(11)
        a("s_barrier\n" * (2 + (b4 > 0) + (b4 == 3)))
        endwave()
    a("L_HB:\ns_setprio 3\ns_cmp_lg_u32 s3, 0\ns_cbranch_scc1 L_H1")
    hwave(1)
    a("L_H1:\ns_cmp_ge_u32 s10, 28\ns_cbranch_scc1 L_end")
    hwave(0)
    a("L_B:\ns_sub_u32 s3, s3, 2")
    lanes()
    a("s_load_dword s11, s[34:35], 0")
    if tlbw: a(f"""s_cmp_lg_u32 s3, 1
    s_cbranch_scc1 L_notlb
    s_lshl_b32 s48, s6, 24
    s_lshl_b32 s49, s4, 21
    s_add_u32 s48, s48, s49
    s_lshl_b32 s49, s7, 16
    s_add_u32 s48, s48, s49
    s_add_u32 s48, s48, 0x180000
    s_lshl_b32 s49, s4, 19
    s_min_u32 s50, s10, 27
    s_lshl_b32 s50, s50, 16
    s_mov_b64 exec, 1
    v_mov_b32 v8, s48
    v_mov_b32 v9, s49
    v_mov_b32 v10, s50
    global_load_dword v81, v8, s[18:19] nt
    global_load_dword v82, v8, s[20:21] nt
    global_load_dword v83, v10, s[30:31] nt
    global_load_dword v84, v9, s[24:25] nt
    global_load_dword v85, v90, s[32:33]
    {"v_mov_b32 v9, 0x2f0000" if cp else ""}
    {"global_load_dword v86, v9, s[34:35]" if cp else ""}
    s_mov_b64 exec, -1
    L_notlb:""")
    sidx("s51")
    a(f"""v_and_b32 v8, 1, v1
    v_lshlrev_b32 v8, 7, v8
    v_bfe_u32 v9, v1, 1, 2
    v_lshl_add_u32 v8, v9, 13, v8
    s_lshl_b32 s49, s4, 15
    s_lshl_b32 s50, s9, 11
    s_add_u32 s50, s50, s49
    s_lshl_b32 s49, s8, 8
    s_add_u32 s50, s50, s49
    s_add_u32 s50, s50, {QP}
    v_add_u32 v8, s50, v8
    v_lshlrev_b32 v9, 7, v1
    s_lshl_b32 s49, s10, 13
    s_lshl_b32 s50, s8, 10
    s_add_u32 s50, s50, s49
    s_add_u32 s50, s50, {HP-1024}
    s_mov_b64 exec, 0xff00
    v_add_u32 v8, s50, v9
    s_lshl_b32 s50, s51, 11
    s_add_u32 s50, s50, {OP-2048}
    s_mov_b32 exec_lo, 0xffff0000
    v_add_u32 v8, s50, v9
    s_lshl_b32 s54, s8, 15
    s_lshl_b32 s49, s10, 10
    s_add_u32 s54, s54, s49
    s_add_u32 s54, s54, {SP}
    s_sub_u32 s50, s54, 4096
    s_mov_b32 exec_lo, 0
    s_mov_b32 exec_hi, -1
    v_add_u32 v8, s50, v9
    s_mov_b64 exec, -1
    s_lshl_b32 s51, s51, 5
    s_add_u32 s51, s51, {ML}
    v_writelane_b32 v8, s51, 40
    s_cmp_lg_u32 s3, 0
    s_cbranch_scc1 L_nopre
    s_cmp_eq_u32 s8, s4
    s_cselect_b32 exec_hi, 0x1ff, 0
    s_or_b32 exec_hi, exec_hi, 0x100
    {"s_mov_b32 exec_hi, 0x100" if pw & 2 else ""}
    s_mov_b32 exec_lo, {(0 if pw & 1 else 0xffff) | (0 if pw & 2 else 0xffff0000)}
    global_load_dword v80, v8, s[34:35] sc1
    s_mov_b64 exec, -1
    L_nopre:""")
    a(f"""s_mov_b32 s59, {LOG2E}
    v_lshl_add_u32 v8, v3, 3, v4
    v_lshlrev_b32 v8, 7, v8
    v_lshl_add_u32 v8, v5, 3, v8
    s_lshl_b32 s48, s3, 5
    v_add_u32 v8, s48, v8
    v_bfe_u32 v9, v1, 3, 2
    v_lshlrev_b32 v9, 5, v9
    v_xor_b32 v8, v9, v8
    v_lshlrev_b32 v9, 4, v3
    v_lshl_add_u32 v9, v5, 8, v9
    v_lshlrev_b32 v99, 3, v5
    v_add_u32 v10, {L_ML}, v99
    v_add_u32 v11, s48, v10
    v_add_u32 v99, s51, v99
    s_lshl_b32 s48, s3, 14
    s_add_u32 s48, s48, {L_K}
    v_add_u32 v92, s48, v7
    v_lshlrev_b32 v93, 8, v5
    v_lshl_add_u32 v93, v3, 6, v93
    v_lshl_add_u32 v93, v4, 4, v93
    s_lshl_b32 s48, s3, 2
    v_mov_b32 v94, s48
    v_lshlrev_b32 v95, 4, v5
    v_lshl_add_u32 v95, v3, 6, v95
    v_lshl_add_u32 v95, v4, 2, v95
    s_lshl_b32 s48, s3, 9
    v_add_u32 v95, s48, v95
    v_lshrrev_b32 v16, 5, v1
    v_and_b32 v98, 15, v1
    v_lshlrev_b32 v98, 3, v98
    v_lshl_add_u32 v98, v16, 7, v98
    s_lshl_b32 s48, s4, 2
    s_add_u32 s48, s48, s3
    s_lshl_b32 s49, s48, 8
    s_add_u32 s49, s49, {ML}
    v_add_u32 v98, s49, v98
    v_and_b32 v96, 31, v1
    v_lshlrev_b32 v6, 4, v96
    v_lshl_add_u32 v6, v16, 13, v6
    s_lshl_b32 s48, s48, 14
    s_lshl_b32 s49, s9, 9
    s_add_u32 s48, s48, s49
    s_add_u32 s48, s48, {OP+4096}
    v_add_u32 v6, s48, v6
    v_lshlrev_b32 v96, 3, v96
    v_lshl_add_u32 v96, v16, 2, v96
    s_lshl_b32 s49, s3, 8
    v_add_u32 v96, s49, v96
    s_add_u32 s54, s54, s49
    v_add_u32 v97, s54, v7
    s_waitcnt vmcnt(0) lgkmcnt(0)""")
    tags()
    a("s_lshl_b32 s50, s13, 10\ns_or_b32 s50, s50, s12\ns_and_b32 s50, s50, 0xffff")
    if pwp: fwait("L_wk", "v94", F_K, 1, 80)
    if pw & 2:
        for r in range(4): a(f"v_xor_b32_e64 v{12+r}, s{12+r}, 1")
        a(f"""s_sub_u32 s48, s51, {ML}
        s_lshl_b32 s48, s48, 6
        s_lshl_b32 s49, s3, 10
        s_add_u32 s48, s48, s49
        s_add_u32 s48, s48, {OP}
        s_sub_u32 s49, s54, 512
        s_cmp_eq_u32 s3, 2
        s_cselect_b32 s48, s49, s48
        v_add_u32 v87, s48, v7
        s_cmp_eq_u32 s8, s4
        s_cselect_b32 s49, 3, 2
        s_cmp_ge_u32 s3, s49
        s_cbranch_scc1 L_nopw
        global_store_dwordx4 v87, v[12:15], s[34:35]
        L_nopw:""")
    if not pwp: fwait("L_wk", "v94", F_K, 1, 80)
    stamp(2)
    for i in range(16):
        if i == 12: a("s_waitcnt lgkmcnt(0)")
        a(f"ds_read_b128 {v(16+4*i,4)}, v92 offset:{1024*i}")
    fwait("L_wq", "v90", F_Q, 1, 91)
    a(f"ds_read_b128 v[100:103], v93 offset:{L_QS}\ns_setprio 1")
    stamp(4)
    getU(91)
    a("s_waitcnt lgkmcnt(0)")
    S = 80
    def red(i):
        d = 12 + 4 * i
        if (i >> 1) & 1 == 0: a(f"v_add_f32_dpp v{d}, v{d+1}, v{d} row_ror:12 {DPPF}\nv_add_f32_dpp v{d+2}, v{d+3}, v{d+2} row_ror:12 {DPPF}")
        else: a(f"v_add_f32_dpp v{d}, v{d}, v{d+1} row_ror:4 {DPPF}\nv_add_f32_dpp v{d+2}, v{d+2}, v{d+3} row_ror:4 {DPPF}")
    def red2(i):
        d = 12 + 4 * i; pp, vv, e = i >> 3, (i >> 1) & 3, i & 1
        x, y = (d + 2, d) if vv < 2 else (d, d + 2)
        a(f"v_add_f32_dpp v{S+2*pp+e}, v{x}, v{y} row_ror:8 row_mask:0xf bank_mask:{1<<vv}")
    for i in range(16 + 4):
        if i < 16: a(f"{MF} {v(12+4*i,4)}, {v(16+4*i,4)}, v[100:103], 0")
        if 0 <= i - 3 < 16: red(i - 3)
        if 0 <= i - 4 < 16: red2(i - 4)
    for k in range(4): a(f"v_cvt_pk_bf16_f32 v{S+k}, 0, v{S+k}")
    for k in range(4): a(f"v_mul_f32 v{S+k}, 0x3db504f3, v{S+k}")
    for k in range(4): a(f"v_cvt_pk_bf16_f32 v{S+k}, 0, v{S+k}")
    def allred(op, r, t):
        a(f"""{op}_dpp v{r}, v{r}, v{r} row_ror:8 {DPPF}
        {op}_dpp v{r}, v{r}, v{r} row_ror:4 {DPPF}
        v_mov_b32 v{t}, v{r}
        v_permlane16_swap_b32 v{r}, v{t}
        {op} v{r}, v{r}, v{t}
        v_mov_b32 v{t}, v{r}
        v_permlane32_swap_b32 v{r}, v{t}
        {op} v{r}, v{r}, v{t}""")
    a("v_max3_f32 v84, v80, v81, v82\nv_max_f32 v84, v84, v83")
    allred("v_max_f32", 84, 86)
    for k in range(4): a(f"v_sub_f32 v{S+k}, v{S+k}, v84")
    for k in range(4): a(f"v_mul_f32 v{S+k}, s59, v{S+k}")
    for k in range(4): a(f"v_exp_f32 v{S+k}, v{S+k}")
    a("v_add_f32 v85, v80, v81\nv_add_f32 v86, v82, v83\nv_add_f32 v85, v85, v86")
    allred("v_add_f32", 85, 86)
    if pw & 2 and not pwp: a("s_waitcnt vmcnt(0)")
    a(f"ds_write_b64 v11, v[84:85]\nds_write_b32 v94, v2 offset:{F_M}")
    fwait("L_wm", "v90", F_M, 4, 12)
    a("ds_read2_b64 v[16:19], v10 offset0:0 offset1:4\nds_read2_b64 v[20:23], v10 offset0:8 offset1:12")
    stamp(5)
    a("""s_waitcnt lgkmcnt(0)
    v_max3_f32 v24, v16, v18, v20
    v_max_f32 v24, v24, v22
    v_sub_f32 v84, v84, v24
    v_mul_f32 v84, s59, v84
    v_exp_f32 v84, v84""")
    for k in range(4): a(f"v_mul_f32 v{S+k}, v84, v{S+k}")
    a(f"""v_cvt_pk_bf16_f32 v80, v80, v81
    v_cvt_pk_bf16_f32 v81, v82, v83
    ds_write_b32 v95, v80 offset:{L_P}
    ds_write_b32 v95, v81 offset:{L_P+256}
    ds_write_b32 v94, v91 offset:{F_P}""")
    stamp(6)
    if pwp: a("s_waitcnt vmcnt(0)")
    a("s_cmp_lg_u32 s3, 2\ns_cbranch_scc1 L_noml")
    for k in range(4): a(f"v_sub_f32 v{16+2*k}, v{16+2*k}, v24")
    for k in range(4): a(f"v_mul_f32 v{16+2*k}, s59, v{16+2*k}")
    for k in range(4): a(f"v_exp_f32 v{16+2*k}, v{16+2*k}")
    a("v_mul_f32 v25, v16, v17\nv_fmac_f32 v25, v18, v19\nv_fmac_f32 v25, v20, v21\nv_fmac_f32 v25, v22, v23")
    a("v_or_b32 v24, s50, v24\nv_bfi_b32 v25, v2, s14, v25\ns_mov_b64 exec, 15\ns_cmp_eq_u32 s52, 0")
    cstore("L_sml", "global_store_dwordx2 v99, v[24:25], s[34:35]")
    a("s_mov_b64 exec, -1\nL_noml:")
    stamp(9)
    if cp:
        for k in range(1, ns): a(f"v_add_u32 v{33+k}, {coff(k)}, v97")
    if osel:
        for t in range(4): a(f"s_mov_b64 s[{36+2*t}:{37+2*t}], -1")
    a("v_mov_b32 v33, 0xffff\ns_waitcnt lgkmcnt(0)\ns_setprio 3\ns_barrier")
    stamp(12)
    if prof: a("s_mov_b32 s90, s56")
    ol = [f"global_load_dwordx4 {v(64+4*t,4)}, v6, s[34:35] offset:{t*2048-4096} sc1" for t in range(4)]
    mll = "global_load_dwordx2 v[56:57], v98, s[34:35] sc1"
    wotr = lambda t: [a(f"ds_read_b64_tr_b16 {v(16+4*t+2*h,2)}, v8 offset:{L_WO+t*4096+h*512}") for h in range(2)]
    a(mll)
    if b4 >= 2: a("s_barrier")
    for l in ol: a(l)
    if 0 < b4 < 4:
        if b4 & 1: a("s_barrier")
        for t in range(4): wotr(t)
    a("L_pml:")
    a(f"""s_waitcnt vmcnt(4)
    v_xor_b32 v56, s50, v56
    v_xor_b32 v57, s14, v57
    v_and_b32 v32, v33, v56
    v_and_or_b32 v32, v57, v2, v32
    v_max_f32_dpp v58, v56, v56 row_ror:8 {DPPF}
    v_cmp_ne_u32 vcc, 0, v32
    s_cbranch_vccnz L_pml_r
    v_max_f32_dpp v58, v58, v58 row_ror:4 {DPPF}
    v_mov_b32 v59, v58
    v_permlane32_swap_b32 v58, v59
    v_max_f32 v58, v58, v59
    v_sub_f32 v56, v56, v58
    v_mul_f32 v56, s59, v56
    v_exp_f32 v56, v56
    v_mul_f32 v57, v56, v57
    v_add_f32_dpp v57, v57, v57 row_ror:8 {DPPF}
    v_add_f32_dpp v57, v57, v57 row_ror:4 {DPPF}
    v_mov_b32 v59, v57
    v_permlane32_swap_b32 v57, v59
    v_add_f32 v57, v57, v59
    v_rcp_f32 v57, v57
    v_mul_f32 v56, v56, v57""")
    stubs.append("L_pml_r:\n" + "\n".join([mll] + ol) + "\ns_sub_u32 s56, s56, 1\ns_cbranch_scc0 L_pml\ns_endpgm")
    stamp(10)
    fma = lambda t: [a(f"{'v_fmac_f32_dpp' if t else 'v_mul_f32_dpp'} v{60+k}, v56, v{64+4*t+k} row_newbcast:{4*t+k} {DPPF}") for k in range(4)]
    if oi:
        a("L_po_c:")
        for t in range(4):
            r0 = 64 + 4 * t
            a(f"s_waitcnt vmcnt({3-t})")
            for i in range(4): a(f"v_xor_b32 v{r0+i}, s{12+i}, v{r0+i}")
            a(f"v_or3_b32 v32, v{r0}, v{r0+1}, {'v32' if t else 0}\nv_or3_b32 v32, v{r0+2}, v{r0+3}, v32")
            if t == 3: a("v_and_b32 v32, v2, v32\nv_cmp_ne_u32 vcc, 0, v32")
            fma(t)
        a("s_cbranch_vccnz L_po")
        stubs.append("L_po:\n" + "\n".join(ol) + "\ns_sub_u32 s56, s56, 1\ns_cbranch_scc0 L_po_c\ns_endpgm")
    elif not osel: gpoll("L_po", ol, 64, 16, 32)
    else:
        a("L_po_c:")
        for t in range(4):
            a(f"s_waitcnt vmcnt({3-t})\ns_mov_b64 exec, s[{36+2*t}:{37+2*t}]")
            check(64 + 4 * t, 4, 32)
            a(f"v_cmp_ne_u32 s[{36+2*t}:{37+2*t}], 0, v32")
            if t == 2: a("s_or_b64 s[44:45], s[36:37], s[38:39]")
        a("s_or_b64 s[44:45], s[44:45], s[40:41]\ns_or_b64 s[44:45], s[44:45], s[42:43]\ns_mov_b64 exec, -1\ns_cbranch_scc1 L_po")
        stubs.append("L_po:\n" + "\n".join(f"s_mov_b64 exec, s[{36+2*t}:{37+2*t}]\n{ol[t]}" for t in range(4)) + "\ns_sub_u32 s56, s56, 1\ns_cbranch_scc0 L_po_c\ns_endpgm")
    stamp(13)
    if prof: a("s_sub_u32 s90, s90, s56")
    if not oi:
        for t in range(4): fma(t)
    a(f"""v_permlane32_swap_b32 v60, v62
    v_permlane32_swap_b32 v61, v63
    v_add_f32 v60, v60, v62
    v_add_f32 v61, v61, v63
    v_cvt_pk_bf16_f32 v60, v60, v61
    ds_write_b32 v96, v60 offset:{L_OS}
    s_waitcnt lgkmcnt(0)
    s_barrier""")
    for t in range(4):
        a(f"ds_read_b128 {v(64+4*t,4)}, v9 offset:{L_OS+64*t}")
        if b4 in (0, 4): wotr(t)
    for t in range(4): a(f"s_waitcnt lgkmcnt({9-3*t if b4 in (0, 4) else 3-t})\n{MF} v[48:51], {v(64+4*t,4)}, {v(16+4*t,4)}, {'v[48:51]' if t else 0}")
    a("s_mov_b64 exec, 0xffff\ns_cmp_eq_u32 s53, 0")
    tagins(48)
    cstore("L_ss", "global_store_dwordx4 v97, v[48:51], s[34:35]", inv=True)
    if cp:
        a("s_cmp_eq_u32 s8, s4\ns_cbranch_scc1 L_nocp")
        for k in range(1, ns): a(f"global_store_dwordx4 v{33+k}, v[48:51], s[34:35] sc1")
        a("L_nocp:")
    stamp(14)
    endwave()
    for x in stubs: a(x)
    if prof == 2:
        a("L_prof:\ns_mov_b64 exec, -1")
        if didx == 16: a("s_memrealtime s[92:93]")
        lo, hi = dict(H=(0, 0), B=(2, 5), A=(6, 9), F=(6, 6))[drole]
        a(f"""v_lshrrev_b32 v4, 6, v0
        v_readfirstlane_b32 s48, v4
        s_cmp_lt_u32 s48, {lo}
        s_cbranch_scc1 L_end
        s_cmp_gt_u32 s48, {hi}
        s_cbranch_scc1 L_end
        s_waitcnt lgkmcnt(0)
        s_add_u32 s48, s{60+2*didx}, 2000
        L_spin:
        s_sleep 1
        s_memrealtime s[50:51]
        s_waitcnt lgkmcnt(0)
        s_sub_u32 s50, s50, s48
        s_cmp_lt_i32 s50, 0
        s_cbranch_scc1 L_spin""")
    if prof == 1:
        a("L_prof:\ns_mov_b64 exec, -1\ns_memrealtime s[92:93]\ns_getreg_b32 s94, hwreg(HW_REG_XCC_ID)\ns_getreg_b32 s96, hwreg(HW_REG_HW_ID)\ns_getpc_b64 s[98:99]\ns_waitcnt lgkmcnt(0)")
        for i in range(20): a(f"v_writelane_b32 v3, s{60+2*i}, {i}")
        a("v_writelane_b32 v3, s0, 20")
        a(f"v_lshrrev_b32 v4, 6, v0\ns_mul_i32 s48, s2, {NW}\nv_add_u32 v4, s48, v4\nv_lshlrev_b32 v4, 7, v4\nv_lshl_add_u32 v4, v1, 2, v4\nv_add_u32 v4, {PROF}, v4\ns_mov_b64 exec, 0x1fffff\nglobal_store_dword v4, v3, s[34:35] sc1")
    a("L_end:\ns_endpgm")
    head = [l for l in open(REF).read().split("\n") if l.startswith(";") and "@launch" not in l]
    txt = "\n".join(head) + f"\n; @launch grid=(256,1,1) block=({NW*64},1,1) lds=131072\n"
    txt += f'.amdgcn_target "amdgcn-amd-amdhsa--gfx950"\n.text\n.globl {NAME}_kernel\n.p2align 8\n.type {NAME}_kernel,@function\n'
    txt += a.text()
    txt += f'''.section .rodata,"a"
.p2align 6
.amdhsa_kernel {NAME}_kernel
  .amdhsa_next_free_vgpr 160
  .amdhsa_next_free_sgpr 100
  .amdhsa_accum_offset 160
  .amdhsa_group_segment_fixed_size 0
  .amdhsa_kernarg_size 88
  .amdhsa_user_sgpr_count 2
  .amdhsa_user_sgpr_kernarg_segment_ptr 1
  .amdhsa_system_sgpr_workgroup_id_x 1
  .amdhsa_float_denorm_mode_32 3
.end_amdhsa_kernel
'''
    return txt
if __name__ == "__main__":
    out = sys.argv[1]; kw = {}
    for x in sys.argv[2:]:
        k, val = x.split("=")
        try: val = int(val, 0)
        except ValueError: pass
        kw[k] = val
    open(out, "w").write(gen(**kw))
```

```python
import sys
from asmlib import Asm
NAME = "recurrent_scan__sliding_block_cached__dense_activation_relu__decode"
REF = "cdna_kernels/" + NAME + ".s.ref"
QP, HP, OP, SP, YP, ML, PROF = 0x4000, 0x44000, 0xf4000, 0x174000, 0x1b4000, 0x1000, 0x400000
BOFF = 0x78000
L_WQ, L_W1, L_WO, L_W2, L_OR = 0, 16384, 24576, 40960, 49152
L_XS0, L_XS1, L_QS, L_HS, L_OS, L_ML, L_FL, L_P, L_K = 57344, 58368, 59392, 60416, 60928, 61952, 62080, 62464, 65536
F_W, F_K, F_M, F_P, F_Q, F_2, F_1 = L_FL, L_FL + 16, L_FL + 32, L_FL + 48, L_FL + 64, L_FL + 80, L_FL + 96
TAGM = 0x3FF
LOG2E = "0x3fb8aa3b"
DPPF = "row_mask:0xf bank_mask:0xf"
NW = 10
def v(a, n=1): return f"v{a}" if n == 1 else f"v[{a}:{a+n-1}]"
MF = "v_mfma_f32_16x16x32_bf16"

def gen(prof=0, diag=None, nt="nt", wnt="nt", rot=9, rsh=0, cap=1 << 18, th=6, cw=1, fast=1, ntry=5, w2pos=1, tlbw=0, b00=0, th0=0, n0=0, th1=0, n1=99, fx=0, cx=0, xw=0, order=None, na=12, nb=28, dx=1, ns=2, sl=3, cp=0, osel=0, b4=2, se=0, ye=2, pe=4, oi=1, nopl=0, pw=11, pwp=1, hg=0, f1=1, tw=0, **kw):
    a = Asm()
    if diag is not None: prof = 2; drole, didx = diag[0], int(diag[1:])
    stubs = []
    def stamp(i):
        if prof == 1 or (prof == 2 and i in (0, didx)): a(f"s_memrealtime s[{60+2*i}:{61+2*i}]")
    def endwave(): a("s_branch L_prof" if prof else "s_endpgm")
    def tags():
        a("s_add_u32 s12, s11, 1\ns_add_u32 s13, s11, 0x156\ns_add_u32 s14, s11, 0x2ab\ns_add_u32 s15, s11, 0xc4")
        for k in range(4): a(f"s_and_b32 s{12+k}, s{12+k}, {TAGM}")
    def tagins(r):
        for k in range(4): a(f"v_bfi_b32 v{r+k}, v2, s{12+k}, v{r+k}")
    def check(r0, n, acc):
        for i in range(n): a(f"v_xor_b32 v{r0+i}, s{12+i%4}, v{r0+i}")
        a(f"v_or3_b32 v{acc}, v{r0}, v{r0+1}, v{r0+2}")
        for i in range(3, n - 1, 2): a(f"v_or3_b32 v{acc}, v{r0+i}, v{r0+i+1}, v{acc}")
        a(f"v_bitop3_b32 v{acc}, v{r0+n-1}, v{acc}, v2 bitop3:0xa8")
    def cstore(name, ins, inv=False):
        a(f"s_cbranch_scc{0 if inv else 1} {name}_s\n{ins}{' sc1' if inv else ''}\n{name}_e:")
        stubs.append(f"{name}_s:\n{ins}{'' if inv else ' sc1'}\ns_branch {name}_e")
    def gpoll(name, loads, r0, n, acc):
        a(f"{name}_c:\ns_waitcnt vmcnt(0)")
        check(r0, n, acc)
        a(f"v_cmp_ne_u32 vcc, 0, v{acc}\ns_cbranch_vccnz {name}")
        stubs.append(f"{name}:\n" + "\n".join(loads) + f"\ns_sub_u32 s56, s56, 1\ns_cbranch_scc0 {name}_c\ns_endpgm")
    def fwait(name, addr, off, n, vt):
        a(f"{name}_c:\nds_read_b{32*n} {v(vt,n)}, {addr} offset:{off}\ns_waitcnt lgkmcnt(0)")
        if n == 4: a(f"v_bitop3_b32 v{vt}, v{vt}, v{vt+1}, v{vt+2} bitop3:0x80\nv_and_b32 v{vt}, v{vt}, v{vt+3}")
        a(f"v_cmp_eq_u32 vcc, 0, v{vt}\ns_cbranch_vccnz {name}")
        stubs.append(f"{name}:\ns_sleep 1\ns_sub_u32 s56, s56, 1\ns_cbranch_scc0 {name}_c\ns_endpgm")
    def getU(vt): a(f"v_readfirstlane_b32 s52, v{vt}\ns_lshr_b32 s52, s52, 1\ns_cmp_eq_u32 s8, s4\ns_cselect_b32 s53, s52, 0")
    def lanes(): a("v_lshrrev_b32 v3, 4, v1\nv_bfe_u32 v4, v1, 2, 2\nv_and_b32 v5, 3, v1\nv_lshlrev_b32 v7, 4, v1")
    def sidx(d): a(f"s_lshl_b32 {d}, s4, 2\ns_add_u32 {d}, {d}, s6\ns_lshl_b32 {d}, {d}, 3\ns_add_u32 {d}, {d}, s7")
    a(f"{NAME}_kernel:")
    stamp(0)
    a("""s_cmp_ge_u32 s2, 256
    s_cbranch_scc1 L_end
    s_load_dwordx16 s[16:31], s[0:1], 0
    s_load_dwordx2 s[34:35], s[0:1], 80
    s_load_dwordx2 s[32:33], s[0:1], 64""")
    if cw: a("""s_getpc_b64 s[48:49]
    L_pc:
    v_lshlrev_b32 v3, 7, v0
    v_cmp_gt_u32 vcc, L_end-L_pc, v3
    s_and_saveexec_b64 s[50:51], vcc
    s_cbranch_execz L_nocw
    global_load_dword v15, v3, s[48:49]
    L_nocw:
    s_mov_b64 exec, s[50:51]""")
    twa = "" if not tw else f"s_lshl_b32 s48, s9, 20\ns_mul_i32 s49, s8, {64*3584}\ns_lshl_b32 s50, s6, 24\ns_lshl_b32 s51, s4, 21\ns_add_u32 s50, s50, s51\ns_add_u32 s50, s50, 0x180000\ns_lshl_b32 s51, s7, 16\ns_add_u32 s50, s50, s51\ns_lshl_b32 s51, s4, 3\ns_add_u32 s51, s51, s8\ns_lshl_b32 s51, s51, 7\ns_add_u32 s48, s48, s51\ns_min_u32 s51, s10, 27\ns_lshl_b32 s52, s51, 7\ns_add_u32 s49, s49, s52\ns_lshl_b32 s51, s51, 16\ns_cmp_lg_u32 s3, 2"
    twb = "\n".join(x for k, x in enumerate(["s_load_dword s41, s[22:23], s48", "s_load_dword s42, s[28:29], s49", "s_load_dword s43, s[18:19], s50", "s_load_dword s44, s[30:31], s51", "s_load_dword s45, s[20:21], s50"]) if tw >> k & 1)
    if tw & 32: twb = "\n".join(twb.split("\n")[::-1])
    if tw: twb = "s_cbranch_scc1 L_notw\n" + twb + "\nL_notw:"
    a(f"""v_lshrrev_b32 v3, 6, v0
    v_and_b32 v1, 63, v0
    v_readfirstlane_b32 s3, v3
    s_and_b32 s4, s2, 7
    s_lshr_b32 s5, s2, 3
    s_and_b32 s6, s5, 3
    s_lshr_b32 s7, s5, 2
    s_and_b32 s8, s5, 7
    {f"s_xor_b32 s8, s8, {cx}" if cx else ""}
    s_lshr_b32 s9, s5, 3
    s_lshl_b32 s10, s4, 2
    s_add_u32 s10, s10, s9
    s_mov_b32 s56, {cap}
    v_mov_b32 v2, {TAGM}
    s_cmp_lt_u32 s3, 2
    s_cbranch_scc1 L_HB
    s_cmp_ge_u32 s3, 6
    s_cbranch_scc1 L_A
    v_mov_b32 v90, 0
    v_lshlrev_b32 v8, 2, v1
    ds_write_b32 v8, v90 offset:{L_FL}
    {twa}
    s_waitcnt lgkmcnt(0)
    {twb}
    s_barrier
    s_branch L_B
    L_A:""")
    a(f"""s_setprio 2
    s_sub_u32 s3, s3, 6
    v_lshrrev_b32 v13, 3, v1
    v_and_b32 v14, 7, v1
    v_lshlrev_b32 v14, 4, v14
    v_lshl_add_u32 v8, v13, 13, v14
    v_mul_u32_u24 v9, 3584, v13
    v_add_u32 v9, v9, v14
    s_lshl_b32 s51, s9, 20
    s_lshl_b32 s49, s4, 10
    s_add_u32 s51, s51, s49
    s_lshl_b32 s55, s8, 7
    s_add_u32 s51, s51, s55
    s_lshl_b32 s49, s3, 18
    s_add_u32 s51, s51, s49
    s_lshl_b32 s59, s3, 12
    s_add_u32 m0, s59, {L_WQ}
    s_lshl_b32 s98, s3, 11
    s_lshl_b32 s53, s3, 14
    s_mov_b32 s46, {4<<20}
    s_mov_b32 s47, 0x20000
    s_xor_b32 s54, s8, {fx}
    s_lshl_b32 s54, s54, 2
    s_add_u32 s54, s54, s3
    s_mul_i32 s54, s54, {16*3584}
    s_lshl_b32 s49, s10, 7
    s_add_u32 s54, s54, s49
    s_lshl_b32 s48, s6, 24
    s_lshl_b32 s49, s4, 21
    s_add_u32 s48, s48, s49
    s_lshl_b32 s49, s7, 16
    s_add_u32 s48, s48, s49
    s_add_u32 s48, s48, 0x180000
    s_lshr_b32 s50, s2, {rsh}
    s_mul_i32 s50, s50, {rot}
    s_add_u32 s50, s50, s3
    s_lshl_b32 s50, s50, 10
    s_and_b32 s50, s50, 0xffff
    s_mov_b32 s38, 0x10000
    s_mov_b32 s39, 0x20000
    s_mov_b32 s42, 0x10000
    s_mov_b32 s43, 0x20000""")
    lanes()
    a("""v_lshlrev_b32 v6, 4, v5
    v_lshl_add_u32 v6, v3, 6, v6
    v_lshl_add_u32 v6, v4, 8, v6
    s_waitcnt lgkmcnt(0)
    s_mov_b32 s44, s22
    s_mov_b32 s45, s23""")
    if b00: a("s_barrier")
    coff = lambda k: 0x200000 + (k - 1) * 0x40000 - SP
    yld = "global_load_dwordx4 v[152:155], v158, s[34:35] sc1"
    def fsetup():
        a(f"""v_lshrrev_b32 v157, 1, v1
        v_and_b32 v159, 1, v1
        v_lshlrev_b32 v157, 10, v157
        v_lshl_add_u32 v157, v159, 4, v157
        s_lshl_b32 s48, s4, 15
        s_lshl_b32 s49, s5, 5
        s_add_u32 s48, s48, s49
        s_add_u32 s48, s48, {SP}
        v_add_u32 v157, s48, v157
        v_add_u32 v158, {YP-SP}, v157
        v_lshlrev_b32 v159, 1, v159
        v_lshl_add_u32 v159, v3, 10, v159
        s_lshl_b32 s48, s4, 7
        s_lshl_b32 s49, s5, 2
        s_add_u32 s48, s48, s49
        v_add_u32 v159, s48, v159
        v_mov_b32 v152, 0
        v_mov_b32 v153, 0
        v_mov_b32 v154, 0
        v_mov_b32 v155, 0""")
    order = order or ("qqqq11KK2KK2" + "K" * 12 + "V" * 16 + "oooo")
    stream = [(c, order[:n].count(c)) for n, c in enumerate(order)]
    assert [order.count(c) for c in "q1K2Vo"] == [4, 2, 16, 2 if w2pos else 0, 16, 4] and order[0] == "q"
    ws_ = [c for c in order if c in "q12o"]; assert ws_ == sorted(ws_, key="q12o".index)
    nW = max(n for n, c in enumerate(order) if c in ("q" if f1 else "q1")); nK = max(n for n, c in enumerate(order) if c in ("K" if hg else "K2"))
    m0v = lambda k, j: {"q": ("s59", L_WQ), "1": ("s98", L_W1), "K": ("s53", L_K), "2": ("s98", L_W2), "o": ("s59", L_WO)}[k]
    pos = {x: n for n, x in enumerate(stream)}
    st = dict(n=0, perm=0, land=-1, fw=0, fk=0)
    thf = lambda n: th0 if n < n0 else (th1 if n >= n1 else (th + xw if 22 < n <= 22 + th else th))
    VR, TR, AR, AC = 16, 80, 112, 144
    def waitfor(x): a(f"s_waitcnt vmcnt({st['n'] - 1 - pos[x]})")
    def breg(pp, j): return (TR if pp == 0 else VR) + 4 * j
    def mf(pp, jm): a(f"{MF} {v(AC+4*(jm>>2),4)}, {v(AR+16*pp+4*(jm&3),4)}, {v(breg(pp,jm),4)}, {v(AC+4*(jm>>2),4) if (pp or jm&3) else 0}")
    def perms(last=False):
        p = st["perm"]; pp, w = p >> 2, p & 3; i = 2 * p
        for j in range(8):
            a(f"v_perm_b32 v{breg(pp,j)+w}, v{VR+4*(i+1)+(j>>1)}, v{VR+4*i+(j>>1)}, s{57+(j&1)}")
            if last and j >= 2: mf(1, j - 2)
        st["perm"] += 1
    def ld():
        n = st["n"]; k, j = stream[n]
        if j == 0 and k == "1": a(f"s_mov_b32 s44, s28\ns_mov_b32 s45, s29\ns_cmp_ge_u32 s10, 28\ns_cselect_b32 s46, 0, {1792*1024}\ns_mov_b32 s51, s54")
        if j == 0 and k == "2": a(f"s_mov_b32 s44, s30\ns_mov_b32 s45, s31\ns_lshl_b32 s51, s10, 16\ns_add_u32 s51, s51, s55\ns_add_u32 s51, s51, s53")
        if j == 0 and k == "o": a(f"s_mov_b32 s44, s24\ns_mov_b32 s45, s25\ns_mov_b32 s46, {4<<20}\ns_mov_b32 s51, s99")
        if n and k != "V": a(f"s_add_u32 m0, {m0v(k, j)[0]}, {m0v(k, j)[1] + 1024 * j}")
        if na <= n < nb and n >= thf(n):
            a(f"s_cbranch_vccnz L_dw{n}\ns_waitcnt vmcnt({thf(n)-1})\nL_dw{n}:\ns_waitcnt vmcnt({thf(n)-1+dx})"); st["land"] = max(st["land"], n - thf(n) - dx)
        elif n - thf(n) > st["land"]: a(f"s_waitcnt vmcnt({thf(n)-1})"); st["land"] = n - thf(n)
        if k == "K": a(f"buffer_load_dwordx4 v6, s[36:39], s50 offen {nt} lds")
        elif k == "V": a(f"buffer_load_dwordx4 {v(VR+4*j,4)}, v7, s[40:43], s50 offen {nt}")
        else: a(f"buffer_load_dwordx4 { {'1': 'v9', 'o': 'v10'}.get(k, 'v8')}, s[44:47], s51 offen {wnt} lds")
        if k in "KV": a("s_add_u32 s50, s50, 4096\ns_and_b32 s50, s50, 0xffff")
        else: a(f"s_add_u32 s51, s51, {dict(q=65536, o=16384).get(k) or {'1': 8*3584, '2': 8192}[k]}")
        if k == "o": a("v_xor_b32 v10, 64, v10")
        st["n"] += 1
        if n == 0:
            a("s_load_dword s11, s[34:35], 0\ns_add_u32 s36, s18, s48\ns_addc_u32 s37, s19, 0\ns_add_u32 s40, s20, s48\ns_addc_u32 s41, s21, 0"); stamp(1)
            if nb: a("s_lshr_b32 s49, s22, 7\ns_add_u32 s49, s49, s8\ns_and_b32 s49, s49, 7\ns_cmp_eq_u32 s49, 3\ns_cselect_b64 vcc, -1, 0")
        if st["land"] >= nW and not st["fw"]: a(f"ds_write_b32 v12, v2 offset:{F_W}"); st["fw"] = 1
        if st["land"] >= nK and not st["fk"]: a(f"ds_write_b32 v12, v2 offset:{F_K}"); st["fk"] = 1
        if hg and st["land"] >= pos[("2", 1)] and not st.get("f2"): a(f"ds_write_b32 v12, v2 offset:{F_2}"); st["f2"] = 1
        if f1 and st["land"] >= pos[("1", 1)] and not st.get("f1"): a(f"ds_write_b32 v12, v2 offset:{F_1}"); st["f1"] = 1
        if (k, j) == ("K", 15): stamp(2)
        if (k, j) == ("V", 15): stamp(3)
        while st["perm"] < 7 and pos[("V", 2 * st["perm"] + 1)] <= st["land"]: perms()
    while st["n"] < max(thf(0), pos[("q", 3)] + 1): ld()
    if not b00: a("s_barrier")
    a(f"""v_lshl_add_u32 v8, v13, 10, v14
    v_and_b32 v15, 3, v13
    v_lshl_add_u32 v10, v15, 17, v14
    v_lshrrev_b32 v13, 2, v13
    v_lshl_add_u32 v10, v13, 13, v10
    v_bfe_u32 v15, v1, 4, 1
    v_lshlrev_b32 v15, 5, v15
    v_xor_b32 v10, v15, v10
    s_lshl_b32 s99, s4, 9
    s_and_b32 s49, s3, 1
    s_lshl_b32 s49, s49, 6
    s_add_u32 s99, s99, s49
    s_lshl_b32 s49, s9, 1
    s_add_u32 s99, s99, s49
    s_lshr_b32 s49, s3, 1
    s_add_u32 s99, s99, s49
    s_lshl_b32 s99, s99, 10
    s_add_u32 s99, s99, s55
    s_lshl_b32 s49, s3, 2
    v_mov_b32 v12, s49
    s_lshl_b32 s49, s3, 9
    v_add_u32 v11, s49, v7
    v_lshlrev_b32 v15, 4, v5
    v_lshl_add_u32 v15, v3, 6, v15
    v_add_u32 v15, s49, v15
    s_lshl_b32 s49, s3, 11
    v_add_u32 v13, s49, v7
    s_mov_b32 s57, 0x05040100
    s_mov_b32 s58, 0x07060302""")
    sidx("s48")
    a(f"s_lshl_b32 s48, s48, 11\ns_add_u32 s48, s48, {OP}\nv_add_u32 v14, s48, v11")
    for i in range(32): a(f"v_mov_b32 v{AR+i}, 0")
    if ye == 1: fsetup()
    while st["n"] < len(stream) - pe: ld()
    if ye == 1:
        a(f"s_cmp_eq_u32 s3, 0\ns_cselect_b64 exec, -1, 1\nglobal_load_ushort v156, v159, s[16:17]\ns_and_b32 exec_hi, exec_hi, 0xffffff\n{yld}\ns_mov_b64 exec, -1"); st["n"] += 2
    if not st["fk"]: waitfor(stream[nK]); a(f"ds_write_b32 v12, v2 offset:{F_K}")
    while st["perm"] < 4:
        waitfor(("V", 2 * st["perm"] + 1)); perms()
    assert not hg or st["f2"]
    stamp(4)
    fwait("L_wp", "v12", F_P, 1, 8)
    for u in range(4):
        a(f"s_mov_b32 exec_lo, {0x000f000f << (4*u):#x}\ns_mov_b32 exec_hi, {0x000f000f << (4*u):#x}")
        for pp in range(2): a(f"ds_read_b128 {v(AR+16*pp+4*u,4)}, v15 offset:{L_P+256*pp}")
    a("s_mov_b64 exec, -1")
    getU(8); tags()
    stamp(6)
    a("s_waitcnt lgkmcnt(0)")
    assert st["perm"] >= 4
    for jm in range(8): mf(0, jm)
    while st["n"] < len(stream): ld()
    while st["perm"] < 7:
        waitfor(("V", 2 * st["perm"] + 1)); perms()
    waitfor(("V", 15))
    stamp(7)
    perms(last=True); mf(1, 6); mf(1, 7)
    a(f"""ds_write_b128 v13, {v(AC,4)} offset:{L_OR}
    s_cmp_eq_u32 s52, 0
    ds_write_b128 v13, {v(AC+4,4)} offset:{L_OR+1024}
    s_mov_b32 exec_hi, 0
    s_waitcnt lgkmcnt(0)
    s_barrier""")
    for k in range(4): a(f"ds_read_b128 {v(80+4*k,4)}, v11 offset:{L_OR+2048*k}")
    for k in range(1, 4): a(f"s_waitcnt lgkmcnt({3-k})\nv_pk_add_f32 v[80:81], v[80:81], {v(80+4*k,2)}\nv_pk_add_f32 v[82:83], v[82:83], {v(82+4*k,2)}")
    tagins(80)
    cstore("L_so", "global_store_dwordx4 v14, v[80:83], s[34:35]")
    if b4 >= 3: a("s_barrier")
    a("s_mov_b32 exec_hi, -1\ns_setprio 0")
    stamp(8)
    a("s_cmp_eq_u32 s3, 0\ns_cbranch_scc1 L_F\ns_waitcnt vmcnt(" + ("3" if ye == 1 else "1") + ")")
    stamp(10)
    a("s_barrier\n" * (1 + (0 < b4 < 4)))
    endwave()
    a("L_F:")
    xyld = f"global_load_ushort v156, v159, s[16:17]\ns_mov_b32 exec_hi, 0xffffff\n{yld}"
    if not ye: fsetup(); a(xyld)
    a("s_waitcnt vmcnt(1)" if ye >= 2 else f"s_mov_b32 exec_hi, 0xffffff\ns_waitcnt vmcnt(3)")
    stamp(10)
    if 0 < b4 < 4: a("s_barrier")
    s0 = "s_mov_b32 exec_hi, -1\nglobal_load_dwordx4 v[24:27], v157, s[34:35] sc1\ns_mov_b32 exec_hi, 0xffffff"
    if se == 1: a(s0)
    if ye >= 2: fsetup()
    if ye == 3: a(xyld)
    a("s_barrier")
    stamp(11)
    if ye == 2: a(xyld + "\n" + s0)
    a("s_waitcnt vmcnt(0)")
    if se == 2: a(s0)
    a("L_py_c:"); check(152, 4, 6)
    a("v_cmp_ne_u32 vcc, 0, v6\ns_and_b64 exec, exec, vcc\ns_cbranch_scc1 L_py")
    stubs.append(f"L_py:\n{yld}\ns_sub_u32 s56, s56, 1\ns_waitcnt vmcnt(0)\ns_cbranch_scc0 L_py_c\ns_endpgm")
    a("s_mov_b64 exec, -1")
    def fred(r):
        a(f"""v_permlane32_swap_b32 v{r}, v{r+2}
        v_permlane32_swap_b32 v{r+1}, v{r+3}
        v_add_f32 v{r}, v{r}, v{r+2}
        v_add_f32 v{r+1}, v{r+1}, v{r+3}
        v_permlane16_swap_b32 v{r}, v{r+1}
        v_add_f32 v{r}, v{r}, v{r+1}""")
        for s in (8, 4, 2): a(f"v_add_f32_dpp v{r}, v{r}, v{r} row_ror:{s} {DPPF}")
        a(f"v_cvt_pk_bf16_f32 v{r}, 0, v{r}")
    fred(152)
    a(f"""v_mul_f32 v17, 0xbfb8aa3b, v152
    v_exp_f32 v17, v17
    v_lshlrev_b32 v11, 16, v156
    v_add_f32 v17, 1.0, v17
    v_rcp_f32 v17, v17
    s_add_u32 s11, s11, 1
    v_mul_f32 v16, v152, v17
    v_cvt_pk_bf16_f32 v16, 0, v16""")
    stamp(13)
    if prof: a("s_mov_b32 s90, s56")
    if not ns:
        a("s_setprio 3\nglobal_load_dwordx4 v[20:23], v157, s[34:35] sc1")
        gpoll("L_ps", ["global_load_dwordx4 v[20:23], v157, s[34:35] sc1"], 20, 4, 6)
    else:
        sld = lambda k: f"global_load_dwordx4 {v(24+4*k,4)}, v157, s[34:35] sc1"
        a("s_setprio 3")
        def schk(k):
            for i in range(4): a(f"v_xor_b32 v{20+i}, s{12+i}, v{24+4*k+i}")
            a(f"v_or3_b32 v6, v20, v21, v22\nv_bitop3_b32 v6, v23, v6, v2 bitop3:0xa8\nv_cmp_ne_u32 vcc, 0, v6\ns_and_b64 exec, exec, vcc\ns_cbranch_scc0 L_psd")
        if se == 1 or ye == 2: schk(0)
        for k in range(se == 2, ns): a(sld(k))
        a("L_ps:")
        for k in range(ns):
            a(f"s_waitcnt vmcnt({ns-1})")
            schk(k); a(sld(k))
            if sl: a(f"s_sleep {sl}")
        a("s_sub_u32 s56, s56, 1\ns_cbranch_scc0 L_ps\ns_endpgm\nL_psd:\ns_mov_b64 exec, -1")
    stamp(14)
    if prof: a("s_sub_u32 s90, s90, s56")
    fred(20)
    a(f"""v_mul_f32 v20, v20, v16
    s_mov_b32 exec_lo, 0x00030003
    v_cvt_pk_bf16_f32 v20, 0, v20
    s_mov_b32 exec_hi, 0x00030003
    v_add_f32 v20, v20, v11
    s_cmp_lg_u32 s2, 0
    v_cvt_pk_bf16_f32 v20, v20, v20
    global_store_short v159, v20, s[32:33]
    s_cbranch_scc1 {"L_prof" if prof else "L_end"}
    s_mov_b64 exec, 1
    v_mov_b32 v8, 0
    v_mov_b32 v10, s11
    global_store_dword v8, v10, s[34:35]""")
    endwave()
    def hwave(q):
        nk = 4 if q else 2
        lw = L_WQ if q else L_W1; xs = L_XS0 if q else L_XS1
        a("v_lshrrev_b32 v3, 4, v1\nv_and_b32 v4, 15, v1\nv_lshlrev_b32 v4, 4, v4\nv_lshl_add_u32 v3, v3, 10, v4")
        a("s_mov_b32 s48, s9" if q else f"s_xor_b32 s48, s8, {fx}\ns_lshr_b32 s48, s48, 1")
        for i in range(4): a(f"s_add_u32 s49, s48, {i}\ns_and_b32 s49, s49, 3\ns_lshl_b32 s49, s49, 8\nv_add_u32 v{4+i}, s49, v3")
        a("s_waitcnt lgkmcnt(0)")
        for i in range(4): a(f"global_load_dwordx4 {v(16+4*i,4)}, v{4+i}, s[16:17]")
        a("s_barrier\ns_load_dword s11, s[34:35], 0")
        stamp(1)
        lanes()
        a(f"""v_lshl_add_u32 v10, v3, 3, v4
        v_lshlrev_b32 v10, 7, v10
        v_lshl_add_u32 v10, v5, 5, v10
        v_lshlrev_b32 v11, 4, v3
        v_lshl_add_u32 v11, v4, 8, v11
        v_lshlrev_b32 v12, 6, v3
        v_lshl_add_u32 v12, v5, 4, v12
        v_lshl_add_u32 v12, v4, {13 if q else 8}, v12
        v_mov_b32 v9, 0
        s_mov_b32 s52, 0xaaaaaaaa
        s_mov_b32 s53, 0xaaaaaaaa
        s_mov_b32 s54, 0xcccccccc
        s_mov_b32 s55, 0xcccccccc
        s_mov_b32 s59, 0x3f803f80
        s_getreg_b32 s58, hwreg(HW_REG_XCC_ID)
        s_and_b32 s58, s58, 15
        s_lshl_b32 s58, s58, 6""")
        if q: a(f"s_lshl_b32 s49, s4, 15\ns_lshl_b32 s50, s9, 11\ns_add_u32 s50, s50, s49\ns_lshl_b32 s51, s8, 8\ns_add_u32 s50, s50, s51\ns_add_u32 s50, s50, {QP}\ns_lshl_b32 s51, s6, 13\ns_add_u32 s49, s49, s51\ns_add_u32 s49, s49, {QP+4096}")
        else: a(f"s_xor_b32 s49, s8, {fx}\ns_and_b32 s49, s49, 1\ns_lshl_b32 s49, s49, 7\nv_add_u32 v11, s49, v11\ns_lshl_b32 s49, s10, 13\ns_lshl_b32 s50, s8, 10\ns_add_u32 s50, s50, s49\ns_add_u32 s50, s50, {HP}\ns_add_u32 s49, s49, {HP+4096}")
        a("v_add_u32 v12, s50, v12\nv_add_u32 v13, s49, v7\ns_waitcnt vmcnt(0)")
        stamp(2)
        a("v_dot2_f32_bf16 v48, v16, s59, 0\nv_dot2_f32_bf16 v49, v16, v16, 0")
        for i in range(1, 16): a(f"v_dot2_f32_bf16 v48, v{16+i}, s59, v48\nv_dot2_f32_bf16 v49, v{16+i}, v{16+i}, v49")
        for s in (8, 4, 2, 1): a(f"v_add_f32_dpp v48, v48, v48 row_ror:{s} {DPPF}\nv_add_f32_dpp v49, v49, v49 row_ror:{s} {DPPF}")
        a("""v_mul_f32 v48, 0x3b000000, v48
        v_mul_f32 v49, 0x3b000000, v49
        v_fma_f32 v49, -v48, v48, v49
        v_max_f32 v49, 0, v49
        v_cvt_pk_bf16_f32 v49, 0, v49
        v_add_f32 v49, 0x3727c5ac, v49
        v_cvt_pk_bf16_f32 v49, 0, v49
        v_sqrt_f32 v49, v49
        v_cvt_pk_bf16_f32 v48, 0, v48
        v_cvt_pk_bf16_f32 v49, 0, v49
        v_rcp_f32 v49, v49""")
        for i in range(4):
            a(f"""v_lshlrev_b32 v50, 16, v{16+i}
            v_and_b32 v51, 0xffff0000, v{16+i}
            v_sub_f32 v50, v50, v48
            v_sub_f32 v51, v51, v48
            v_cvt_pk_bf16_f32 v50, 0, v50
            v_cvt_pk_bf16_f32 v51, 0, v51
            v_mul_f32 v50, v50, v49
            v_mul_f32 v51, v51, v49
            v_cvt_pk_bf16_f32 v{16+i}, v50, v51""")
        a(f"ds_write_b128 v7, v[16:19] offset:{xs}")
        for t in range(nk): a(f"ds_read_b128 {v(32+4*t,4)}, v11 offset:{xs+64*t}")
        stamp(3)
        a("s_waitcnt lgkmcnt(0)")
        tags()
        if pw & 1 and not pw & 4:
            for r in range(4): a(f"v_xor_b32_e64 v{116+r}, s{12+r}, 1")
            a("global_store_dwordx4 v12, v[116:119], s[34:35]")
        nm = "L_pq" if q else "L_ph"
        fwait(nm + "w", "v9", F_1 if f1 and not q else F_W, 4, 20)
        stamp(4)
        if prof: a("s_waitcnt lgkmcnt(0)")
        trr = lambda t, tt: [a(f"ds_read_b64_tr_b16 {v(48+16*t+4*tt+2*h,2)}, v10 offset:{lw+t*4096+h*512+tt*8}") for h in range(2)]
        for tt in range(4): trr(0, tt)
        for t in range(nk):
            for tt in range(4):
                a(f"s_waitcnt lgkmcnt({6 if t + 1 < nk else 6-2*tt})")
                if t + 1 < nk: trr(t + 1, tt)
                a(f"{MF} {v(112+4*tt,4)}, {v(48+16*t+4*tt,4)}, {v(32+4*t,4)}, {v(112+4*tt,4) if t else 0}")
        for r in range(4): a(f"v_cndmask_b32 v{112+r}, v{112+r}, v{116+r}, s[52:53]")
        for r in range(4): a(f"v_cndmask_b32 v{120+r}, v{120+r}, v{124+r}, s[52:53]")
        for r in range(4): a(f"v_cndmask_b32 v{112+r}, v{112+r}, v{120+r}, s[54:55]")
        for r in range(4): a(f"v_bfi_b32 v{116+r}, v2, s{12+r}, v{112+r}")
        for r in range(4): a(f"s_xor_b32 s{12+r}, s{12+r}, s58")
        tagins(112)
        a(f"global_store_dwordx4 v12, v[112:115], s[34:35]{' sc1' if nopl else ''}\nv_add_u32 v12, {BOFF}, v12\nglobal_store_dwordx4 v12, v[116:119], s[34:35] sc1")
        stamp(5)
        a("s_waitcnt vmcnt(0)")
        if not q and not w2pos:
            a(f"v_lshrrev_b32 v6, 3, v1\nv_and_b32 v8, 7, v1\nv_lshlrev_b32 v8, 4, v8\nv_lshl_add_u32 v6, v6, 10, v8\ns_lshl_b32 s48, s10, 16\ns_lshl_b32 s49, s8, 7\ns_add_u32 s48, s48, s49\nv_add_u32 v6, s48, v6\ns_mov_b32 m0, {L_W2}")
            for j in range(8):
                if j: a("v_add_u32 v6, 8192, v6\ns_add_u32 m0, m0, 1024")
                a(f"global_load_lds_dwordx4 v6, s[30:31] {wnt}")
        if not q and w2pos and hg < 2: fwait("L_phk", "v9", F_2 if hg else F_K, 4, 20)
        stamp(6)
        a(f"s_mov_b32 s57, {ntry}")
        if not fast: a(f"s_branch {nm}_sw")
        a(f"{nm}:")
        for i in range(8): a(f"global_load_dwordx4 {v(16+4*i,4)}, v13, s[34:35] offset:{i*1024-4096} sc1")
        a("s_waitcnt vmcnt(0)")
        check(16, 32, 6)
        a(f"v_cmp_ne_u32 vcc, 0, v6\ns_cbranch_vccnz {nm}_r")
        stubs.append(f"""{nm}_r:
        s_sub_u32 s56, s56, 1
        s_cbranch_scc1 L_end
        s_sub_u32 s57, s57, 1
        s_cmp_lg_u32 s57, 0
        s_cbranch_scc1 {nm}
        {nm}_sw:
        s_mov_b32 s57, 0
        v_add_u32 v13, {BOFF}, v13
        s_xor_b32 s12, s12, s58
        s_xor_b32 s13, s13, s58
        s_xor_b32 s14, s14, s58
        s_xor_b32 s15, s15, s58
        s_branch {nm}""")
        stamp(7)
        if prof: a(f"s_sub_u32 s76, {ntry+1}, s57")
        a("v_lshlrev_b32 v14, 3, v1")
        if q:
            for i in range(0, 8, 2): a(f"v_pk_add_f32 {v(16+i,2)}, {v(16+i,2)}, {v(24+i,2)}\nv_pk_add_f32 {v(32+i,2)}, {v(32+i,2)}, {v(40+i,2)}")
            for i in range(0, 8, 2): a(f"v_pk_add_f32 {v(16+i,2)}, {v(16+i,2)}, {v(32+i,2)}")
            for i in range(4): a(f"v_cvt_pk_bf16_f32 v{16+i}, v{16+2*i}, v{17+2*i}")
            a(f"""s_cmp_gt_i32 s57, 0
            s_cselect_b32 s48, 3, 1
            ds_write_b64 v14, v[16:17] offset:{L_QS}
            v_mov_b32 v6, s48
            ds_write_b64 v14, v[18:19] offset:{L_QS+512}
            ds_write_b32 v9, v6 offset:{F_Q}
            s_waitcnt lgkmcnt(0)""")
        else:
            tags()
            for i in range(0, 16, 2): a(f"v_pk_add_f32 {v(16+i,2)}, {v(16+i,2)}, {v(32+i,2)}")
            for i in range(0, 8, 2): a(f"v_pk_add_f32 {v(16+i,2)}, {v(16+i,2)}, {v(24+i,2)}")
            for i in range(0, 4, 2): a(f"v_pk_add_f32 {v(16+i,2)}, {v(16+i,2)}, {v(20+i,2)}")
            for i in range(4): a(f"v_max_f32 v{16+i}, 0, v{16+i}")
            a(f"""v_cvt_pk_bf16_f32 v16, v16, v17
            v_cvt_pk_bf16_f32 v17, v18, v19
            ds_write_b64 v14, v[16:17] offset:{L_HS}
            v_lshlrev_b32 v11, 4, v3
            v_lshl_add_u32 v11, v5, 7, v11
            v_lshl_add_u32 v10, v3, 3, v4
            v_lshlrev_b32 v10, 7, v10
            v_lshl_add_u32 v10, v5, 3, v10
            s_lshl_b32 s48, s8, 15
            s_lshl_b32 s49, s10, 10
            s_add_u32 s48, s48, s49
            s_add_u32 s48, s48, {YP}
            v_add_u32 v12, s48, v7""")
            if hg == 2: fwait("L_phk", "v9", F_2, 4, 20)
            for t in range(2):
                a(f"ds_read_b128 {v(32+4*t,4)}, v11 offset:{L_HS+64*t}")
                for tt in range(4):
                    for h in range(2): a(f"ds_read_b64_tr_b16 {v(48+16*t+4*tt+2*h,2)}, v10 offset:{L_W2+t*4096+h*512+tt*32}")
                a("s_waitcnt lgkmcnt(0)")
                for tt in range(4): a(f"{MF} {v(112+4*tt,4)}, {v(32+4*t,4)}, {v(48+16*t+4*tt,4)}, {v(112+4*tt,4) if t else 0}")
            for tt in range(1, 4):
                for r in range(4): a(f"v_mov_b32_dpp v{112+r}, v{112+4*tt+r} quad_perm:[0,1,2,3] row_mask:{1<<tt} bank_mask:0xf")
            tagins(112)
            a("global_store_dwordx4 v12, v[112:115], s[34:35] sc1")
            stamp(11)
        a("s_barrier\n" * (2 + (b4 > 0) + (b4 == 3)))
        endwave()
    a("L_HB:\ns_setprio 3\ns_cmp_lg_u32 s3, 0\ns_cbranch_scc1 L_H1")
    hwave(1)
    a("L_H1:\ns_cmp_ge_u32 s10, 28\ns_cbranch_scc1 L_end")
    hwave(0)
    a("L_B:\ns_sub_u32 s3, s3, 2")
    lanes()
    a("s_load_dword s11, s[34:35], 0")
    if tlbw: a(f"""s_cmp_lg_u32 s3, 1
    s_cbranch_scc1 L_notlb
    s_lshl_b32 s48, s6, 24
    s_lshl_b32 s49, s4, 21
    s_add_u32 s48, s48, s49
    s_lshl_b32 s49, s7, 16
    s_add_u32 s48, s48, s49
    s_add_u32 s48, s48, 0x180000
    s_lshl_b32 s49, s4, 19
    s_min_u32 s50, s10, 27
    s_lshl_b32 s50, s50, 16
    {"s_load_dword s36, s[18:19], s48" if tlbw & 1 else ""}
    {"s_load_dword s37, s[30:31], s50" if tlbw & 1 else ""}
    s_load_dword s38, s[20:21], s48
    s_load_dword s39, s[24:25], s49
    s_load_dword s40, s[32:33], 0
    L_notlb:""")
    sidx("s51")
    a(f"""v_and_b32 v8, 1, v1
    v_lshlrev_b32 v8, 7, v8
    v_bfe_u32 v9, v1, 1, 2
    v_lshl_add_u32 v8, v9, 13, v8
    s_lshl_b32 s49, s4, 15
    s_lshl_b32 s50, s9, 11
    s_add_u32 s50, s50, s49
    s_lshl_b32 s49, s8, 8
    s_add_u32 s50, s50, s49
    s_add_u32 s50, s50, {QP}
    v_add_u32 v8, s50, v8
    v_lshlrev_b32 v9, 7, v1
    s_lshl_b32 s49, s10, 13
    s_lshl_b32 s50, s8, 10
    s_add_u32 s50, s50, s49
    s_add_u32 s50, s50, {HP-1024}
    s_mov_b64 exec, 0xff00
    v_add_u32 v8, s50, v9
    s_lshl_b32 s50, s51, 11
    s_add_u32 s50, s50, {OP-2048}
    s_mov_b32 exec_lo, 0xffff0000
    v_add_u32 v8, s50, v9
    s_lshl_b32 s54, s8, 15
    s_lshl_b32 s49, s10, 10
    s_add_u32 s54, s54, s49
    s_add_u32 s54, s54, {SP}
    s_sub_u32 s50, s54, 4096
    s_mov_b32 exec_lo, 0
    s_mov_b32 exec_hi, -1
    v_add_u32 v8, s50, v9
    s_mov_b64 exec, -1
    s_lshl_b32 s51, s51, 5
    s_add_u32 s51, s51, {ML}
    v_writelane_b32 v8, s51, 40
    s_cmp_lg_u32 s3, 0
    s_cbranch_scc1 L_nopre
    s_cmp_eq_u32 s8, s4
    s_cselect_b32 exec_hi, 0x1ff, 0
    s_or_b32 exec_hi, exec_hi, 0x100
    {"s_mov_b32 exec_hi, 0x100" if pw & 2 else ""}
    s_mov_b32 exec_lo, {(0 if pw & 1 else 0xffff) | (0 if pw & 2 else 0xffff0000)}
    global_load_dword v80, v8, s[34:35] sc1
    s_mov_b64 exec, -1
    L_nopre:""")
    a(f"""s_mov_b32 s59, {LOG2E}
    v_lshl_add_u32 v8, v3, 3, v4
    v_lshlrev_b32 v8, 7, v8
    v_lshl_add_u32 v8, v5, 3, v8
    s_lshl_b32 s48, s3, 5
    v_add_u32 v8, s48, v8
    v_bfe_u32 v9, v1, 3, 2
    v_lshlrev_b32 v9, 5, v9
    v_xor_b32 v8, v9, v8
    v_lshlrev_b32 v9, 4, v3
    v_lshl_add_u32 v9, v5, 8, v9
    v_lshlrev_b32 v99, 3, v5
    v_add_u32 v10, {L_ML}, v99
    v_add_u32 v11, s48, v10
    v_add_u32 v99, s51, v99
    s_lshl_b32 s48, s3, 14
    s_add_u32 s48, s48, {L_K}
    v_add_u32 v92, s48, v7
    v_lshlrev_b32 v93, 8, v5
    v_lshl_add_u32 v93, v3, 6, v93
    v_lshl_add_u32 v93, v4, 4, v93
    s_lshl_b32 s48, s3, 2
    v_mov_b32 v94, s48
    v_lshlrev_b32 v95, 4, v5
    v_lshl_add_u32 v95, v3, 6, v95
    v_lshl_add_u32 v95, v4, 2, v95
    s_lshl_b32 s48, s3, 9
    v_add_u32 v95, s48, v95
    v_lshrrev_b32 v16, 5, v1
    v_and_b32 v98, 15, v1
    v_lshlrev_b32 v98, 3, v98
    v_lshl_add_u32 v98, v16, 7, v98
    s_lshl_b32 s48, s4, 2
    s_add_u32 s48, s48, s3
    s_lshl_b32 s49, s48, 8
    s_add_u32 s49, s49, {ML}
    v_add_u32 v98, s49, v98
    v_and_b32 v96, 31, v1
    v_lshlrev_b32 v6, 4, v96
    v_lshl_add_u32 v6, v16, 13, v6
    s_lshl_b32 s48, s48, 14
    s_lshl_b32 s49, s9, 9
    s_add_u32 s48, s48, s49
    s_add_u32 s48, s48, {OP+4096}
    v_add_u32 v6, s48, v6
    v_lshlrev_b32 v96, 3, v96
    v_lshl_add_u32 v96, v16, 2, v96
    s_lshl_b32 s49, s3, 8
    v_add_u32 v96, s49, v96
    s_add_u32 s54, s54, s49
    v_add_u32 v97, s54, v7
    s_waitcnt vmcnt(0) lgkmcnt(0)""")
    tags()
    a("s_lshl_b32 s50, s13, 10\ns_or_b32 s50, s50, s12\ns_and_b32 s50, s50, 0xffff")
    if pwp: fwait("L_wk", "v94", F_K, 1, 80)
    if pw & 2:
        if not pw & 8:
            for r in range(4): a(f"v_xor_b32_e64 v{12+r}, s{12+r}, 1")
        a(f"""s_sub_u32 s48, s51, {ML}
        s_lshl_b32 s48, s48, 6
        s_lshl_b32 s49, s3, 10
        s_add_u32 s48, s48, s49
        s_add_u32 s48, s48, {OP}
        s_sub_u32 s49, s54, 512
        s_cmp_eq_u32 s3, 2
        s_cselect_b32 s48, s49, s48
        v_add_u32 v87, s48, v7
        s_cmp_eq_u32 s8, s4
        s_cselect_b32 s49, 3, 2
        s_cmp_ge_u32 s3, s49
        s_cbranch_scc1 L_nopw
        {("" if pw & 16 else "global_load_dword v104, v87, s[34:35] sc1") if pw & 8 else "global_store_dwordx4 v87, v[12:15], s[34:35]"}
        L_nopw:""")
    if not pwp: fwait("L_wk", "v94", F_K, 1, 80)
    stamp(2)
    for i in range(16):
        if i == 12: a("s_waitcnt lgkmcnt(0)")
        a(f"ds_read_b128 {v(16+4*i,4)}, v92 offset:{1024*i}")
    fwait("L_wq", "v90", F_Q, 1, 91)
    a(f"ds_read_b128 v[100:103], v93 offset:{L_QS}\ns_setprio 1")
    stamp(4)
    getU(91)
    a("s_waitcnt lgkmcnt(0)")
    S = 80
    def red(i):
        d = 12 + 4 * i
        if (i >> 1) & 1 == 0: a(f"v_add_f32_dpp v{d}, v{d+1}, v{d} row_ror:12 {DPPF}\nv_add_f32_dpp v{d+2}, v{d+3}, v{d+2} row_ror:12 {DPPF}")
        else: a(f"v_add_f32_dpp v{d}, v{d}, v{d+1} row_ror:4 {DPPF}\nv_add_f32_dpp v{d+2}, v{d+2}, v{d+3} row_ror:4 {DPPF}")
    def red2(i):
        d = 12 + 4 * i; pp, vv, e = i >> 3, (i >> 1) & 3, i & 1
        x, y = (d + 2, d) if vv < 2 else (d, d + 2)
        a(f"v_add_f32_dpp v{S+2*pp+e}, v{x}, v{y} row_ror:8 row_mask:0xf bank_mask:{1<<vv}")
    for i in range(16 + 4):
        if i < 16: a(f"{MF} {v(12+4*i,4)}, {v(16+4*i,4)}, v[100:103], 0")
        if 0 <= i - 3 < 16: red(i - 3)
        if 0 <= i - 4 < 16: red2(i - 4)
    for k in range(4): a(f"v_cvt_pk_bf16_f32 v{S+k}, 0, v{S+k}")
    for k in range(4): a(f"v_mul_f32 v{S+k}, 0x3db504f3, v{S+k}")
    for k in range(4): a(f"v_cvt_pk_bf16_f32 v{S+k}, 0, v{S+k}")
    def allred(op, r, t):
        a(f"""{op}_dpp v{r}, v{r}, v{r} row_ror:8 {DPPF}
        {op}_dpp v{r}, v{r}, v{r} row_ror:4 {DPPF}
        v_mov_b32 v{t}, v{r}
        v_permlane16_swap_b32 v{r}, v{t}
        {op} v{r}, v{r}, v{t}
        v_mov_b32 v{t}, v{r}
        v_permlane32_swap_b32 v{r}, v{t}
        {op} v{r}, v{r}, v{t}""")
    a("v_max3_f32 v84, v80, v81, v82\nv_max_f32 v84, v84, v83")
    allred("v_max_f32", 84, 86)
    for k in range(4): a(f"v_sub_f32 v{S+k}, v{S+k}, v84")
    for k in range(4): a(f"v_mul_f32 v{S+k}, s59, v{S+k}")
    for k in range(4): a(f"v_exp_f32 v{S+k}, v{S+k}")
    a("v_add_f32 v85, v80, v81\nv_add_f32 v86, v82, v83\nv_add_f32 v85, v85, v86")
    allred("v_add_f32", 85, 86)
    if pw & 2 and not pwp: a("s_waitcnt vmcnt(0)")
    a(f"ds_write_b64 v11, v[84:85]\nds_write_b32 v94, v2 offset:{F_M}")
    fwait("L_wm", "v90", F_M, 4, 12)
    a("ds_read2_b64 v[16:19], v10 offset0:0 offset1:4\nds_read2_b64 v[20:23], v10 offset0:8 offset1:12")
    stamp(5)
    a("""s_waitcnt lgkmcnt(0)
    v_max3_f32 v24, v16, v18, v20
    v_max_f32 v24, v24, v22
    v_sub_f32 v84, v84, v24
    v_mul_f32 v84, s59, v84
    v_exp_f32 v84, v84""")
    for k in range(4): a(f"v_mul_f32 v{S+k}, v84, v{S+k}")
    a(f"""v_cvt_pk_bf16_f32 v80, v80, v81
    v_cvt_pk_bf16_f32 v81, v82, v83
    ds_write_b32 v95, v80 offset:{L_P}
    ds_write_b32 v95, v81 offset:{L_P+256}
    ds_write_b32 v94, v91 offset:{F_P}""")
    stamp(6)
    if pwp and not pw & 8: a("s_waitcnt vmcnt(0)")
    a("s_cmp_lg_u32 s3, 2\ns_cbranch_scc1 L_noml")
    for k in range(4): a(f"v_sub_f32 v{16+2*k}, v{16+2*k}, v24")
    for k in range(4): a(f"v_mul_f32 v{16+2*k}, s59, v{16+2*k}")
    for k in range(4): a(f"v_exp_f32 v{16+2*k}, v{16+2*k}")
    a("v_mul_f32 v25, v16, v17\nv_fmac_f32 v25, v18, v19\nv_fmac_f32 v25, v20, v21\nv_fmac_f32 v25, v22, v23")
    a("v_or_b32 v24, s50, v24\nv_bfi_b32 v25, v2, s14, v25\ns_mov_b64 exec, 15\ns_cmp_eq_u32 s52, 0")
    cstore("L_sml", "global_store_dwordx2 v99, v[24:25], s[34:35]")
    a("s_mov_b64 exec, -1\nL_noml:")
    stamp(9)
    if cp:
        for k in range(1, ns): a(f"v_add_u32 v{33+k}, {coff(k)}, v97")
    if osel:
        for t in range(4): a(f"s_mov_b64 s[{36+2*t}:{37+2*t}], -1")
    a("v_mov_b32 v33, 0xffff\ns_waitcnt lgkmcnt(0)\ns_setprio 3\ns_barrier")
    stamp(12)
    if prof: a("s_mov_b32 s90, s56")
    ol = [f"global_load_dwordx4 {v(64+4*t,4)}, v6, s[34:35] offset:{t*2048-4096} sc1" for t in range(4)]
    mll = "global_load_dwordx2 v[56:57], v98, s[34:35] sc1"
    wotr = lambda t: [a(f"ds_read_b64_tr_b16 {v(16+4*t+2*h,2)}, v8 offset:{L_WO+t*4096+h*512}") for h in range(2)]
    a(mll)
    if b4 >= 2: a("s_barrier")
    for l in ol: a(l)
    if 0 < b4 < 4:
        if b4 & 1: a("s_barrier")
        for t in range(4): wotr(t)
    a("L_pml:")
    a(f"""s_waitcnt vmcnt(4)
    v_xor_b32 v56, s50, v56
    v_xor_b32 v57, s14, v57
    v_and_b32 v32, v33, v56
    v_and_or_b32 v32, v57, v2, v32
    v_max_f32_dpp v58, v56, v56 row_ror:8 {DPPF}
    v_cmp_ne_u32 vcc, 0, v32
    s_cbranch_vccnz L_pml_r
    v_max_f32_dpp v58, v58, v58 row_ror:4 {DPPF}
    v_mov_b32 v59, v58
    v_permlane32_swap_b32 v58, v59
    v_max_f32 v58, v58, v59
    v_sub_f32 v56, v56, v58
    v_mul_f32 v56, s59, v56
    v_exp_f32 v56, v56
    v_mul_f32 v57, v56, v57
    v_add_f32_dpp v57, v57, v57 row_ror:8 {DPPF}
    v_add_f32_dpp v57, v57, v57 row_ror:4 {DPPF}
    v_mov_b32 v59, v57
    v_permlane32_swap_b32 v57, v59
    v_add_f32 v57, v57, v59
    v_rcp_f32 v57, v57
    v_mul_f32 v56, v56, v57""")
    stubs.append("L_pml_r:\n" + "\n".join([mll] + ol) + "\ns_sub_u32 s56, s56, 1\ns_cbranch_scc0 L_pml\ns_endpgm")
    stamp(10)
    fma = lambda t: [a(f"{'v_fmac_f32_dpp' if t else 'v_mul_f32_dpp'} v{60+k}, v56, v{64+4*t+k} row_newbcast:{4*t+k} {DPPF}") for k in range(4)]
    if oi:
        a("L_po_c:")
        for t in range(4):
            r0 = 64 + 4 * t
            a(f"s_waitcnt vmcnt({3-t})")
            for i in range(4): a(f"v_xor_b32 v{r0+i}, s{12+i}, v{r0+i}")
            a(f"v_or3_b32 v32, v{r0}, v{r0+1}, {'v32' if t else 0}\nv_or3_b32 v32, v{r0+2}, v{r0+3}, v32")
            if t == 3: a("v_and_b32 v32, v2, v32\nv_cmp_ne_u32 vcc, 0, v32")
            fma(t)
        a("s_cbranch_vccnz L_po")
        stubs.append("L_po:\n" + "\n".join(ol) + "\ns_sub_u32 s56, s56, 1\ns_cbranch_scc0 L_po_c\ns_endpgm")
    elif not osel: gpoll("L_po", ol, 64, 16, 32)
    else:
        a("L_po_c:")
        for t in range(4):
            a(f"s_waitcnt vmcnt({3-t})\ns_mov_b64 exec, s[{36+2*t}:{37+2*t}]")
            check(64 + 4 * t, 4, 32)
            a(f"v_cmp_ne_u32 s[{36+2*t}:{37+2*t}], 0, v32")
            if t == 2: a("s_or_b64 s[44:45], s[36:37], s[38:39]")
        a("s_or_b64 s[44:45], s[44:45], s[40:41]\ns_or_b64 s[44:45], s[44:45], s[42:43]\ns_mov_b64 exec, -1\ns_cbranch_scc1 L_po")
        stubs.append("L_po:\n" + "\n".join(f"s_mov_b64 exec, s[{36+2*t}:{37+2*t}]\n{ol[t]}" for t in range(4)) + "\ns_sub_u32 s56, s56, 1\ns_cbranch_scc0 L_po_c\ns_endpgm")
    stamp(13)
    if prof: a("s_sub_u32 s90, s90, s56")
    if not oi:
        for t in range(4): fma(t)
    a(f"""v_permlane32_swap_b32 v60, v62
    v_permlane32_swap_b32 v61, v63
    v_add_f32 v60, v60, v62
    v_add_f32 v61, v61, v63
    v_cvt_pk_bf16_f32 v60, v60, v61
    ds_write_b32 v96, v60 offset:{L_OS}
    s_waitcnt lgkmcnt(0)
    s_barrier""")
    for t in range(4):
        a(f"ds_read_b128 {v(64+4*t,4)}, v9 offset:{L_OS+64*t}")
        if b4 in (0, 4): wotr(t)
    for t in range(4): a(f"s_waitcnt lgkmcnt({9-3*t if b4 in (0, 4) else 3-t})\n{MF} v[48:51], {v(64+4*t,4)}, {v(16+4*t,4)}, {'v[48:51]' if t else 0}")
    a("s_mov_b64 exec, 0xffff\ns_cmp_eq_u32 s53, 0")
    tagins(48)
    cstore("L_ss", "global_store_dwordx4 v97, v[48:51], s[34:35]", inv=True)
    if cp:
        a("s_cmp_eq_u32 s8, s4\ns_cbranch_scc1 L_nocp")
        for k in range(1, ns): a(f"global_store_dwordx4 v{33+k}, v[48:51], s[34:35] sc1")
        a("L_nocp:")
    stamp(14)
    endwave()
    for x in stubs: a(x)
    if prof == 2:
        a("L_prof:\ns_mov_b64 exec, -1")
        if didx == 16: a("s_memrealtime s[92:93]")
        lo, hi = dict(H=(0, 0), B=(2, 5), A=(6, 9), F=(6, 6))[drole]
        a(f"""v_lshrrev_b32 v4, 6, v0
        v_readfirstlane_b32 s48, v4
        s_cmp_lt_u32 s48, {lo}
        s_cbranch_scc1 L_end
        s_cmp_gt_u32 s48, {hi}
        s_cbranch_scc1 L_end
        s_waitcnt lgkmcnt(0)
        s_add_u32 s48, s{60+2*didx}, 2000
        L_spin:
        s_sleep 1
        s_memrealtime s[50:51]
        s_waitcnt lgkmcnt(0)
        s_sub_u32 s50, s50, s48
        s_cmp_lt_i32 s50, 0
        s_cbranch_scc1 L_spin""")
    if prof == 1:
        a("L_prof:\ns_mov_b64 exec, -1\ns_memrealtime s[92:93]\ns_getreg_b32 s94, hwreg(HW_REG_XCC_ID)\ns_getreg_b32 s96, hwreg(HW_REG_HW_ID)\ns_getpc_b64 s[98:99]\ns_waitcnt lgkmcnt(0)")
        for i in range(20): a(f"v_writelane_b32 v3, s{60+2*i}, {i}")
        a("v_writelane_b32 v3, s0, 20")
        a(f"v_lshrrev_b32 v4, 6, v0\ns_mul_i32 s48, s2, {NW}\nv_add_u32 v4, s48, v4\nv_lshlrev_b32 v4, 7, v4\nv_lshl_add_u32 v4, v1, 2, v4\nv_add_u32 v4, {PROF}, v4\ns_mov_b64 exec, 0x1fffff\nglobal_store_dword v4, v3, s[34:35] sc1")
    a("L_end:\ns_endpgm")
    head = [l for l in open(REF).read().split("\n") if l.startswith(";") and "@launch" not in l]
    txt = "\n".join(head) + f"\n; @launch grid=(256,1,1) block=({NW*64},1,1) lds=131072\n"
    txt += f'.amdgcn_target "amdgcn-amd-amdhsa--gfx950"\n.text\n.globl {NAME}_kernel\n.p2align 8\n.type {NAME}_kernel,@function\n'
    txt += a.text()
    txt += f'''.section .rodata,"a"
.p2align 6
.amdhsa_kernel {NAME}_kernel
  .amdhsa_next_free_vgpr 160
  .amdhsa_next_free_sgpr 100
  .amdhsa_accum_offset 160
  .amdhsa_group_segment_fixed_size 0
  .amdhsa_kernarg_size 88
  .amdhsa_user_sgpr_count 2
  .amdhsa_user_sgpr_kernarg_segment_ptr 1
  .amdhsa_system_sgpr_workgroup_id_x 1
  .amdhsa_float_denorm_mode_32 3
.end_amdhsa_kernel
'''
    return txt
if __name__ == "__main__":
    out = sys.argv[1]; kw = {}
    for x in sys.argv[2:]:
        k, val = x.split("=")
        try: val = int(val, 0)
        except ValueError: pass
        kw[k] = val
    open(out, "w").write(gen(**kw))
```

```python
import sys
from asmlib import Asm
NAME = "recurrent_scan__sliding_block_cached__dense_activation_relu__decode"
REF = "cdna_kernels/" + NAME + ".s.ref"
QP, HP, OP, SP, YP, ML, PROF = 0x4000, 0x44000, 0xf4000, 0x174000, 0x1b4000, 0x1000, 0x400000
BOFF = 0x78000
L_WQ, L_W1, L_WO, L_W2, L_OR = 0, 16384, 24576, 40960, 49152
L_XS0, L_XS1, L_QS, L_HS, L_OS, L_ML, L_FL, L_P, L_K = 57344, 58368, 59392, 60416, 60928, 61952, 62080, 62464, 65536
F_W, F_K, F_M, F_P, F_Q, F_2, F_1 = L_FL, L_FL + 16, L_FL + 32, L_FL + 48, L_FL + 64, L_FL + 80, L_FL + 96
TAGM = 0x3FF
LOG2E = "0x3fb8aa3b"
DPPF = "row_mask:0xf bank_mask:0xf"
NW = 10
def v(a, n=1): return f"v{a}" if n == 1 else f"v[{a}:{a+n-1}]"
MF = "v_mfma_f32_16x16x32_bf16"

def gen(prof=0, diag=None, nt="nt", wnt="nt", rot=9, rsh=0, cap=1 << 18, th=6, cw=1, fast=1, ntry=5, w2pos=1, tlbw=0, b00=0, th0=0, n0=0, th1=0, n1=99, fx=0, cx=0, xw=0, order=None, na=12, nb=28, dx=1, ns=2, sl=1, cp=0, osel=0, b4=2, se=0, ye=2, pe=4, oi=1, nopl=0, pw=11, pwp=1, hg=0, f1=1, tw=7, tl=0, tws=None, twh=0, ow=0, osc="", **kw):
    a = Asm()
    if diag is not None: prof = 2; drole, didx = diag[0], int(diag[1:])
    stubs = []
    def stamp(i):
        if prof == 1 or (prof == 2 and i in (0, didx)): a(f"s_memrealtime s[{60+2*i}:{61+2*i}]")
    def endwave(): a("s_branch L_prof" if prof else "s_endpgm")
    def tags():
        a("s_add_u32 s12, s11, 1\ns_add_u32 s13, s11, 0x156\ns_add_u32 s14, s11, 0x2ab\ns_add_u32 s15, s11, 0xc4")
        for k in range(4): a(f"s_and_b32 s{12+k}, s{12+k}, {TAGM}")
    def tagins(r):
        for k in range(4): a(f"v_bfi_b32 v{r+k}, v2, s{12+k}, v{r+k}")
    def check(r0, n, acc):
        for i in range(n): a(f"v_xor_b32 v{r0+i}, s{12+i%4}, v{r0+i}")
        a(f"v_or3_b32 v{acc}, v{r0}, v{r0+1}, v{r0+2}")
        for i in range(3, n - 1, 2): a(f"v_or3_b32 v{acc}, v{r0+i}, v{r0+i+1}, v{acc}")
        a(f"v_bitop3_b32 v{acc}, v{r0+n-1}, v{acc}, v2 bitop3:0xa8")
    def cstore(name, ins, inv=False):
        a(f"s_cbranch_scc{0 if inv else 1} {name}_s\n{ins}{' sc1' if inv else ''}\n{name}_e:")
        stubs.append(f"{name}_s:\n{ins}{'' if inv else ' sc1'}\ns_branch {name}_e")
    def gpoll(name, loads, r0, n, acc):
        a(f"{name}_c:\ns_waitcnt vmcnt(0)")
        check(r0, n, acc)
        a(f"v_cmp_ne_u32 vcc, 0, v{acc}\ns_cbranch_vccnz {name}")
        stubs.append(f"{name}:\n" + "\n".join(loads) + f"\ns_sub_u32 s56, s56, 1\ns_cbranch_scc0 {name}_c\ns_endpgm")
    def fwait(name, addr, off, n, vt):
        a(f"{name}_c:\nds_read_b{32*n} {v(vt,n)}, {addr} offset:{off}\ns_waitcnt lgkmcnt(0)")
        if n == 4: a(f"v_bitop3_b32 v{vt}, v{vt}, v{vt+1}, v{vt+2} bitop3:0x80\nv_and_b32 v{vt}, v{vt}, v{vt+3}")
        a(f"v_cmp_eq_u32 vcc, 0, v{vt}\ns_cbranch_vccnz {name}")
        stubs.append(f"{name}:\ns_sleep 1\ns_sub_u32 s56, s56, 1\ns_cbranch_scc0 {name}_c\ns_endpgm")
    def getU(vt): a(f"v_readfirstlane_b32 s52, v{vt}\ns_lshr_b32 s52, s52, 1\ns_cmp_eq_u32 s8, s4\ns_cselect_b32 s53, s52, 0")
    def lanes(): a("v_lshrrev_b32 v3, 4, v1\nv_bfe_u32 v4, v1, 2, 2\nv_and_b32 v5, 3, v1\nv_lshlrev_b32 v7, 4, v1")
    def sidx(d): a(f"s_lshl_b32 {d}, s4, 2\ns_add_u32 {d}, {d}, s6\ns_lshl_b32 {d}, {d}, 3\ns_add_u32 {d}, {d}, s7")
    a(f"{NAME}_kernel:")
    stamp(0)
    a("""s_cmp_ge_u32 s2, 256
    s_cbranch_scc1 L_end
    s_load_dwordx16 s[16:31], s[0:1], 0
    s_load_dwordx2 s[34:35], s[0:1], 80
    s_load_dwordx2 s[32:33], s[0:1], 64""")
    def early():
        a(f"""v_readfirstlane_b32 s3, v0
        s_cmp_lg_u32 s3, 128
        s_cbranch_scc1 L_ne
        s_lshl_b32 s44, s2, 14
        s_lshl_b32 s45, s2, 21
        s_and_b32 s45, s45, 0x3e00000
        s_bitset1_b32 s45, 20
        s_bitset1_b32 s45, 19
        s_mul_i32 s46, s2, 7168
        s_waitcnt lgkmcnt(0)
        s_load_dword s91, s[22:23], s44
        s_load_dword s95, s[28:29], s46
        s_load_dword s97, s[18:19], s45
        L_ne:""")
    if twh == 4: early()
    if cw: a("""s_getpc_b64 s[48:49]
    L_pc:
    v_lshlrev_b32 v3, 7, v0
    v_cmp_gt_u32 vcc, L_end-L_pc, v3
    s_and_saveexec_b64 s[50:51], vcc
    s_cbranch_execz L_nocw
    global_load_dword v15, v3, s[48:49]
    L_nocw:
    s_mov_b64 exec, s[50:51]""")
    if twh == 5: early()
    twa = "" if not tw else f"s_lshl_b32 s48, s9, 20\ns_mul_i32 s49, s8, {64*3584}\ns_lshl_b32 s50, s6, 24\ns_lshl_b32 s51, s4, 21\ns_add_u32 s50, s50, s51\ns_add_u32 s50, s50, 0x180000\ns_lshl_b32 s51, s7, 16\ns_add_u32 s50, s50, s51\ns_lshl_b32 s51, s4, 3\ns_add_u32 s51, s51, s8\ns_lshl_b32 s51, s51, 7\ns_add_u32 s48, s48, s51\ns_min_u32 s51, s10, 27\ns_lshl_b32 s52, s51, 7\ns_add_u32 s49, s49, s52\ns_lshl_b32 s51, s51, 16\ns_cmp_lg_u32 s3, 2"
    twb = "\n".join(x for k, x in enumerate(["s_load_dword s41, s[22:23], s48", "s_load_dword s42, s[28:29], s49", "s_load_dword s43, s[18:19], s50", "s_load_dword s44, s[30:31], s51", "s_load_dword s45, s[20:21], s50"]) if tw >> k & 1)
    if tw & 32: twb = "\n".join(twb.split("\n")[::-1])
    if tw: twb = "s_cbranch_scc1 L_notw\n" + twb + "\nL_notw:"
    if tws:
        pg = dict(q="s41, s[22:23], s48", w="s42, s[28:29], s49", k="s43, s[18:19], s50", u="s44, s[30:31], s51", v="s45, s[20:21], s50", x="s46, s[16:17], 0", e="s47, s[34:35], 0")
        twb = "\n".join(f"s_cmp_lg_u32 s3, {2+i}\ns_cbranch_scc1 L_tw{i}\n" + "".join(f"s_load_dword {pg[c]}\n" for c in g) + f"L_tw{i}:" for i, g in enumerate(tws.split(".")))
    hwa, hwb = twa, "\n".join(l for l in twb.split("\n") if "s_load" in l)
    if twh == 1: twa += "\ns_setprio 3"; twb += "\ns_setprio 0"
    if twh >= 2: twa = twb = ""
    twz = ""
    if twh >= 4: twz, twb = "s_cmp_eq_u32 s3, 2\ns_cbranch_scc1 L_nz", "L_nz:"
    a(f"""v_lshrrev_b32 v3, 6, v0
    v_and_b32 v1, 63, v0
    v_readfirstlane_b32 s3, v3
    s_and_b32 s4, s2, 7
    s_lshr_b32 s5, s2, 3
    s_and_b32 s6, s5, 3
    s_lshr_b32 s7, s5, 2
    s_and_b32 s8, s5, 7
    {f"s_xor_b32 s8, s8, {cx}" if cx else ""}
    s_lshr_b32 s9, s5, 3
    s_lshl_b32 s10, s4, 2
    s_add_u32 s10, s10, s9
    s_mov_b32 s56, {cap}
    v_mov_b32 v2, {TAGM}
    s_cmp_lt_u32 s3, 2
    s_cbranch_scc1 L_HB
    s_cmp_ge_u32 s3, 6
    s_cbranch_scc1 L_A
    v_mov_b32 v90, 0
    {twz}
    v_lshlrev_b32 v8, 2, v1
    ds_write_b32 v8, v90 offset:{L_FL}
    {twa}
    s_waitcnt lgkmcnt(0)
    {twb}
    s_barrier
    s_branch L_B
    L_A:""")
    a(f"""s_setprio 2
    s_sub_u32 s3, s3, 6
    v_lshrrev_b32 v13, 3, v1
    v_and_b32 v14, 7, v1
    v_lshlrev_b32 v14, 4, v14
    v_lshl_add_u32 v8, v13, 13, v14
    v_mul_u32_u24 v9, 3584, v13
    v_add_u32 v9, v9, v14
    s_lshl_b32 s51, s9, 20
    s_lshl_b32 s49, s4, 10
    s_add_u32 s51, s51, s49
    s_lshl_b32 s55, s8, 7
    s_add_u32 s51, s51, s55
    s_lshl_b32 s49, s3, 18
    s_add_u32 s51, s51, s49
    s_lshl_b32 s59, s3, 12
    s_add_u32 m0, s59, {L_WQ}
    s_lshl_b32 s98, s3, 11
    s_lshl_b32 s53, s3, 14
    s_mov_b32 s46, {4<<20}
    s_mov_b32 s47, 0x20000
    s_xor_b32 s54, s8, {fx}
    s_lshl_b32 s54, s54, 2
    s_add_u32 s54, s54, s3
    s_mul_i32 s54, s54, {16*3584}
    s_lshl_b32 s49, s10, 7
    s_add_u32 s54, s54, s49
    s_lshl_b32 s48, s6, 24
    s_lshl_b32 s49, s4, 21
    s_add_u32 s48, s48, s49
    s_lshl_b32 s49, s7, 16
    s_add_u32 s48, s48, s49
    s_add_u32 s48, s48, 0x180000
    s_lshr_b32 s50, s2, {rsh}
    s_mul_i32 s50, s50, {rot}
    s_add_u32 s50, s50, s3
    s_lshl_b32 s50, s50, 10
    s_and_b32 s50, s50, 0xffff
    s_mov_b32 s38, 0x10000
    s_mov_b32 s39, 0x20000
    s_mov_b32 s42, 0x10000
    s_mov_b32 s43, 0x20000""")
    lanes()
    a("""v_lshlrev_b32 v6, 4, v5
    v_lshl_add_u32 v6, v3, 6, v6
    v_lshl_add_u32 v6, v4, 8, v6
    s_waitcnt lgkmcnt(0)
    s_mov_b32 s44, s22
    s_mov_b32 s45, s23""")
    if b00: a("s_barrier")
    coff = lambda k: 0x200000 + (k - 1) * 0x40000 - SP
    yld = "global_load_dwordx4 v[152:155], v158, s[34:35] sc1"
    def fsetup():
        a(f"""v_lshrrev_b32 v157, 1, v1
        v_and_b32 v159, 1, v1
        v_lshlrev_b32 v157, 10, v157
        v_lshl_add_u32 v157, v159, 4, v157
        s_lshl_b32 s48, s4, 15
        s_lshl_b32 s49, s5, 5
        s_add_u32 s48, s48, s49
        s_add_u32 s48, s48, {SP}
        v_add_u32 v157, s48, v157
        v_add_u32 v158, {YP-SP}, v157
        v_lshlrev_b32 v159, 1, v159
        v_lshl_add_u32 v159, v3, 10, v159
        s_lshl_b32 s48, s4, 7
        s_lshl_b32 s49, s5, 2
        s_add_u32 s48, s48, s49
        v_add_u32 v159, s48, v159
        v_mov_b32 v152, 0
        v_mov_b32 v153, 0
        v_mov_b32 v154, 0
        v_mov_b32 v155, 0""")
    order = order or ("qqqq11KK2KK2" + "K" * 12 + "V" * 16 + "oooo")
    stream = [(c, order[:n].count(c)) for n, c in enumerate(order)]
    assert [order.count(c) for c in "q1K2Vo"] == [4, 2, 16, 2 if w2pos else 0, 16, 4] and order[0] == "q"
    ws_ = [c for c in order if c in "q12o"]; assert ws_ == sorted(ws_, key="q12o".index)
    nW = max(n for n, c in enumerate(order) if c in ("q" if f1 else "q1")); nK = max(n for n, c in enumerate(order) if c in ("K" if hg else "K2"))
    m0v = lambda k, j: {"q": ("s59", L_WQ), "1": ("s98", L_W1), "K": ("s53", L_K), "2": ("s98", L_W2), "o": ("s59", L_WO)}[k]
    pos = {x: n for n, x in enumerate(stream)}
    st = dict(n=0, perm=0, land=-1, fw=0, fk=0)
    thf = lambda n: th0 if n < n0 else (th1 if n >= n1 else (th + xw if 22 < n <= 22 + th else th))
    VR, TR, AR, AC = 16, 80, 112, 144
    def waitfor(x): a(f"s_waitcnt vmcnt({st['n'] - 1 - pos[x]})")
    def breg(pp, j): return (TR if pp == 0 else VR) + 4 * j
    def mf(pp, jm): a(f"{MF} {v(AC+4*(jm>>2),4)}, {v(AR+16*pp+4*(jm&3),4)}, {v(breg(pp,jm),4)}, {v(AC+4*(jm>>2),4) if (pp or jm&3) else 0}")
    def perms(last=False):
        p = st["perm"]; pp, w = p >> 2, p & 3; i = 2 * p
        for j in range(8):
            a(f"v_perm_b32 v{breg(pp,j)+w}, v{VR+4*(i+1)+(j>>1)}, v{VR+4*i+(j>>1)}, s{57+(j&1)}")
            if last and j >= 2: mf(1, j - 2)
        st["perm"] += 1
    def ld():
        n = st["n"]; k, j = stream[n]
        if j == 0 and k == "1": a(f"s_mov_b32 s44, s28\ns_mov_b32 s45, s29\ns_cmp_ge_u32 s10, 28\ns_cselect_b32 s46, 0, {1792*1024}\ns_mov_b32 s51, s54")
        if j == 0 and k == "2": a(f"s_mov_b32 s44, s30\ns_mov_b32 s45, s31\ns_lshl_b32 s51, s10, 16\ns_add_u32 s51, s51, s55\ns_add_u32 s51, s51, s53")
        if j == 0 and k == "o": a(f"s_mov_b32 s44, s24\ns_mov_b32 s45, s25\ns_mov_b32 s46, {4<<20}\ns_mov_b32 s51, s99")
        if n and k != "V": a(f"s_add_u32 m0, {m0v(k, j)[0]}, {m0v(k, j)[1] + 1024 * j}")
        if na <= n < nb and n >= thf(n):
            a(f"s_cbranch_vccnz L_dw{n}\ns_waitcnt vmcnt({thf(n)-1})\nL_dw{n}:\ns_waitcnt vmcnt({thf(n)-1+dx})"); st["land"] = max(st["land"], n - thf(n) - dx)
        elif n - thf(n) > st["land"]: a(f"s_waitcnt vmcnt({thf(n)-1})"); st["land"] = n - thf(n)
        if k == "K": a(f"buffer_load_dwordx4 v6, s[36:39], s50 offen {nt} lds")
        elif k == "V": a(f"buffer_load_dwordx4 {v(VR+4*j,4)}, v7, s[40:43], s50 offen {nt}")
        else: a(f"buffer_load_dwordx4 { {'1': 'v9', 'o': 'v10'}.get(k, 'v8')}, s[44:47], s51 offen {wnt} lds")
        if k in "KV": a("s_add_u32 s50, s50, 4096\ns_and_b32 s50, s50, 0xffff")
        else: a(f"s_add_u32 s51, s51, {dict(q=65536, o=16384).get(k) or {'1': 8*3584, '2': 8192}[k]}")
        if k == "o": a("v_xor_b32 v10, 64, v10")
        st["n"] += 1
        if n == 0:
            a("s_load_dword s11, s[34:35], 0\ns_add_u32 s36, s18, s48\ns_addc_u32 s37, s19, 0\ns_add_u32 s40, s20, s48\ns_addc_u32 s41, s21, 0"); stamp(1)
            if nb: a("s_lshr_b32 s49, s22, 7\ns_add_u32 s49, s49, s8\ns_and_b32 s49, s49, 7\ns_cmp_eq_u32 s49, 3\ns_cselect_b64 vcc, -1, 0")
        if st["land"] >= nW and not st["fw"]: a(f"ds_write_b32 v12, v2 offset:{F_W}"); st["fw"] = 1
        if st["land"] >= nK and not st["fk"]: a(f"ds_write_b32 v12, v2 offset:{F_K}"); st["fk"] = 1
        if hg and st["land"] >= pos[("2", 1)] and not st.get("f2"): a(f"ds_write_b32 v12, v2 offset:{F_2}"); st["f2"] = 1
        if f1 and st["land"] >= pos[("1", 1)] and not st.get("f1"): a(f"ds_write_b32 v12, v2 offset:{F_1}"); st["f1"] = 1
        if (k, j) == ("K", 15): stamp(2)
        if (k, j) == ("V", 15): stamp(3)
        while st["perm"] < 7 and pos[("V", 2 * st["perm"] + 1)] <= st["land"]: perms()
    while st["n"] < max(thf(0), pos[("q", 3)] + 1): ld()
    if not b00: a("s_barrier")
    a(f"""v_lshl_add_u32 v8, v13, 10, v14
    v_and_b32 v15, 3, v13
    v_lshl_add_u32 v10, v15, 17, v14
    v_lshrrev_b32 v13, 2, v13
    v_lshl_add_u32 v10, v13, 13, v10
    v_bfe_u32 v15, v1, 4, 1
    v_lshlrev_b32 v15, 5, v15
    v_xor_b32 v10, v15, v10
    s_lshl_b32 s99, s4, 9
    s_and_b32 s49, s3, 1
    s_lshl_b32 s49, s49, 6
    s_add_u32 s99, s99, s49
    s_lshl_b32 s49, s9, 1
    s_add_u32 s99, s99, s49
    s_lshr_b32 s49, s3, 1
    s_add_u32 s99, s99, s49
    s_lshl_b32 s99, s99, 10
    s_add_u32 s99, s99, s55
    s_lshl_b32 s49, s3, 2
    v_mov_b32 v12, s49
    s_lshl_b32 s49, s3, 9
    v_add_u32 v11, s49, v7
    v_lshlrev_b32 v15, 4, v5
    v_lshl_add_u32 v15, v3, 6, v15
    v_add_u32 v15, s49, v15
    s_lshl_b32 s49, s3, 11
    v_add_u32 v13, s49, v7
    s_mov_b32 s57, 0x05040100
    s_mov_b32 s58, 0x07060302""")
    sidx("s48")
    a(f"s_lshl_b32 s48, s48, 11\ns_add_u32 s48, s48, {OP}\nv_add_u32 v14, s48, v11")
    for i in range(32): a(f"v_mov_b32 v{AR+i}, 0")
    if ye == 1: fsetup()
    while st["n"] < len(stream) - pe: ld()
    if ye == 1:
        a(f"s_cmp_eq_u32 s3, 0\ns_cselect_b64 exec, -1, 1\nglobal_load_ushort v156, v159, s[16:17]\ns_and_b32 exec_hi, exec_hi, 0xffffff\n{yld}\ns_mov_b64 exec, -1"); st["n"] += 2
    if not st["fk"]: waitfor(stream[nK]); a(f"ds_write_b32 v12, v2 offset:{F_K}")
    while st["perm"] < 4:
        waitfor(("V", 2 * st["perm"] + 1)); perms()
    assert not hg or st["f2"]
    stamp(4)
    fwait("L_wp", "v12", F_P, 1, 8)
    for u in range(4):
        a(f"s_mov_b32 exec_lo, {0x000f000f << (4*u):#x}\ns_mov_b32 exec_hi, {0x000f000f << (4*u):#x}")
        for pp in range(2): a(f"ds_read_b128 {v(AR+16*pp+4*u,4)}, v15 offset:{L_P+256*pp}")
    a("s_mov_b64 exec, -1")
    getU(8); tags()
    stamp(6)
    a("s_waitcnt lgkmcnt(0)")
    assert st["perm"] >= 4
    for jm in range(8): mf(0, jm)
    while st["n"] < len(stream): ld()
    while st["perm"] < 7:
        waitfor(("V", 2 * st["perm"] + 1)); perms()
    waitfor(("V", 15))
    stamp(7)
    perms(last=True); mf(1, 6); mf(1, 7)
    a(f"""ds_write_b128 v13, {v(AC,4)} offset:{L_OR}
    s_cmp_eq_u32 s52, 0
    ds_write_b128 v13, {v(AC+4,4)} offset:{L_OR+1024}
    s_mov_b32 exec_hi, 0
    s_waitcnt lgkmcnt(0)
    s_barrier""")
    for k in range(4): a(f"ds_read_b128 {v(80+4*k,4)}, v11 offset:{L_OR+2048*k}")
    for k in range(1, 4): a(f"s_waitcnt lgkmcnt({3-k})\nv_pk_add_f32 v[80:81], v[80:81], {v(80+4*k,2)}\nv_pk_add_f32 v[82:83], v[82:83], {v(82+4*k,2)}")
    tagins(80)
    cstore("L_so", "global_store_dwordx4 v14, v[80:83], s[34:35]")
    if b4 >= 3: a("s_barrier")
    a("s_mov_b32 exec_hi, -1\ns_setprio 0")
    stamp(8)
    a("s_cmp_eq_u32 s3, 0\ns_cbranch_scc1 L_F\ns_waitcnt vmcnt(" + ("3" if ye == 1 else "1") + ")")
    stamp(10)
    a("s_barrier\n" * (1 + (0 < b4 < 4)))
    endwave()
    a("L_F:")
    xyld = f"global_load_ushort v156, v159, s[16:17]\ns_mov_b32 exec_hi, 0xffffff\n{yld}"
    if not ye: fsetup(); a(xyld)
    a("s_waitcnt vmcnt(1)" if ye >= 2 else f"s_mov_b32 exec_hi, 0xffffff\ns_waitcnt vmcnt(3)")
    stamp(10)
    if 0 < b4 < 4: a("s_barrier")
    s0 = "s_mov_b32 exec_hi, -1\nglobal_load_dwordx4 v[24:27], v157, s[34:35] sc1\ns_mov_b32 exec_hi, 0xffffff"
    if se == 1: a(s0)
    if ye >= 2: fsetup()
    if ye == 3: a(xyld)
    a("s_barrier")
    stamp(11)
    if ye == 2: a(xyld + "\n" + s0)
    if ow: a("global_load_ushort v10, v159, s[32:33]")
    a("s_waitcnt vmcnt(0)")
    if se == 2: a(s0)
    a("L_py_c:"); check(152, 4, 6)
    a("v_cmp_ne_u32 vcc, 0, v6\ns_and_b64 exec, exec, vcc\ns_cbranch_scc1 L_py")
    stubs.append(f"L_py:\n{yld}\ns_sub_u32 s56, s56, 1\ns_waitcnt vmcnt(0)\ns_cbranch_scc0 L_py_c\ns_endpgm")
    a("s_mov_b64 exec, -1")
    def fred(r):
        a(f"""v_permlane32_swap_b32 v{r}, v{r+2}
        v_permlane32_swap_b32 v{r+1}, v{r+3}
        v_add_f32 v{r}, v{r}, v{r+2}
        v_add_f32 v{r+1}, v{r+1}, v{r+3}
        v_permlane16_swap_b32 v{r}, v{r+1}
        v_add_f32 v{r}, v{r}, v{r+1}""")
        for s in (8, 4, 2): a(f"v_add_f32_dpp v{r}, v{r}, v{r} row_ror:{s} {DPPF}")
        a(f"v_cvt_pk_bf16_f32 v{r}, 0, v{r}")
    fred(152)
    a(f"""v_mul_f32 v17, 0xbfb8aa3b, v152
    v_exp_f32 v17, v17
    v_lshlrev_b32 v11, 16, v156
    v_add_f32 v17, 1.0, v17
    v_rcp_f32 v17, v17
    s_add_u32 s11, s11, 1
    v_mul_f32 v16, v152, v17
    v_cvt_pk_bf16_f32 v16, 0, v16""")
    stamp(13)
    if prof: a("s_mov_b32 s90, s56")
    if not ns:
        a("s_setprio 3\nglobal_load_dwordx4 v[20:23], v157, s[34:35] sc1")
        gpoll("L_ps", ["global_load_dwordx4 v[20:23], v157, s[34:35] sc1"], 20, 4, 6)
    else:
        sld = lambda k: f"global_load_dwordx4 {v(24+4*k,4)}, v157, s[34:35] sc1"
        a("s_setprio 3")
        def schk(k):
            for i in range(4): a(f"v_xor_b32 v{20+i}, s{12+i}, v{24+4*k+i}")
            a(f"v_or3_b32 v6, v20, v21, v22\nv_bitop3_b32 v6, v23, v6, v2 bitop3:0xa8\nv_cmp_ne_u32 vcc, 0, v6\ns_and_b64 exec, exec, vcc\ns_cbranch_scc0 L_psd")
        if se == 1 or ye == 2: schk(0)
        for k in range(se == 2, ns): a(sld(k))
        a("L_ps:")
        for k in range(ns):
            a(f"s_waitcnt vmcnt({ns-1})")
            schk(k); a(sld(k))
            if sl: a(f"s_sleep {sl}")
        a("s_sub_u32 s56, s56, 1\ns_cbranch_scc0 L_ps\ns_endpgm\nL_psd:\ns_mov_b64 exec, -1")
    stamp(14)
    if prof: a("s_sub_u32 s90, s90, s56")
    fred(20)
    a(f"""v_mul_f32 v20, v20, v16
    s_mov_b32 exec_lo, 0x00030003
    v_cvt_pk_bf16_f32 v20, 0, v20
    s_mov_b32 exec_hi, 0x00030003
    v_add_f32 v20, v20, v11
    s_cmp_lg_u32 s2, 0
    v_cvt_pk_bf16_f32 v20, v20, v20
    global_store_short v159, v20, s[32:33] {osc}
    s_cbranch_scc1 {"L_prof" if prof else "L_end"}
    s_mov_b64 exec, 1
    v_mov_b32 v8, 0
    v_mov_b32 v10, s11
    global_store_dword v8, v10, s[34:35]""")
    endwave()
    def hwave(q):
        nk = 4 if q else 2
        lw = L_WQ if q else L_W1; xs = L_XS0 if q else L_XS1
        a("v_lshrrev_b32 v3, 4, v1\nv_and_b32 v4, 15, v1\nv_lshlrev_b32 v4, 4, v4\nv_lshl_add_u32 v3, v3, 10, v4")
        a("s_mov_b32 s48, s9" if q else f"s_xor_b32 s48, s8, {fx}\ns_lshr_b32 s48, s48, 1")
        for i in range(4): a(f"s_add_u32 s49, s48, {i}\ns_and_b32 s49, s49, 3\ns_lshl_b32 s49, s49, 8\nv_add_u32 v{4+i}, s49, v3")
        if q and twh in (2, 3): a(hwa)
        a("s_waitcnt lgkmcnt(0)")
        if q and twh == 2: a(hwb)
        for i in range(4):
            a(f"global_load_dwordx4 {v(16+4*i,4)}, v{4+i}, s[16:17]")
            if q and twh == 3 and i == 0: a(hwb)
        a("s_barrier\ns_load_dword s11, s[34:35], 0")
        stamp(1)
        lanes()
        a(f"""v_lshl_add_u32 v10, v3, 3, v4
        v_lshlrev_b32 v10, 7, v10
        v_lshl_add_u32 v10, v5, 5, v10
        v_lshlrev_b32 v11, 4, v3
        v_lshl_add_u32 v11, v4, 8, v11
        v_lshlrev_b32 v12, 6, v3
        v_lshl_add_u32 v12, v5, 4, v12
        v_lshl_add_u32 v12, v4, {13 if q else 8}, v12
        v_mov_b32 v9, 0
        s_mov_b32 s52, 0xaaaaaaaa
        s_mov_b32 s53, 0xaaaaaaaa
        s_mov_b32 s54, 0xcccccccc
        s_mov_b32 s55, 0xcccccccc
        s_mov_b32 s59, 0x3f803f80
        s_getreg_b32 s58, hwreg(HW_REG_XCC_ID)
        s_and_b32 s58, s58, 15
        s_lshl_b32 s58, s58, 6""")
        if q: a(f"s_lshl_b32 s49, s4, 15\ns_lshl_b32 s50, s9, 11\ns_add_u32 s50, s50, s49\ns_lshl_b32 s51, s8, 8\ns_add_u32 s50, s50, s51\ns_add_u32 s50, s50, {QP}\ns_lshl_b32 s51, s6, 13\ns_add_u32 s49, s49, s51\ns_add_u32 s49, s49, {QP+4096}")
        else: a(f"s_xor_b32 s49, s8, {fx}\ns_and_b32 s49, s49, 1\ns_lshl_b32 s49, s49, 7\nv_add_u32 v11, s49, v11\ns_lshl_b32 s49, s10, 13\ns_lshl_b32 s50, s8, 10\ns_add_u32 s50, s50, s49\ns_add_u32 s50, s50, {HP}\ns_add_u32 s49, s49, {HP+4096}")
        a("v_add_u32 v12, s50, v12\nv_add_u32 v13, s49, v7\ns_waitcnt vmcnt(0)")
        stamp(2)
        a("v_dot2_f32_bf16 v48, v16, s59, 0\nv_dot2_f32_bf16 v49, v16, v16, 0")
        for i in range(1, 16): a(f"v_dot2_f32_bf16 v48, v{16+i}, s59, v48\nv_dot2_f32_bf16 v49, v{16+i}, v{16+i}, v49")
        for s in (8, 4, 2, 1): a(f"v_add_f32_dpp v48, v48, v48 row_ror:{s} {DPPF}\nv_add_f32_dpp v49, v49, v49 row_ror:{s} {DPPF}")
        a("""v_mul_f32 v48, 0x3b000000, v48
        v_mul_f32 v49, 0x3b000000, v49
        v_fma_f32 v49, -v48, v48, v49
        v_max_f32 v49, 0, v49
        v_cvt_pk_bf16_f32 v49, 0, v49
        v_add_f32 v49, 0x3727c5ac, v49
        v_cvt_pk_bf16_f32 v49, 0, v49
        v_sqrt_f32 v49, v49
        v_cvt_pk_bf16_f32 v48, 0, v48
        v_cvt_pk_bf16_f32 v49, 0, v49
        v_rcp_f32 v49, v49""")
        for i in range(4):
            a(f"""v_lshlrev_b32 v50, 16, v{16+i}
            v_and_b32 v51, 0xffff0000, v{16+i}
            v_sub_f32 v50, v50, v48
            v_sub_f32 v51, v51, v48
            v_cvt_pk_bf16_f32 v50, 0, v50
            v_cvt_pk_bf16_f32 v51, 0, v51
            v_mul_f32 v50, v50, v49
            v_mul_f32 v51, v51, v49
            v_cvt_pk_bf16_f32 v{16+i}, v50, v51""")
        a(f"ds_write_b128 v7, v[16:19] offset:{xs}")
        for t in range(nk): a(f"ds_read_b128 {v(32+4*t,4)}, v11 offset:{xs+64*t}")
        stamp(3)
        a("s_waitcnt lgkmcnt(0)")
        tags()
        if pw & 1 and not pw & 4:
            for r in range(4): a(f"v_xor_b32_e64 v{116+r}, s{12+r}, 1")
            a("global_store_dwordx4 v12, v[116:119], s[34:35]")
        nm = "L_pq" if q else "L_ph"
        fwait(nm + "w", "v9", F_1 if f1 and not q else F_W, 4, 20)
        stamp(4)
        if prof: a("s_waitcnt lgkmcnt(0)")
        trr = lambda t, tt: [a(f"ds_read_b64_tr_b16 {v(48+16*t+4*tt+2*h,2)}, v10 offset:{lw+t*4096+h*512+tt*8}") for h in range(2)]
        for tt in range(4): trr(0, tt)
        for t in range(nk):
            for tt in range(4):
                a(f"s_waitcnt lgkmcnt({6 if t + 1 < nk else 6-2*tt})")
                if t + 1 < nk: trr(t + 1, tt)
                a(f"{MF} {v(112+4*tt,4)}, {v(48+16*t+4*tt,4)}, {v(32+4*t,4)}, {v(112+4*tt,4) if t else 0}")
        for r in range(4): a(f"v_cndmask_b32 v{112+r}, v{112+r}, v{116+r}, s[52:53]")
        for r in range(4): a(f"v_cndmask_b32 v{120+r}, v{120+r}, v{124+r}, s[52:53]")
        for r in range(4): a(f"v_cndmask_b32 v{112+r}, v{112+r}, v{120+r}, s[54:55]")
        for r in range(4): a(f"v_bfi_b32 v{116+r}, v2, s{12+r}, v{112+r}")
        for r in range(4): a(f"s_xor_b32 s{12+r}, s{12+r}, s58")
        tagins(112)
        a(f"global_store_dwordx4 v12, v[112:115], s[34:35]{' sc1' if nopl else ''}\nv_add_u32 v12, {BOFF}, v12\nglobal_store_dwordx4 v12, v[116:119], s[34:35] sc1")
        stamp(5)
        a("s_waitcnt vmcnt(0)")
        if not q and not w2pos:
            a(f"v_lshrrev_b32 v6, 3, v1\nv_and_b32 v8, 7, v1\nv_lshlrev_b32 v8, 4, v8\nv_lshl_add_u32 v6, v6, 10, v8\ns_lshl_b32 s48, s10, 16\ns_lshl_b32 s49, s8, 7\ns_add_u32 s48, s48, s49\nv_add_u32 v6, s48, v6\ns_mov_b32 m0, {L_W2}")
            for j in range(8):
                if j: a("v_add_u32 v6, 8192, v6\ns_add_u32 m0, m0, 1024")
                a(f"global_load_lds_dwordx4 v6, s[30:31] {wnt}")
        if not q and w2pos and hg < 2: fwait("L_phk", "v9", F_2 if hg else F_K, 4, 20)
        stamp(6)
        a(f"s_mov_b32 s57, {ntry}")
        if not fast: a(f"s_branch {nm}_sw")
        a(f"{nm}:")
        for i in range(8): a(f"global_load_dwordx4 {v(16+4*i,4)}, v13, s[34:35] offset:{i*1024-4096} sc1")
        a("s_waitcnt vmcnt(0)")
        check(16, 32, 6)
        a(f"v_cmp_ne_u32 vcc, 0, v6\ns_cbranch_vccnz {nm}_r")
        stubs.append(f"""{nm}_r:
        s_sub_u32 s56, s56, 1
        s_cbranch_scc1 L_end
        s_sub_u32 s57, s57, 1
        s_cmp_lg_u32 s57, 0
        s_cbranch_scc1 {nm}
        {nm}_sw:
        s_mov_b32 s57, 0
        v_add_u32 v13, {BOFF}, v13
        s_xor_b32 s12, s12, s58
        s_xor_b32 s13, s13, s58
        s_xor_b32 s14, s14, s58
        s_xor_b32 s15, s15, s58
        s_branch {nm}""")
        stamp(7)
        if prof: a(f"s_sub_u32 s76, {ntry+1}, s57")
        a("v_lshlrev_b32 v14, 3, v1")
        if q:
            for i in range(0, 8, 2): a(f"v_pk_add_f32 {v(16+i,2)}, {v(16+i,2)}, {v(24+i,2)}\nv_pk_add_f32 {v(32+i,2)}, {v(32+i,2)}, {v(40+i,2)}")
            for i in range(0, 8, 2): a(f"v_pk_add_f32 {v(16+i,2)}, {v(16+i,2)}, {v(32+i,2)}")
            for i in range(4): a(f"v_cvt_pk_bf16_f32 v{16+i}, v{16+2*i}, v{17+2*i}")
            a(f"""s_cmp_gt_i32 s57, 0
            s_cselect_b32 s48, 3, 1
            ds_write_b64 v14, v[16:17] offset:{L_QS}
            v_mov_b32 v6, s48
            ds_write_b64 v14, v[18:19] offset:{L_QS+512}
            ds_write_b32 v9, v6 offset:{F_Q}
            s_waitcnt lgkmcnt(0)""")
        else:
            tags()
            for i in range(0, 16, 2): a(f"v_pk_add_f32 {v(16+i,2)}, {v(16+i,2)}, {v(32+i,2)}")
            for i in range(0, 8, 2): a(f"v_pk_add_f32 {v(16+i,2)}, {v(16+i,2)}, {v(24+i,2)}")
            for i in range(0, 4, 2): a(f"v_pk_add_f32 {v(16+i,2)}, {v(16+i,2)}, {v(20+i,2)}")
            for i in range(4): a(f"v_max_f32 v{16+i}, 0, v{16+i}")
            a(f"""v_cvt_pk_bf16_f32 v16, v16, v17
            v_cvt_pk_bf16_f32 v17, v18, v19
            ds_write_b64 v14, v[16:17] offset:{L_HS}
            v_lshlrev_b32 v11, 4, v3
            v_lshl_add_u32 v11, v5, 7, v11
            v_lshl_add_u32 v10, v3, 3, v4
            v_lshlrev_b32 v10, 7, v10
            v_lshl_add_u32 v10, v5, 3, v10
            s_lshl_b32 s48, s8, 15
            s_lshl_b32 s49, s10, 10
            s_add_u32 s48, s48, s49
            s_add_u32 s48, s48, {YP}
            v_add_u32 v12, s48, v7""")
            if hg == 2: fwait("L_phk", "v9", F_2, 4, 20)
            for t in range(2):
                a(f"ds_read_b128 {v(32+4*t,4)}, v11 offset:{L_HS+64*t}")
                for tt in range(4):
                    for h in range(2): a(f"ds_read_b64_tr_b16 {v(48+16*t+4*tt+2*h,2)}, v10 offset:{L_W2+t*4096+h*512+tt*32}")
                a("s_waitcnt lgkmcnt(0)")
                for tt in range(4): a(f"{MF} {v(112+4*tt,4)}, {v(32+4*t,4)}, {v(48+16*t+4*tt,4)}, {v(112+4*tt,4) if t else 0}")
            for tt in range(1, 4):
                for r in range(4): a(f"v_mov_b32_dpp v{112+r}, v{112+4*tt+r} quad_perm:[0,1,2,3] row_mask:{1<<tt} bank_mask:0xf")
            tagins(112)
            a("global_store_dwordx4 v12, v[112:115], s[34:35] sc1")
            stamp(11)
        a("s_barrier\n" * (2 + (b4 > 0) + (b4 == 3)))
        endwave()
    a("L_HB:\ns_setprio 3\ns_cmp_lg_u32 s3, 0\ns_cbranch_scc1 L_H1")
    hwave(1)
    a("L_H1:\ns_cmp_ge_u32 s10, 28\ns_cbranch_scc1 L_end")
    hwave(0)
    a("L_B:\ns_sub_u32 s3, s3, 2")
    lanes()
    a("s_load_dword s11, s[34:35], 0")
    if tlbw: a(f"""s_cmp_lg_u32 s3, 1
    s_cbranch_scc1 L_notlb
    s_lshl_b32 s48, s6, 24
    s_lshl_b32 s49, s4, 21
    s_add_u32 s48, s48, s49
    s_lshl_b32 s49, s7, 16
    s_add_u32 s48, s48, s49
    s_add_u32 s48, s48, 0x180000
    s_lshl_b32 s49, s4, 19
    s_min_u32 s50, s10, 27
    s_lshl_b32 s50, s50, 16
    {"s_load_dword s36, s[18:19], s48" if tlbw & 1 else ""}
    {"s_load_dword s37, s[30:31], s50" if tlbw & 1 else ""}
    s_load_dword s38, s[20:21], s48
    s_load_dword s39, s[24:25], s49
    s_load_dword s40, s[32:33], 0
    L_notlb:""")
    sidx("s51")
    a(f"""v_and_b32 v8, 1, v1
    v_lshlrev_b32 v8, 7, v8
    v_bfe_u32 v9, v1, 1, 2
    v_lshl_add_u32 v8, v9, 13, v8
    s_lshl_b32 s49, s4, 15
    s_lshl_b32 s50, s9, 11
    s_add_u32 s50, s50, s49
    s_lshl_b32 s49, s8, 8
    s_add_u32 s50, s50, s49
    s_add_u32 s50, s50, {QP}
    v_add_u32 v8, s50, v8
    v_lshlrev_b32 v9, 7, v1
    s_lshl_b32 s49, s10, 13
    s_lshl_b32 s50, s8, 10
    s_add_u32 s50, s50, s49
    s_add_u32 s50, s50, {HP-1024}
    s_mov_b64 exec, 0xff00
    v_add_u32 v8, s50, v9
    s_lshl_b32 s50, s51, 11
    s_add_u32 s50, s50, {OP-2048}
    s_mov_b32 exec_lo, 0xffff0000
    v_add_u32 v8, s50, v9
    s_lshl_b32 s54, s8, 15
    s_lshl_b32 s49, s10, 10
    s_add_u32 s54, s54, s49
    s_add_u32 s54, s54, {SP}
    s_sub_u32 s50, s54, 4096
    s_mov_b32 exec_lo, 0
    s_mov_b32 exec_hi, -1
    v_add_u32 v8, s50, v9
    s_mov_b64 exec, -1
    s_lshl_b32 s51, s51, 5
    s_add_u32 s51, s51, {ML}
    v_writelane_b32 v8, s51, 40
    s_cmp_lg_u32 s3, 0
    s_cbranch_scc1 L_nopre
    s_cmp_eq_u32 s8, s4
    s_cselect_b32 exec_hi, 0x1ff, 0
    s_or_b32 exec_hi, exec_hi, 0x100
    {"s_mov_b32 exec_hi, 0x100" if pw & 2 else ""}
    s_mov_b32 exec_lo, {(0 if pw & 1 else 0xffff) | (0 if pw & 2 else 0xffff0000)}
    global_load_dword v80, v8, s[34:35] sc1
    s_mov_b64 exec, -1
    L_nopre:""")
    a(f"""s_mov_b32 s59, {LOG2E}
    v_lshl_add_u32 v8, v3, 3, v4
    v_lshlrev_b32 v8, 7, v8
    v_lshl_add_u32 v8, v5, 3, v8
    s_lshl_b32 s48, s3, 5
    v_add_u32 v8, s48, v8
    v_bfe_u32 v9, v1, 3, 2
    v_lshlrev_b32 v9, 5, v9
    v_xor_b32 v8, v9, v8
    v_lshlrev_b32 v9, 4, v3
    v_lshl_add_u32 v9, v5, 8, v9
    v_lshlrev_b32 v99, 3, v5
    v_add_u32 v10, {L_ML}, v99
    v_add_u32 v11, s48, v10
    v_add_u32 v99, s51, v99
    s_lshl_b32 s48, s3, 14
    s_add_u32 s48, s48, {L_K}
    v_add_u32 v92, s48, v7
    v_lshlrev_b32 v93, 8, v5
    v_lshl_add_u32 v93, v3, 6, v93
    v_lshl_add_u32 v93, v4, 4, v93
    s_lshl_b32 s48, s3, 2
    v_mov_b32 v94, s48
    v_lshlrev_b32 v95, 4, v5
    v_lshl_add_u32 v95, v3, 6, v95
    v_lshl_add_u32 v95, v4, 2, v95
    s_lshl_b32 s48, s3, 9
    v_add_u32 v95, s48, v95
    v_lshrrev_b32 v16, 5, v1
    v_and_b32 v98, 15, v1
    v_lshlrev_b32 v98, 3, v98
    v_lshl_add_u32 v98, v16, 7, v98
    s_lshl_b32 s48, s4, 2
    s_add_u32 s48, s48, s3
    s_lshl_b32 s49, s48, 8
    s_add_u32 s49, s49, {ML}
    v_add_u32 v98, s49, v98
    v_and_b32 v96, 31, v1
    v_lshlrev_b32 v6, 4, v96
    v_lshl_add_u32 v6, v16, 13, v6
    s_lshl_b32 s48, s48, 14
    s_lshl_b32 s49, s9, 9
    s_add_u32 s48, s48, s49
    s_add_u32 s48, s48, {OP+4096}
    v_add_u32 v6, s48, v6
    v_lshlrev_b32 v96, 3, v96
    v_lshl_add_u32 v96, v16, 2, v96
    s_lshl_b32 s49, s3, 8
    v_add_u32 v96, s49, v96
    s_add_u32 s54, s54, s49
    v_add_u32 v97, s54, v7
    s_waitcnt vmcnt(0) lgkmcnt(0)""")
    if tl:
        a("s_cmp_lg_u32 s3, 0\ns_cbranch_scc1 L_notl\ns_lshl_b32 s48, s6, 24\ns_lshl_b32 s49, s4, 21\ns_add_u32 s48, s48, s49\ns_lshl_b32 s49, s7, 16\ns_add_u32 s48, s48, s49\ns_add_u32 s48, s48, 0x180000")
        a("s_lshl_b32 s46, s8, 7\ns_lshl_b32 s49, s4, 19\ns_add_u32 s49, s49, s46\ns_min_u32 s47, s10, 27\ns_lshl_b32 s47, s47, 16\ns_add_u32 s47, s47, s46")
        for k, x in enumerate(["s_load_dword s37, s[30:31], s47", "s_load_dword s38, s[20:21], s48", "s_load_dword s39, s[24:25], s49", "s_load_dword s40, s[32:33], 0"]):
            if tl >> k & 1: a(x)
        a("L_notl:")
    tags()
    a("s_lshl_b32 s50, s13, 10\ns_or_b32 s50, s50, s12\ns_and_b32 s50, s50, 0xffff")
    if pwp: fwait("L_wk", "v94", F_K, 1, 80)
    if pw & 2:
        if not pw & 8:
            for r in range(4): a(f"v_xor_b32_e64 v{12+r}, s{12+r}, 1")
        a(f"""s_sub_u32 s48, s51, {ML}
        s_lshl_b32 s48, s48, 6
        s_lshl_b32 s49, s3, 10
        s_add_u32 s48, s48, s49
        s_add_u32 s48, s48, {OP}
        s_sub_u32 s49, s54, 512
        s_cmp_eq_u32 s3, 2
        s_cselect_b32 s48, s49, s48
        v_add_u32 v87, s48, v7
        s_cmp_eq_u32 s8, s4
        s_cselect_b32 s49, 3, 2
        s_cmp_ge_u32 s3, s49
        s_cbranch_scc1 L_nopw
        {("" if pw & 16 else "global_load_dword v104, v87, s[34:35] sc1") if pw & 8 else "global_store_dwordx4 v87, v[12:15], s[34:35]"}
        L_nopw:""")
    if not pwp: fwait("L_wk", "v94", F_K, 1, 80)
    stamp(2)
    for i in range(16):
        if i == 12: a("s_waitcnt lgkmcnt(0)")
        a(f"ds_read_b128 {v(16+4*i,4)}, v92 offset:{1024*i}")
    fwait("L_wq", "v90", F_Q, 1, 91)
    a(f"ds_read_b128 v[100:103], v93 offset:{L_QS}\ns_setprio 1")
    stamp(4)
    getU(91)
    a("s_waitcnt lgkmcnt(0)")
    S = 80
    def red(i):
        d = 12 + 4 * i
        if (i >> 1) & 1 == 0: a(f"v_add_f32_dpp v{d}, v{d+1}, v{d} row_ror:12 {DPPF}\nv_add_f32_dpp v{d+2}, v{d+3}, v{d+2} row_ror:12 {DPPF}")
        else: a(f"v_add_f32_dpp v{d}, v{d}, v{d+1} row_ror:4 {DPPF}\nv_add_f32_dpp v{d+2}, v{d+2}, v{d+3} row_ror:4 {DPPF}")
    def red2(i):
        d = 12 + 4 * i; pp, vv, e = i >> 3, (i >> 1) & 3, i & 1
        x, y = (d + 2, d) if vv < 2 else (d, d + 2)
        a(f"v_add_f32_dpp v{S+2*pp+e}, v{x}, v{y} row_ror:8 row_mask:0xf bank_mask:{1<<vv}")
    for i in range(16 + 4):
        if i < 16: a(f"{MF} {v(12+4*i,4)}, {v(16+4*i,4)}, v[100:103], 0")
        if 0 <= i - 3 < 16: red(i - 3)
        if 0 <= i - 4 < 16: red2(i - 4)
    for k in range(4): a(f"v_cvt_pk_bf16_f32 v{S+k}, 0, v{S+k}")
    for k in range(4): a(f"v_mul_f32 v{S+k}, 0x3db504f3, v{S+k}")
    for k in range(4): a(f"v_cvt_pk_bf16_f32 v{S+k}, 0, v{S+k}")
    def allred(op, r, t):
        a(f"""{op}_dpp v{r}, v{r}, v{r} row_ror:8 {DPPF}
        {op}_dpp v{r}, v{r}, v{r} row_ror:4 {DPPF}
        v_mov_b32 v{t}, v{r}
        v_permlane16_swap_b32 v{r}, v{t}
        {op} v{r}, v{r}, v{t}
        v_mov_b32 v{t}, v{r}
        v_permlane32_swap_b32 v{r}, v{t}
        {op} v{r}, v{r}, v{t}""")
    a("v_max3_f32 v84, v80, v81, v82\nv_max_f32 v84, v84, v83")
    allred("v_max_f32", 84, 86)
    for k in range(4): a(f"v_sub_f32 v{S+k}, v{S+k}, v84")
    for k in range(4): a(f"v_mul_f32 v{S+k}, s59, v{S+k}")
    for k in range(4): a(f"v_exp_f32 v{S+k}, v{S+k}")
    a("v_add_f32 v85, v80, v81\nv_add_f32 v86, v82, v83\nv_add_f32 v85, v85, v86")
    allred("v_add_f32", 85, 86)
    if pw & 2 and not pwp: a("s_waitcnt vmcnt(0)")
    a(f"ds_write_b64 v11, v[84:85]\nds_write_b32 v94, v2 offset:{F_M}")
    fwait("L_wm", "v90", F_M, 4, 12)
    a("ds_read2_b64 v[16:19], v10 offset0:0 offset1:4\nds_read2_b64 v[20:23], v10 offset0:8 offset1:12")
    stamp(5)
    a("""s_waitcnt lgkmcnt(0)
    v_max3_f32 v24, v16, v18, v20
    v_max_f32 v24, v24, v22
    v_sub_f32 v84, v84, v24
    v_mul_f32 v84, s59, v84
    v_exp_f32 v84, v84""")
    for k in range(4): a(f"v_mul_f32 v{S+k}, v84, v{S+k}")
    a(f"""v_cvt_pk_bf16_f32 v80, v80, v81
    v_cvt_pk_bf16_f32 v81, v82, v83
    ds_write_b32 v95, v80 offset:{L_P}
    ds_write_b32 v95, v81 offset:{L_P+256}
    ds_write_b32 v94, v91 offset:{F_P}""")
    stamp(6)
    if pwp and not pw & 8: a("s_waitcnt vmcnt(0)")
    a("s_cmp_lg_u32 s3, 2\ns_cbranch_scc1 L_noml")
    for k in range(4): a(f"v_sub_f32 v{16+2*k}, v{16+2*k}, v24")
    for k in range(4): a(f"v_mul_f32 v{16+2*k}, s59, v{16+2*k}")
    for k in range(4): a(f"v_exp_f32 v{16+2*k}, v{16+2*k}")
    a("v_mul_f32 v25, v16, v17\nv_fmac_f32 v25, v18, v19\nv_fmac_f32 v25, v20, v21\nv_fmac_f32 v25, v22, v23")
    a("v_or_b32 v24, s50, v24\nv_bfi_b32 v25, v2, s14, v25\ns_mov_b64 exec, 15\ns_cmp_eq_u32 s52, 0")
    cstore("L_sml", "global_store_dwordx2 v99, v[24:25], s[34:35]")
    a("s_mov_b64 exec, -1\nL_noml:")
    stamp(9)
    if cp:
        for k in range(1, ns): a(f"v_add_u32 v{33+k}, {coff(k)}, v97")
    if osel:
        for t in range(4): a(f"s_mov_b64 s[{36+2*t}:{37+2*t}], -1")
    a("v_mov_b32 v33, 0xffff\ns_waitcnt lgkmcnt(0)\ns_setprio 3\ns_barrier")
    stamp(12)
    if prof: a("s_mov_b32 s90, s56")
    ol = [f"global_load_dwordx4 {v(64+4*t,4)}, v6, s[34:35] offset:{t*2048-4096} sc1" for t in range(4)]
    mll = "global_load_dwordx2 v[56:57], v98, s[34:35] sc1"
    wotr = lambda t: [a(f"ds_read_b64_tr_b16 {v(16+4*t+2*h,2)}, v8 offset:{L_WO+t*4096+h*512}") for h in range(2)]
    a(mll)
    if b4 >= 2: a("s_barrier")
    for l in ol: a(l)
    if 0 < b4 < 4:
        if b4 & 1: a("s_barrier")
        for t in range(4): wotr(t)
    a("L_pml:")
    a(f"""s_waitcnt vmcnt(4)
    v_xor_b32 v56, s50, v56
    v_xor_b32 v57, s14, v57
    v_and_b32 v32, v33, v56
    v_and_or_b32 v32, v57, v2, v32
    v_max_f32_dpp v58, v56, v56 row_ror:8 {DPPF}
    v_cmp_ne_u32 vcc, 0, v32
    s_cbranch_vccnz L_pml_r
    v_max_f32_dpp v58, v58, v58 row_ror:4 {DPPF}
    v_mov_b32 v59, v58
    v_permlane32_swap_b32 v58, v59
    v_max_f32 v58, v58, v59
    v_sub_f32 v56, v56, v58
    v_mul_f32 v56, s59, v56
    v_exp_f32 v56, v56
    v_mul_f32 v57, v56, v57
    v_add_f32_dpp v57, v57, v57 row_ror:8 {DPPF}
    v_add_f32_dpp v57, v57, v57 row_ror:4 {DPPF}
    v_mov_b32 v59, v57
    v_permlane32_swap_b32 v57, v59
    v_add_f32 v57, v57, v59
    v_rcp_f32 v57, v57
    v_mul_f32 v56, v56, v57""")
    stubs.append("L_pml_r:\n" + "\n".join([mll] + ol) + "\ns_sub_u32 s56, s56, 1\ns_cbranch_scc0 L_pml\ns_endpgm")
    stamp(10)
    fma = lambda t: [a(f"{'v_fmac_f32_dpp' if t else 'v_mul_f32_dpp'} v{60+k}, v56, v{64+4*t+k} row_newbcast:{4*t+k} {DPPF}") for k in range(4)]
    if oi:
        a("L_po_c:")
        for t in range(4):
            r0 = 64 + 4 * t
            a(f"s_waitcnt vmcnt({3-t})")
            for i in range(4): a(f"v_xor_b32 v{r0+i}, s{12+i}, v{r0+i}")
            a(f"v_or3_b32 v32, v{r0}, v{r0+1}, {'v32' if t else 0}\nv_or3_b32 v32, v{r0+2}, v{r0+3}, v32")
            if t == 3: a("v_and_b32 v32, v2, v32\nv_cmp_ne_u32 vcc, 0, v32")
            fma(t)
        a("s_cbranch_vccnz L_po")
        stubs.append("L_po:\n" + "\n".join(ol) + "\ns_sub_u32 s56, s56, 1\ns_cbranch_scc0 L_po_c\ns_endpgm")
    elif not osel: gpoll("L_po", ol, 64, 16, 32)
    else:
        a("L_po_c:")
        for t in range(4):
            a(f"s_waitcnt vmcnt({3-t})\ns_mov_b64 exec, s[{36+2*t}:{37+2*t}]")
            check(64 + 4 * t, 4, 32)
            a(f"v_cmp_ne_u32 s[{36+2*t}:{37+2*t}], 0, v32")
            if t == 2: a("s_or_b64 s[44:45], s[36:37], s[38:39]")
        a("s_or_b64 s[44:45], s[44:45], s[40:41]\ns_or_b64 s[44:45], s[44:45], s[42:43]\ns_mov_b64 exec, -1\ns_cbranch_scc1 L_po")
        stubs.append("L_po:\n" + "\n".join(f"s_mov_b64 exec, s[{36+2*t}:{37+2*t}]\n{ol[t]}" for t in range(4)) + "\ns_sub_u32 s56, s56, 1\ns_cbranch_scc0 L_po_c\ns_endpgm")
    stamp(13)
    if prof: a("s_sub_u32 s90, s90, s56")
    if not oi:
        for t in range(4): fma(t)
    a(f"""v_permlane32_swap_b32 v60, v62
    v_permlane32_swap_b32 v61, v63
    v_add_f32 v60, v60, v62
    v_add_f32 v61, v61, v63
    v_cvt_pk_bf16_f32 v60, v60, v61
    ds_write_b32 v96, v60 offset:{L_OS}
    s_waitcnt lgkmcnt(0)
    s_barrier""")
    for t in range(4):
        a(f"ds_read_b128 {v(64+4*t,4)}, v9 offset:{L_OS+64*t}")
        if b4 in (0, 4): wotr(t)
    for t in range(4): a(f"s_waitcnt lgkmcnt({9-3*t if b4 in (0, 4) else 3-t})\n{MF} v[48:51], {v(64+4*t,4)}, {v(16+4*t,4)}, {'v[48:51]' if t else 0}")
    a("s_mov_b64 exec, 0xffff\ns_cmp_eq_u32 s53, 0")
    tagins(48)
    cstore("L_ss", "global_store_dwordx4 v97, v[48:51], s[34:35]", inv=True)
    if cp:
        a("s_cmp_eq_u32 s8, s4\ns_cbranch_scc1 L_nocp")
        for k in range(1, ns): a(f"global_store_dwordx4 v{33+k}, v[48:51], s[34:35] sc1")
        a("L_nocp:")
    stamp(14)
    endwave()
    for x in stubs: a(x)
    if prof == 2:
        a("L_prof:\ns_mov_b64 exec, -1")
        if didx == 16: a("s_memrealtime s[92:93]")
        lo, hi = dict(H=(0, 0), B=(2, 5), A=(6, 9), F=(6, 6))[drole]
        a(f"""v_lshrrev_b32 v4, 6, v0
        v_readfirstlane_b32 s48, v4
        s_cmp_lt_u32 s48, {lo}
        s_cbranch_scc1 L_end
        s_cmp_gt_u32 s48, {hi}
        s_cbranch_scc1 L_end
        s_waitcnt lgkmcnt(0)
        s_add_u32 s48, s{60+2*didx}, 2000
        L_spin:
        s_sleep 1
        s_memrealtime s[50:51]
        s_waitcnt lgkmcnt(0)
        s_sub_u32 s50, s50, s48
        s_cmp_lt_i32 s50, 0
        s_cbranch_scc1 L_spin""")
    if prof == 1:
        a("L_prof:\ns_mov_b64 exec, -1\ns_memrealtime s[92:93]\ns_getreg_b32 s94, hwreg(HW_REG_XCC_ID)\ns_getreg_b32 s96, hwreg(HW_REG_HW_ID)\ns_getpc_b64 s[98:99]\ns_waitcnt lgkmcnt(0)")
        for i in range(20): a(f"v_writelane_b32 v3, s{60+2*i}, {i}")
        a("v_writelane_b32 v3, s0, 20")
        a(f"v_lshrrev_b32 v4, 6, v0\ns_mul_i32 s48, s2, {NW}\nv_add_u32 v4, s48, v4\nv_lshlrev_b32 v4, 7, v4\nv_lshl_add_u32 v4, v1, 2, v4\nv_add_u32 v4, {PROF}, v4\ns_mov_b64 exec, 0x1fffff\nglobal_store_dword v4, v3, s[34:35] sc1")
    a("L_end:\ns_endpgm")
    head = [l for l in open(REF).read().split("\n") if l.startswith(";") and "@launch" not in l]
    txt = "\n".join(head) + f"\n; @launch grid=(256,1,1) block=({NW*64},1,1) lds=131072\n"
    txt += f'.amdgcn_target "amdgcn-amd-amdhsa--gfx950"\n.text\n.globl {NAME}_kernel\n.p2align 8\n.type {NAME}_kernel,@function\n'
    txt += a.text()
    txt += f'''.section .rodata,"a"
.p2align 6
.amdhsa_kernel {NAME}_kernel
  .amdhsa_next_free_vgpr 160
  .amdhsa_next_free_sgpr 100
  .amdhsa_accum_offset 160
  .amdhsa_group_segment_fixed_size 0
  .amdhsa_kernarg_size 88
  .amdhsa_user_sgpr_count 2
  .amdhsa_user_sgpr_kernarg_segment_ptr 1
  .amdhsa_system_sgpr_workgroup_id_x 1
  .amdhsa_float_denorm_mode_32 3
.end_amdhsa_kernel
'''
    return txt
if __name__ == "__main__":
    out = sys.argv[1]; kw = {}
    for x in sys.argv[2:]:
        k, val = x.split("=")
        try: val = int(val, 0)
        except ValueError: pass
        kw[k] = val
    open(out, "w").write(gen(**kw))
```
